```python
import torch

def _softmax(x, axis=-1):
    return torch.softmax(x, dim=axis)

def _gelu(x):
    return torch.nn.functional.gelu(x, approximate='tanh')

def _silu(x):
    return torch.nn.functional.silu(x)

def _sigmoid(x):
    return torch.sigmoid(x)

def _layernorm(x, axis=-1, eps=1e-05):
    m = x.mean(dim=axis, keepdim=True)
    v = x.var(dim=axis, keepdim=True, unbiased=False)
    return (x - m) / torch.sqrt(v + eps)

def _scatter_add(tgt, idx, src, axis=0):
    return tgt.clone().index_add_(axis, idx, src)

def _segment_sum(src, seg, n):
    out = torch.zeros((n,) + src.shape[1:], dtype=src.dtype)
    return out.index_add_(0, seg, src)

def _pad(x, pw):
    flat = tuple((v for pair in reversed(pw) for v in pair))
    return torch.nn.functional.pad(x, flat)
kernel_name = 'concat_heads__memory_aug_recurrent_mem_tr__grouped_kv_mqa__prompt'

def setup_inputs():

    _w = lambda a: (lambda t: t.to(torch.bfloat16) if t.is_floating_point() else t)(torch.as_tensor(a))

    def _A_setup():
        B, S, Dm = (1, 2048, 576)
        H, Dh = (32, 128)
        M, seg = (8, 32)
        seg = min(seg, S)
        S = S // seg * seg
        return {'x': _w((lambda *s: torch.randn(*s, dtype=torch.bfloat16) * 0.05)(B, S, Dm)), 'mem0': _w((lambda *s: torch.randn(*s, dtype=torch.bfloat16) * 0.8)(B, M, Dm)), 'Wq': _w((lambda *s: torch.randn(*s, dtype=torch.bfloat16) * 1.6)(Dm, H, Dh) * Dm ** (-0.5)), 'Wk': _w((lambda *s: torch.randn(*s, dtype=torch.bfloat16) * 1.6)(Dm, H, Dh) * Dm ** (-0.5)), 'Wv': _w((lambda *s: torch.randn(*s, dtype=torch.bfloat16) * 0.8)(Dm, H, Dh) * Dm ** (-0.5)), 'Wo': _w((lambda *s: torch.randn(*s, dtype=torch.bfloat16) * 0.8)(H, Dh, Dm) * (H * Dh) ** (-0.5)), 'seg_len': seg}
    _A_in = _A_setup()

    def _B_setup():
        B, S, D, H = (1, 2048, 576, 32)
        Dh = D // H
        return {'x': _w((lambda *s: torch.randn(*s, dtype=torch.bfloat16) * 0.05)(B, S, D)), 'wq': _w((lambda *s: torch.randn(*s, dtype=torch.bfloat16) * 1.6)(D, H * Dh)), 'wk': _w((lambda *s: torch.randn(*s, dtype=torch.bfloat16) * 1.6)(D, Dh)), 'wv': _w((lambda *s: torch.randn(*s, dtype=torch.bfloat16) * 0.05)(D, Dh)), 'wo': _w((lambda *s: torch.randn(*s, dtype=torch.bfloat16) * 0.05)(H * Dh, D))}
    _B_in = _B_setup()
    return {'A_x': _A_in['x'], 'A_mem0': _A_in['mem0'], 'A_Wq': _A_in['Wq'], 'A_Wk': _A_in['Wk'], 'A_Wv': _A_in['Wv'], 'A_Wo': _A_in['Wo'], 'A_seg_len': _A_in['seg_len'], 'B_x': _B_in['x'], 'B_wq': _B_in['wq'], 'B_wk': _B_in['wk'], 'B_wv': _B_in['wv'], 'B_wo': _B_in['wo']}

def reference(A_x, A_mem0, A_Wq, A_Wk, A_Wv, A_Wo, A_seg_len, B_x, B_wq, B_wk, B_wv, B_wo):

    def _A_ref(x, mem0, Wq, Wk, Wv, Wo, seg_len):
        B, S, Dm = x.shape
        H, Dh = (Wq.shape[1], Wq.shape[2])
        M = mem0.shape[1]
        scale = Dh ** (-0.5)
        n_seg = S // seg_len
        L = M + seg_len
        idx = torch.arange(L)
        mask = (idx[:, None] < M) | (idx[:, None] >= idx[None, :])
        mem = mem0
        outs = []
        for s in range(n_seg):
            xs = x[:, s * seg_len:(s + 1) * seg_len, :].clone()
            h = torch.concatenate([mem, xs], axis=1)
            q = torch.einsum('btd,dhe->bhte', h, Wq)
            k = torch.einsum('btd,dhe->bhte', h, Wk)
            v = torch.einsum('btd,dhe->bhte', h, Wv)
            scores = torch.einsum('bhqe,bhke->bhqk', q, k) * scale
            scores = torch.where(mask[None, None], scores, -1000000000.0)
            p = _softmax(scores, axis=-1)
            o = torch.einsum('bhqk,bhke->bhqe', p, v)
            o = torch.einsum('bhte,hed->btd', o, Wo)
            mem = o[:, :M, :].clone()
            outs.append(o[:, M:, :])
        return torch.concatenate(outs, axis=1)

    def _B_ref(x, wq, wk, wv, wo):
        B, S, D = x.shape
        H = 32
        Dh = D // H
        q = (lambda x, *d: x.permute(*d))((x @ wq).reshape(B, S, H, Dh), 0, 2, 1, 3)
        k = x @ wk
        v = x @ wv
        scores = torch.einsum('bhqd,bkd->bhqk', q, k) * Dh ** (-0.5)
        p = _softmax(scores, axis=-1)
        o = torch.einsum('bhqk,bkd->bhqd', p, v)
        return (lambda x, *d: x.permute(*d))(o, 0, 2, 1, 3).reshape(B, S, H * Dh) @ wo
    a = _A_ref(A_x, A_mem0, A_Wq, A_Wk, A_Wv, A_Wo, A_seg_len)
    b = _B_ref(B_x, B_wq, B_wk, B_wv, B_wo)
    return torch.concatenate([a, b], axis=-1)
```

```python
import re

class Asm:
    def __init__(self):
        self.lines = []
        self._uid = 0
    def __call__(self, s):
        for ln in s.split("\n"):
            ln = ln.rstrip()
            if ln.strip() == "": continue
            self.lines.append(ln if (ln.lstrip().endswith(":") and not ln.startswith(" ")) else "  " + ln.strip())
    def label(self, name):
        self.lines.append(name + ":")
    def uid(self, p="L"):
        self._uid += 1
        return f"{p}_{self._uid}"
    def comment(self, s):
        self.lines.append("  ; " + s)
    def text(self):
        return "\n".join(self.lines) + "\n"

def vr(b, n=1):
    return f"v{b}" if n == 1 else f"v[{b}:{b+n-1}]"
def ar(b, n=1):
    return f"a{b}" if n == 1 else f"a[{b}:{b+n-1}]"
def sr(b, n=1):
    return f"s{b}" if n == 1 else f"s[{b}:{b+n-1}]"

_reg = re.compile(r"\b([vas])(?:(\d+)|\[(\d+):(\d+)\])")
def regs_of(tok):
    out = []
    for m in _reg.finditer(tok):
        k = m.group(1)
        if m.group(2) is not None: out.append((k, int(m.group(2))))
        else: out += [(k, i) for i in range(int(m.group(3)), int(m.group(4)) + 1)]
    return out

def split_ops(s):
    ops, depth, cur = [], 0, ""
    for ch in s:
        if ch == "[": depth += 1
        if ch == "]": depth -= 1
        if ch == "," and depth == 0: ops.append(cur.strip()); cur = ""
        else: cur += ch
    if cur.strip(): ops.append(cur.strip())
    return ops

TRANS = ("v_exp_f32", "v_log_f32", "v_rcp_f32", "v_rsq_f32", "v_sqrt_f32", "v_sin_f32", "v_cos_f32")

class I:
    pass

def parse(line):
    line = line.split(";")[0].strip()
    if not line or line.endswith(":") or line.startswith("."): return None
    parts = line.split(None, 1)
    i = I(); i.text = line; i.mn = parts[0]; ops = split_ops(parts[1]) if len(parts) > 1 else []
    i.ops = ops
    mn = i.mn
    i.states = 1
    i.kind = "other"; i.w = []; i.r = []
    i.passes = 0
    if mn == "s_nop":
        i.states = int(ops[0], 0) + 1; i.kind = "nop"
    elif mn.startswith("v_mfma") or mn.startswith("v_smfmac"):
        i.kind = "mfma"
        i.passes = 8 if ("32x32" in mn) else 4
        i.w = regs_of(ops[0]); i.a = regs_of(ops[1]); i.b = regs_of(ops[2])
        if mn.startswith("v_smfmac"):
            i.c = regs_of(ops[0]); i.b += regs_of(ops[3].split()[0])
        else:
            i.c = regs_of(ops[3].split()[0])
        i.r = i.a + i.b + i.c
    elif mn.startswith("v_"):
        i.kind = "valu"
        if mn.startswith("v_cmp"):
            i.w = regs_of(ops[0]) + ([("vcc", 0)] if ops[0] == "vcc" else []); i.r = sum((regs_of(o) for o in ops[1:]), [])
        elif mn.startswith("v_readfirstlane") or mn.startswith("v_readlane"):
            i.w = regs_of(ops[0]); i.r = sum((regs_of(o) for o in ops[1:]), [])
        elif mn.startswith("v_permlane") and "swap" in mn:
            i.w = regs_of(ops[0]) + regs_of(ops[1]); i.r = list(i.w)
        else:
            i.w = regs_of(ops[0]); i.r = sum((regs_of(o) for o in ops[1:]), [])
            if mn.startswith("v_fmac") or mn.startswith("v_accvgpr_write") is None: i.r += i.w
            if any(o.strip() == "vcc" for o in ops[1:]): i.r.append(("vcc", 0))
            if len(ops) > 1 and ops[1] == "vcc": i.w.append(("vcc", 0))
        i.trans = mn.replace("_e32", "").replace("_e64", "") in TRANS
    elif mn.startswith("ds_"):
        i.kind = "ds"
        if "read" in mn or "bpermute" in mn or "swizzle" in mn:
            i.w = regs_of(ops[0]); i.r = sum((regs_of(o) for o in ops[1:]), [])
        else:
            i.r = sum((regs_of(o) for o in ops), [])
    elif mn.startswith("buffer_") or mn.startswith("global_"):
        i.kind = "vmem"
        allr = [regs_of(o) for o in ops]
        if "load" in mn and " lds" not in line:
            i.w = allr[0]; i.r = sum(allr[1:], [])
        elif "atomic" in mn and " sc0" in line and mn.startswith("global"):
            i.w = allr[0]; i.r = sum(allr[1:], [])
        else:
            i.r = sum(allr, [])
        i.wide_store = ("store" in mn) and (mn.endswith("x3") or mn.endswith("x4"))
        i.data = []
        if i.wide_store:
            i.data = allr[0] if mn.startswith("buffer") else allr[1]
    elif mn.startswith("s_"):
        i.kind = "salu"
        if ops and not mn.startswith("s_cmp") and not mn.startswith("s_cbranch") and not mn.startswith("s_waitcnt") and not mn.startswith("s_bitcmp"):
            i.w = regs_of(ops[0]) + ([("m0", 0)] if ops[0] == "m0" else []) + ([("exec", 0)] if ops[0].startswith("exec") else []) + ([("vcc", 0)] if ops[0].startswith("vcc") else [])
            i.r = sum((regs_of(o) for o in ops[1:]), [])
        else:
            i.r = sum((regs_of(o) for o in ops), [])
    return i

def check_hazards(lines, name="", window=24):
    ins = [x for x in (parse(l) for l in lines) if x is not None]
    msgs = []
    for n, c in enumerate(ins):
        dist = 0
        for k in range(n - 1, max(-1, n - window), -1):
            p = ins[k]
            def need(req, why):
                if dist < req: msgs.append(f"{name}: need {req} states, have {dist}: [{p.text}] -> [{c.text}] ({why})")
            pw = set(p.w); cr = set(c.r); cw = set(c.w)
            if p.kind == "valu":
                vw = {x for x in pw if x[0] in "va" and x[0] != "vcc"}
                vw = {x for x in pw if x[0] in ("v", "a")}
                if c.kind == "mfma" and vw & cr: need(2, "VALU write -> MFMA read")
                if c.kind == "valu" and c.mn.startswith("v_permlane") and vw & cr: need(2, "VALU -> permlane")
                if c.kind == "valu" and (c.mn.startswith("v_readfirstlane") or c.mn.startswith("v_readlane")) and vw & cr: need(1, "VALU -> readlane")
                if p.trans and c.kind == "valu" and not c.trans and vw & cr: need(1, "trans -> VALU")
                if p.trans and c.kind == "mfma" and vw & cr: need(2, "trans -> mfma")
                sw = {x for x in pw if x[0] in ("s", "vcc")}
                if c.kind == "vmem" and sw & cr: need(5, "VALU writes SGPR -> VMEM")
                if c.kind == "valu" and sw & cr: need(2, "VALU writes SGPR/VCC -> VALU read")
                if "dpp" in c.text and vw & cr: need(2, "VALU -> DPP")
            if p.kind == "mfma":
                P = p.passes
                d = pw
                if c.kind == "mfma":
                    ca, cb, cc = set(c.a), set(c.b), set(c.c)
                    if d & (ca | cb): need({4: 8, 8: 12}[P], "MFMA D -> MFMA A/B")
                    if d & cc and not (cc == d and c.passes == P and c.mn == p.mn): need({4: 6, 8: 10}[P], "MFMA D -> MFMA C overlap/different shape")
                    if d & cw and not (cw == d): need({4: 6, 8: 10}[P], "MFMA D -> MFMA D overlap (WAW)")
                elif c.kind in ("valu", "ds", "vmem"):
                    if d & (cr | cw): need({4: 8, 8: 12}[P], "MFMA D -> VALU/DS/VMEM")
                if c.kind == "valu" and set(p.c) & cw: need({4: 3, 8: 7}[P], "MFMA reads C -> VALU write (WAR)")
            if p.kind == "vmem" and getattr(p, "wide_store", False):
                if c.kind == "valu" and set(p.data) & cw: need(2, "wide store data WAR")
                elif set(p.data) & cw: need(1, "wide store data WAR")
            if p.kind == "salu" and ("m0", 0) in pw and c.kind == "vmem" and " lds" in c.text: need(1, "m0 -> lds dma")
            dist += p.states
            if dist > 20: break
    return msgs
```

```python
from common import *

V_XO, V_T3, V_KTW, V_TR, V_L4 = 2, 3, 4, 5, 6
V_QW = 7
V_QR = 8
V_ONES = 12
V_BIAS = 16
V_XF = 24
V_QA = 48
V_QF = 64
V_KX = 80
V_F = 112
V_VX = 128
V_VM = 144
V_SM = 152
V_SX = 156
V_PX = 164
V_PM = 168
V_O = 172
V_L = 188
V_TMP = 192
V_KD = 208
SRD_X = 20
S_SEG, S_ROW, S_LB, S_T, S_EH, S_SPIN = 24, 25, 26, 27, 34, 35
S_KVO, S_KMO, S_VMO, S_OO = 40, 41, 42, 43
S_LO, S_HI = 44, 45
S_FAIL = 19
L_X0, L_X1 = 0, 36864
L_QF = 73728
L_KT = L_QF + 8192
QS = f32bits(QSCALE)
SPIN_MAX = 2000000

def qmap(et, cc): return ("a", (et*18 + cc)*4)
def qreg(et, cc): k, b = qmap(et, cc); return f"a[{b}:{b+3}]"
def mf32(d, a, b, c): return f"v_mfma_f32_16x16x32_bf16 {vr(d,4)}, {a}, {b}, {c}"
def mf16(d, a, b, c): return f"v_mfma_f32_16x16x16_bf16 {vr(d,4)}, {vr(a,2)}, {vr(b,2)}, {c}"

def a_station(A, s_par=None, nrep=1, wait_chain=True, flag=True, prof=False):
    def stamp(i):
        if prof: A(f"s_memtime s[60:61]\ns_waitcnt lgkmcnt(0)\ns_sub_u32 s62, s60, s63\ns_add_u32 s{70+i}, s{70+i}, s62\ns_mov_b32 s63, s60")
    ws = f"s[{SRD_WS}:{SRD_WS+3}]"
    load_head_slice(A, KA['A_Wq'], qmap, 0)
    make_srd(A, SRD_X, KA['A_x'], None, 2048*1152)
    A(f"""
    v_bfe_u32 v24, v{V_L16}, 4, 4            ; n
    v_lshrrev_b32 v25, 8, v{V_L16}           ; g
    v_mul_u32_u24 v{V_XO}, 1152, v24
    v_lshl_add_u32 v{V_XO}, v25, 4, v{V_XO}
    v_lshrrev_b32 v{V_L4}, 2, v{V_L16}       ; lane*4
    v_lshrrev_b32 v26, 2, v24
    v_xor_b32 v26, v26, v25
    v_lshlrev_b32 v27, 5, v24
    v_lshl_add_u32 v27, v26, 3, v27
    s_lshl_b32 s28, s{S_W}, 10
    s_add_u32 s28, s28, {L_KT}
    v_add_u32 v{V_KTW}, s28, v27
    v_lshrrev_b32 v26, 2, v24
    v_lshl_add_u32 v26, v25, 2, v26
    v_lshlrev_b32 v26, 5, v26
    v_and_b32 v27, 3, v24
    v_xor_b32 v27, v27, v25
    v_lshl_add_u32 v26, v27, 3, v26
    v_add_u32 v{V_TR}, {L_KT}, v26
    s_lshl_b32 s28, s{S_W}, 10
    s_add_u32 s28, s28, {L_QF}
    v_add_u32 v{V_QW}, s28, v{V_L16}
    s_and_b32 s28, s{S_W}, 1
    s_lshl_b32 s28, s28, 12
    s_add_u32 s28, s28, {L_QF}
    v_add_u32 v{V_QR}, s28, v{V_L16}
    s_lshr_b32 s{S_EH}, s{S_W}, 1
    s_and_b32 s28, s{S_W}, 1
    s_lshl_b32 s28, s28, 4
    v_add_u32 v26, s28, v24                  ; query
    v_lshlrev_b32 v27, 2, v25                ; 4g
    v_mov_b32 v28, 0xf149f2ca                ; -1e30
    """)
    for tau in range(2):
        for r in range(4):
            A(f"v_add_u32 v29, {16*tau + r}, v27\nv_cmp_le_u32 vcc, v29, v26\ns_nop 1\nv_cndmask_b32 v{V_BIAS + 4*tau + r}, v28, 0, vcc" if False else
              f"v_add_u32 v29, {16*tau + r}, v27\nv_cmp_gt_u32 vcc, v29, v26\ns_nop 1\nv_cndmask_b32 v{V_BIAS + 4*tau + r}, 0, v28, vcc")
    for i in range(4): A(f"v_mov_b32 v{V_ONES+i}, 0x3f803f80")
    for j in range(4): A(f"v_mov_b32 v{V_VM+2*j+1}, 0")
    A(f"v_mov_b32 v{V_PM+1}, 0")
    A(f"""
    v_mov_b32 v28, 0
    v_mov_b32 v29, 0
    v_mov_b32 v30, 0
    v_mov_b32 v31, 0
    s_lshl_b32 s28, s{S_W}, 10
    s_add_u32 s28, s28, {L_KT}
    v_add_u32 v27, s28, v{V_L16}
    ds_write_b128 v27, v[28:31]
    s_mov_b32 s{S_LO}, 0x21800000
    s_mov_b32 s{S_HI}, 0x5f800000
    s_mov_b32 s{S_SEG}, {('s%d' % s_par) if s_par is not None else 0}
    s_mul_i32 s{S_ROW}, s{S_SEG}, {32*1152}
    s_mov_b32 s{S_LB}, {L_X0}
    s_mov_b32 s{S_FAIL}, 0
    """)
    x_dma(A, SRD_X, V_XO, S_ROW, S_LB)
    LOOP = A.uid("AL"); NODMA = A.uid("AN"); END = A.uid("AE"); FAIL = A.uid("AF"); SLOW = A.uid("AS"); BACK = A.uid("AB")
    if prof:
        for i in range(8): A(f"s_mov_b32 s{70+i}, 0")
        A("s_memtime s[60:61]\ns_waitcnt lgkmcnt(0)\ns_mov_b32 s63, s60")
    A.label(LOOP)
    A("s_waitcnt vmcnt(0) lgkmcnt(0)\ns_barrier")
    stamp(0)
    A(f"""
    s_add_u32 s28, s{S_SEG}, {nrep}
    s_cmp_lt_u32 s28, 64
    s_cbranch_scc0 {NODMA}
    s_mul_i32 s{S_ROW}, s28, {32*1152}
    s_xor_b32 s36, s{S_LB}, {L_X1}
    """)
    x_dma(A, SRD_X, V_XO, S_ROW, 36)
    A.label(NODMA)
    A(f"""
    s_lshl_b32 s28, s{S_SEG}, 5
    s_add_u32 s28, s28, s{S_H}               ; s*32 + h
    s_lshl_b32 s{S_KVO}, s28, 14
    s_add_u32 s{S_KVO}, s{S_KVO}, {WS_KV}
    s_lshl_b32 s29, s28, 11
    s_add_u32 s{S_KMO}, s29, {WS_KM}
    s_add_u32 s{S_VMO}, s29, {WS_VM}
    v_add_u32 v{V_T3}, s{S_LB}, v{V_L16}
    """)
    for tau in range(2):
        A(f"s_add_u32 s29, s{S_KVO}, {tau*4096}")
        for c in range(4):
            A(f"buffer_load_dwordx4 {vr(V_KX + (tau*4+c)*4, 4)}, v{V_L16}, {ws}, s29 offen offset:{c*1024}")
    A(f"s_lshl_b32 s29, s{S_EH}, 12\ns_add_u32 s29, s29, s{S_KVO}\ns_add_u32 s29, s29, 8192")
    for j in range(4):
        A(f"buffer_load_dwordx4 {vr(V_VX + 4*j, 4)}, v{V_L16}, {ws}, s29 offen offset:{j*1024}")
    stamp(1)
    def xr(cc):
        st = cc % 3
        for tt in range(2):
            A(f"ds_read_b128 {vr(V_XF + (st*2+tt)*4, 4)}, v{V_T3} offset:{(tt*18+cc)*1024}")
    xr(0); xr(1)
    for cc in range(18):
        if cc + 2 < 18: xr(cc + 2)
        A(f"s_waitcnt lgkmcnt({2 * min(2, 17 - cc)})")
        st = cc % 3
        for et in range(2):
            for tt in range(2):
                d = V_QA + (et*2+tt)*4
                A(mf32(d, qreg(et,cc), vr(V_XF+(st*2+tt)*4,4), '0' if cc==0 else vr(d,4)))
    A(f"s_mov_b32 s29, {QS:#x}\ns_nop 6")
    for tt in range(2):
        t = V_TMP + 4*tt
        for et in range(2):
            d = V_QA + (et*2+tt)*4
            for r in range(4): A(f"v_mul_f32 v{d+r}, s29, v{d+r}")
            A(f"v_cvt_pk_bf16_f32 v{t+2*et}, v{d}, v{d+1}\nv_cvt_pk_bf16_f32 v{t+2*et+1}, v{d+2}, v{d+3}")
        A(f"ds_write_b128 v{V_QW}, {vr(t,4)} offset:{tt*4096}")
    stamp(2)
    if wait_chain:
        W = A.uid("AW"); OK = A.uid("AK")
        A(f"""
        s_lshl_b32 s28, s{S_H}, 7
        s_add_u32 s28, s28, {WS_FLAGS + F_C}
        s_mov_b32 s{S_SPIN}, {SPIN_MAX}
        v_mov_b32 v{V_TMP+8}, 0
        """)
        A.label(W)
        A(f"""
        buffer_load_dword v{V_TMP+9}, v{V_TMP+8}, {ws}, s28 offen sc1
        s_waitcnt vmcnt(0)
        v_readfirstlane_b32 s29, v{V_TMP+9}
        s_sub_u32 s29, s29, s{S_NONCE}
        s_sub_u32 s29, s29, 1
        s_cmp_lt_u32 s29, 64
        s_cbranch_scc0 {W}n
        s_cmp_ge_u32 s29, s{S_SEG}
        s_cbranch_scc1 {OK}
        {W}n:
        s_sub_u32 s{S_SPIN}, s{S_SPIN}, 1
        s_cbranch_scc1 {FAIL}
        s_sleep 4
        s_branch {W}
        """)
        A.label(OK)
    A(f"s_lshl_b32 s29, s{S_W}, 9\ns_add_u32 s29, s29, s{S_KMO}")
    A(f"buffer_load_dword v{V_KD}, v{V_L4}, {ws}, s29 offen sc1")
    A(f"buffer_load_dword v{V_KD+1}, v{V_L4}, {ws}, s29 offen offset:256 sc1")
    A(f"s_lshl_b32 s29, s{S_EH}, 10\ns_add_u32 s29, s29, s{S_VMO}")
    for j in range(4):
        A(f"buffer_load_dword v{V_VM+2*j}, v{V_L4}, {ws}, s29 offen offset:{j*256} sc1")
    A("s_waitcnt vmcnt(4)")
    stamp(3)
    A(f"ds_write2_b32 v{V_KTW}, v{V_KD}, v{V_KD+1} offset0:0 offset1:128")
    A("s_waitcnt lgkmcnt(0)\ns_barrier")
    for c in range(4):
        A(f"ds_read_b128 {vr(V_QF+4*c,4)}, v{V_QR} offset:{c*1024}")
    for c in range(4):
        for Hh in range(2):
            A(f"ds_read_b64_tr_b16 {vr(V_F+4*c+2*Hh,2)}, v{V_TR} offset:{c*1024 + Hh*512}")
    A("s_waitcnt vmcnt(0) lgkmcnt(0)")
    stamp(4)
    def scores():
        for c in range(4):
            A(mf32(V_SM, vr(V_F+4*c,4), vr(V_QF+4*c,4), '0' if c==0 else vr(V_SM,4)))
        for tau in range(2):
            for c in range(4):
                d = V_SX + 4*tau
                A(mf32(d, vr(V_KX+(tau*4+c)*4,4), vr(V_QF+4*c,4), vr(V_BIAS+4*tau,4) if c==0 else vr(d,4)))
        A("s_nop 7\ns_nop 0")
    def tail():
        A(f"v_cvt_pk_bf16_f32 v{V_PM}, v{V_SM}, v{V_SM+1}")
        A(f"v_cvt_pk_bf16_f32 v{V_PX}, v{V_SX}, v{V_SX+1}\nv_cvt_pk_bf16_f32 v{V_PX+1}, v{V_SX+2}, v{V_SX+3}")
        A(f"v_cvt_pk_bf16_f32 v{V_PX+2}, v{V_SX+4}, v{V_SX+5}\nv_cvt_pk_bf16_f32 v{V_PX+3}, v{V_SX+6}, v{V_SX+7}\ns_nop 1")
        A(mf32(V_L, vr(V_ONES,4), vr(V_PX,4), '0'))
        for j in range(4): A(mf32(V_O+4*j, vr(V_VX+4*j,4), vr(V_PX,4), '0'))
        A("s_nop 3")
        A(mf16(V_L, V_ONES, V_PM, vr(V_L,4)))
        for j in range(4): A(mf16(V_O+4*j, V_VM+2*j, V_PM, vr(V_O+4*j,4)))
        A("s_nop 7")
    vals = [V_SM, V_SM+1] + list(range(V_SX, V_SX+8))
    scores()
    for r in vals: A(f"v_exp_f32 v{r}, v{r}")
    A("s_nop 0")
    tail()
    A(f"v_mov_b32 v{V_TMP}, s{S_HI}\nv_med3_f32 v{V_TMP}, v{V_L}, s{S_LO}, v{V_TMP}\nv_cmp_neq_f32 vcc, v{V_TMP}, v{V_L}")
    A(f"s_cbranch_vccnz {SLOW}")
    A.label(BACK)
    A(f"v_rcp_f32 v{V_TMP}, v{V_L}\ns_nop 0")
    A(f"""
    s_lshl_b32 s28, s{S_SEG}, 1
    s_and_b32 s29, s{S_W}, 1
    s_add_u32 s28, s28, s29                  ; s*2 + tt
    s_lshl_b32 s28, s28, 7
    s_lshl_b32 s29, s{S_H}, 2
    s_add_u32 s28, s28, s29
    s_lshl_b32 s29, s{S_EH}, 1
    s_add_u32 s28, s28, s29                  ; + h*4 + 2eh
    s_lshl_b32 s28, s28, 10
    s_add_u32 s{S_OO}, s28, {WS_O}
    """)
    for c2 in range(2):
        t = V_TMP + 4 + 4*c2
        for half in range(2):
            o = V_O + 4*(2*c2+half)
            for r in range(4): A(f"v_mul_f32 v{o+r}, v{o+r}, v{V_TMP}")
            A(f"v_cvt_pk_bf16_f32 v{t+2*half}, v{o}, v{o+1}\nv_cvt_pk_bf16_f32 v{t+2*half+1}, v{o+2}, v{o+3}")
        A(f"buffer_store_dwordx4 {vr(t,4)}, v{V_L16}, {ws}, s{S_OO} offen offset:{c2*1024} sc1")
    stamp(5)
    A("s_waitcnt vmcnt(0)\ns_barrier")
    stamp(6)
    if flag:
        NF = A.uid("ANF")
        A(f"""
        s_cmp_eq_u32 s{S_W}, 0
        s_cbranch_scc0 {NF}
        s_lshl_b32 s28, s{S_SEG}, 7
        s_lshl_b32 s29, s{S_H}, 2
        s_add_u32 s28, s28, s29
        s_add_u32 s28, s28, {WS_FLAGS + F_O}
        v_mov_b32 v{V_TMP}, s{S_NONCE}
        v_mov_b32 v{V_TMP+1}, 0
        s_mov_b64 exec, 1
        buffer_store_dword v{V_TMP}, v{V_TMP+1}, {ws}, s28 offen sc1
        s_mov_b64 exec, -1
        """)
        A.label(NF)
    A(f"""
    s_xor_b32 s{S_LB}, s{S_LB}, {L_X1}
    s_add_u32 s{S_SEG}, s{S_SEG}, {nrep}
    s_cmp_lt_u32 s{S_SEG}, 64
    s_cbranch_scc1 {LOOP}
    s_branch {END}
    """)
    A.label(SLOW)
    A("s_nop 7")
    scores()
    m = V_TMP; t = V_TMP + 1
    A(f"v_max3_f32 v{m}, v{vals[0]}, v{vals[1]}, v{vals[2]}")
    for i in range(3, 9, 2): A(f"v_max3_f32 v{m}, v{vals[i]}, v{vals[i+1]}, v{m}")
    A(f"v_max_f32 v{m}, v{vals[9]}, v{m}")
    A(f"v_mov_b32 v{t}, v{m}\ns_nop 1\nv_permlane32_swap_b32 v{t}, v{m}\ns_nop 1\nv_max_f32 v{m}, v{m}, v{t}")
    A(f"v_mov_b32 v{t}, v{m}\ns_nop 1\nv_permlane16_swap_b32 v{t}, v{m}\ns_nop 1\nv_max_f32 v{m}, v{m}, v{t}")
    for r in vals: A(f"v_sub_f32 v{r}, v{r}, v{m}")
    for r in vals: A(f"v_exp_f32 v{r}, v{r}")
    A("s_nop 0")
    tail()
    A(f"s_branch {BACK}")
    A.label(FAIL)
    A(f"s_mov_b32 s{S_FAIL}, 1")
    A.label(END)
```

```python
from common import *
SPIN_MAX = 2000000
BSC = (18 ** -0.5) * 1.4426950408889634
def mf3232(d, a, b, c): return f"v_mfma_f32_32x32x16_bf16 {d}, {a}, {b}, {c}"

def b1_station(A, s_idx):
    ws = f"s[{SRD_WS}:{SRD_WS+3}]"
    L_WK, L_WV = 0, 36864
    for mat, (ka, base) in enumerate(((KA['B_wk'], L_WK), (KA['B_wv'], L_WV))):
        make_srd(A, SRD_A, ka, None, 576*36)
        A(f"""
        s_lshl_b32 s28, s{S_W}, 6
        v_lshrrev_b32 v2, 4, v{V_L16}
        v_add_u32 v2, s28, v2                 ; t
        v_and_b32 v3, 15, v2                  ; dw
        v_lshrrev_b32 v4, 4, v2               ; row0 = t>>4 (0..15)
        v_mul_u32_u24 v5, 36, v4
        v_lshl_add_u32 v5, v3, 2, v5
        v_cmp_lt_u32 vcc, 8, v3
        v_mov_b32 v6, 0x7ffffff0
        s_nop 0
        v_cndmask_b32 v5, v5, v6, vcc
        v_lshlrev_b32 v6, 2, v2
        v_add_u32 v6, {base}, v6
        """)
        for it in range(0, 36, 6):
            for j in range(6):
                A(f"s_mov_b32 s28, {(it+j)*16*36}\nbuffer_load_dword v{8+j}, v5, s[{SRD_A}:{SRD_A+3}], s28 offen")
            A("s_waitcnt vmcnt(0)")
            for j in range(6):
                A(f"ds_write_b32 v6, v{8+j} offset:{(it+j)*1024}")
    A("s_waitcnt lgkmcnt(0)\ns_barrier")
    def wm(mat, c):
        idx = mat*36 + c
        return ("a", idx*4) if idx < 64 else ("v", 224 + (idx-64)*4)
    A(f"""
    v_lshrrev_b32 v2, 8, v{V_L16}            ; grp
    v_bfe_u32 v3, v{V_L16}, 6, 2             ; r
    v_bfe_u32 v4, v{V_L16}, 4, 2             ; cq
    v_lshrrev_b32 v5, 1, v2                  ; hh
    v_lshl_add_u32 v5, v5, 3, v3             ; 8hh + r
    v_lshlrev_b32 v5, 6, v5
    v_and_b32 v6, 1, v2
    v_lshl_add_u32 v5, v6, 5, v5
    v_lshl_add_u32 v5, v4, 3, v5
    """)
    for mat, base in ((0, L_WK), (1, L_WV)):
        if mat == 1: A(f"v_add_u32 v5, {L_WV}, v5")
        for c in range(36):
            kind, b = wm(mat, c)
            for rr in range(2):
                A(f"ds_read_b64_tr_b16 {kind}[{b+2*rr}:{b+2*rr+1}], v5 offset:{c*1024 + rr*256}")
            if c % 4 == 3: A("s_waitcnt lgkmcnt(0)")
    A("s_waitcnt lgkmcnt(0)")
    make_srd(A, SRD_A, KA['B_x'], None, 2048*1152)
    A(f"""
    v_bfe_u32 v2, v{V_L16}, 4, 5
    v_mul_u32_u24 v2, 1152, v2
    v_lshrrev_b32 v3, 9, v{V_L16}
    v_lshl_add_u32 v2, v3, 4, v2
    v_bfe_u32 v7, v{V_L16}, 4, 5             ; l&31
    s_lshl_b32 s30, s{s_idx}, 3
    s_lshl_b32 s31, s{S_W}, 1
    s_add_u32 s30, s30, s31
    """)
    XF = 16
    DK, DV = 160, 176
    for t in range(2):
        A(f"s_add_u32 s31, s30, {t}\ns_mul_i32 s33, s31, {32*1152}")
        for c in range(36):
            A(f"buffer_load_dwordx4 {vr(XF+4*c,4)}, v2, s[{SRD_A}:{SRD_A+3}], s33 offen offset:{c*32}")
        A("s_waitcnt vmcnt(0)")
        for c in range(36):
            kk, kb = wm(0, c); vk, vb = wm(1, c)
            A(mf3232(vr(DK,16), f"{kk}[{kb}:{kb+3}]", vr(XF+4*c,4), "0" if c == 0 else vr(DK,16)))
            A(mf3232(vr(DV,16), vr(XF+4*c,4), f"{vk}[{vb}:{vb+3}]", "0" if c == 0 else vr(DV,16)))
        A("s_nop 15")
        T = 192
        A(f"s_mov_b32 s34, {f32bits(BSC):#x}")
        for i in range(16): A(f"v_mul_f32 v{DK+i}, s34, v{DK+i}")
        for i in range(8): A(f"v_cvt_pk_bf16_f32 v{T+i}, v{DK+2*i}, v{DK+2*i+1}")
        A(f"v_mov_b32 v8, 0x3f80\ns_mov_b32 exec_hi, 0\nv_mov_b32 v{T+5}, v8\ns_mov_b32 exec_hi, -1")
        A(f"s_lshl_b32 s33, s31, 11\ns_add_u32 s33, s33, {WS_BK}")
        A(f"buffer_store_dwordx4 {vr(T,4)}, v{V_L16}, {ws}, s33 offen sc1")
        A(f"buffer_store_dwordx4 {vr(T+4,4)}, v{V_L16}, {ws}, s33 offen offset:1024 sc1")
        for i in range(8): A(f"v_cvt_pk_bf16_f32 v{T+8+i}, v{DV+2*i}, v{DV+2*i+1}")
        A(f"v_cmp_eq_u32 vcc, 18, v7\nv_mov_b32 v8, 0x3f803f80\ns_nop 0")
        for i in range(8): A(f"v_cndmask_b32 v{T+8+i}, v{T+8+i}, v8, vcc")
        A(f"s_lshl_b32 s33, s31, 11\ns_add_u32 s33, s33, {WS_BV}")
        A(f"buffer_store_dwordx4 {vr(T+8,4)}, v{V_L16}, {ws}, s33 offen sc1")
        A(f"buffer_store_dwordx4 {vr(T+12,4)}, v{V_L16}, {ws}, s33 offen offset:1024 sc1")
        A("s_nop 1")
    END = A.uid("B1E")
    A(f"""
    s_waitcnt vmcnt(0)
    s_barrier
    s_cmp_eq_u32 s{S_W}, 0
    s_cbranch_scc0 {END}
    s_lshl_b32 s28, s{s_idx}, 2
    s_add_u32 s28, s28, {WS_FLAGS + F_B}
    v_mov_b32 v3, s{S_NONCE}
    v_mov_b32 v4, 0
    s_mov_b64 exec, 1
    buffer_store_dword v3, v4, {ws}, s28 offen sc1
    s_mov_b64 exec, -1
    """)
    A.label(END)

L_QI = 110592
L_OB = 143360
L_PART = 0
V_XF = 16
V_PA = 88
V_WF = 124
V_S0, V_S1 = 16, 32
V_P = 48
V_O = 56
V_Q = 72
V_T = 80
S_BLK, S_FAILB, S_SPINB = 24, 19, 26

def proj16(A, kaoff, nbytes, frag_loader, epilogue):
    make_srd(A, SRD_A, kaoff, None, nbytes)
    frag_loader()
    A(f"""
    v_lshrrev_b32 v2, 8, v{V_L16}
    v_bfe_u32 v3, v{V_L16}, 6, 2
    v_bfe_u32 v4, v{V_L16}, 4, 2
    v_lshl_add_u32 v2, v2, 3, v3
    v_mul_u32_u24 v2, 1152, v2
    v_lshl_add_u32 v2, v4, 3, v2
    s_mul_i32 s28, s{S_W}, 288
    v_add_u32 v2, s28, v2
    v_add_u32 v3, 36864, v2
    v_add_u32 v4, 73728, v2
    """)
    def dma(cc):
        slot = cc % 3
        A(f"s_mul_i32 s28, s{S_W}, 9216\ns_add_u32 s29, s28, {cc*36864}\ns_add_u32 s28, s28, {slot*36864}")
        for i in range(9):
            A(f"s_mov_b32 m0, s28\ns_add_u32 s28, s28, 1024\nbuffer_load_dwordx4 v{V_L16}, s[{SRD_A}:{SRD_A+3}], s29 offen lds\ns_add_u32 s29, s29, 1024")
    dma(0); dma(1)
    for cc in range(18):
        if cc + 2 < 18:
            A(f"s_waitcnt vmcnt(9)\ns_barrier")
            dma(cc + 2)
        elif cc + 1 < 18:
            A("s_waitcnt vmcnt(9)\ns_barrier")
        else:
            A("s_waitcnt vmcnt(0)\ns_barrier")
        ad = [2, 3, 4][cc % 3]
        for t in range(9):
            for rr in range(2):
                A(f"ds_read_b64_tr_b16 {vr(V_WF+4*t+2*rr,2)}, v{ad} offset:{rr*4*1152 + t*32}")
            if t == 4: A("s_waitcnt lgkmcnt(0)" if False else "")
        for t in range(9):
            later = 2*(8 - t)
            A(f"s_waitcnt lgkmcnt({min(later, 15)})")
            d = V_PA + 4*t
            A(f"v_mfma_f32_16x16x32_bf16 {vr(d,4)}, {vr(V_WF+4*t,4)}, {vr(V_XF+4*cc,4)}, {'0' if cc==0 else vr(d,4)}")
    A("s_nop 7")
    epilogue()

def b2_station(A, s_blk, wait=True):
    ws = f"s[{SRD_WS}:{SRD_WS+3}]"
    A(f"s_mov_b32 s{S_BLK}, s{s_blk}\ns_mov_b32 s{S_FAILB}, 0")
    FAIL = A.uid("BF"); END = A.uid("BE")
    A(f"""
    v_mov_b32 v8, 0
    v_mov_b32 v9, 0
    v_mov_b32 v10, 0
    v_mov_b32 v11, 0
    s_lshl_b32 s28, s{S_W}, 13
    s_add_u32 s28, s28, {L_QI}
    v_add_u32 v2, s28, v{V_L16}
    """)
    for i in range(8): A(f"ds_write_b128 v2, v[8:11] offset:{i*1024}")
    def load_x():
        make_srd(A, 20, KA['B_x'], None, 2048*1152)
        A(f"""
        v_bfe_u32 v5, v{V_L16}, 4, 4
        v_mul_u32_u24 v5, 1152, v5
        v_lshrrev_b32 v6, 8, v{V_L16}
        v_lshl_add_u32 v5, v6, 4, v5
        s_mul_i32 s30, s{S_BLK}, {16*1152}
        """)
        for cc in range(18):
            A(f"buffer_load_dwordx4 {vr(V_XF+4*cc,4)}, v5, s[20:23], s30 offen offset:{cc*64}")
    def q_epi():
        A(f"""
        v_bfe_u32 v5, v{V_L16}, 4, 4
        v_lshlrev_b32 v5, 11, v5
        v_add_u32 v5, {L_QI}, v5
        v_lshrrev_b32 v6, 8, v{V_L16}
        v_lshlrev_b32 v6, 2, v6                  ; 4g
        s_mul_i32 s28, s{S_W}, 144
        v_add_u32 v6, s28, v6                    ; c0
        s_mov_b32 s29, 3641
        """)
        for t in range(9):
            d = V_PA + 4*t
            A(f"v_cvt_pk_bf16_f32 v{d}, v{d}, v{d+1}\nv_cvt_pk_bf16_f32 v{d+1}, v{d+2}, v{d+3}")
            for r in range(4):
                A(f"""
                v_add_u32 v7, {16*t + r}, v6
                v_mul_u32_u24 v8, s29, v7
                v_lshrrev_b32 v8, 16, v8
                v_mul_u32_u24 v8, 28, v8
                v_lshl_add_u32 v8, v7, 1, v8
                v_add_u32 v8, v8, v5
                {'ds_write_b16' if r % 2 == 0 else 'ds_write_b16_d16_hi'} v8, v{d + r//2}
                """)
        A("s_waitcnt lgkmcnt(0)\ns_barrier")
    A("s_waitcnt lgkmcnt(0)\ns_barrier")
    proj16(A, KA['B_wq'], 576*1152, load_x, q_epi)
    if wait:
        W = A.uid("BW")
        A(f"""
        s_mov_b32 s28, {WS_FLAGS + F_B}
        s_mov_b32 s{S_SPINB}, {SPIN_MAX}
        v_lshrrev_b32 v2, 2, v{V_L16}
        v_and_b32 v2, 31, v2
        """)
        A.label(W)
        A(f"""
        buffer_load_dword v3, v2, {ws}, s28 offen sc1
        s_waitcnt vmcnt(0)
        v_cmp_ne_u32 vcc, s{S_NONCE}, v3
        s_cbranch_vccz {W}k
        s_sub_u32 s{S_SPINB}, s{S_SPINB}, 1
        s_cbranch_scc1 {FAIL}
        s_sleep 8
        s_branch {W}
        {W}k:
        """)
    A(f"s_lshl_b32 s28, s{S_W}, 15\ns_add_u32 s29, s28, {WS_BV}\ns_add_u32 s28, s28, {WS_BK}")
    for kt in range(16):
        for u in range(2):
            A(f"buffer_load_dwordx4 {ar((kt*4+u)*4,4)}, v{V_L16}, {ws}, s28 offen offset:{u*1024}")
            A(f"buffer_load_dwordx4 {ar((kt*4+2+u)*4,4)}, v{V_L16}, {ws}, s29 offen offset:{u*1024}")
        A("s_add_u32 s28, s28, 2048\ns_add_u32 s29, s29, 2048")
        if kt % 4 == 3: A("s_waitcnt vmcnt(0)")
    def KF(kt, u): return ar((kt*4+u)*4, 4)
    def VF(kt, u): return ar((kt*4+2+u)*4, 4)
    V_QA, V_PW, V_PR, V_OW = 8, 9, 10, 11
    A(f"""
    v_bfe_u32 v2, v{V_L16}, 4, 5             ; n = head
    v_lshrrev_b32 v3, 9, v{V_L16}            ; hh
    v_lshlrev_b32 v{V_QA}, 6, v2
    v_lshl_add_u32 v{V_QA}, v3, 3, v{V_QA}
    v_add_u32 v{V_QA}, {L_QI}, v{V_QA}
    s_mul_i32 s28, s{S_W}, 3072
    v_add_u32 v{V_PW}, s28, v{V_L16}
    s_mul_i32 s28, s{S_W}, 12288
    v_add_u32 v{V_PR}, s28, v{V_L16}
    v_mul_u32_u24 v{V_OW}, 36, v2
    v_lshl_add_u32 v{V_OW}, v3, 3, v{V_OW}
    v_add_u32 v{V_OW}, {L_OB}, v{V_OW}
    s_mov_b32 s40, 0x21800000
    s_mov_b32 s41, 0x5f800000
    s_mov_b32 s42, 0                          ; group
    """)
    def load_q(row_sgpr_off):
        A(f"v_add_u32 v12, s{row_sgpr_off}, v{V_QA}")
        A(f"ds_read2_b64 {vr(V_Q,4)}, v12 offset0:0 offset1:2\nds_read2_b64 {vr(V_Q+4,4)}, v12 offset0:4 offset1:6\ns_waitcnt lgkmcnt(0)")
    def s_tile(kt, S):
        return [mf3232(vr(S,16), KF(kt,0), vr(V_Q,4), "0"), mf3232(vr(S,16), KF(kt,1), vr(V_Q+4,4), vr(S,16))]
    def row_pass():
        S = [V_S0, V_S1]
        for x in s_tile(0, S[0]): A(x)
        A("s_nop 7")
        for kt in range(16):
            cur = S[kt % 2]
            if kt + 1 < 16:
                for x in s_tile(kt + 1, S[(kt+1) % 2]): A(x)
            else:
                A("s_nop 3")
            if kt == 0: A("s_nop 3")
            for i in range(16): A(f"v_exp_f32 v{cur+i}, v{cur+i}")
            for i in range(8): A(f"v_cvt_pk_bf16_f32 v{V_P+i}, v{cur+2*i}, v{cur+2*i+1}")
            A("s_nop 1")
            A(mf3232(vr(V_O,16), VF(kt,0), vr(V_P,4), "0" if kt == 0 else vr(V_O,16)))
            A(mf3232(vr(V_O,16), VF(kt,1), vr(V_P+4,4), vr(V_O,16)))
        A("s_nop 15")
    def group(slow):
        JL = A.uid("BJ")
        A(f"s_mov_b32 s44, 0\nv_mov_b32 v{V_PJ}, v{V_PW}")
        A.label(JL)
        A(f"s_lshl_b32 s28, s42, 2\ns_add_u32 s28, s28, s44\ns_lshl_b32 s43, s28, 11")
        load_q(43)
        if slow:
            A(f"v_bfe_u32 v13, v{V_L16}, 4, 5\nv_lshlrev_b32 v13, 2, v13\ns_lshl_b32 s28, s44, 7\nv_add_u32 v13, s28, v13\nds_read_b32 v14, v13 offset:{L_MAX}\ns_waitcnt lgkmcnt(0)")
            A(f"v_sub_f32 v14, 0, v14\nv_cvt_pk_bf16_f32 v14, v14, v{V_ZERO}\ns_mov_b32 exec_hi, 0\nv_mov_b32 v{V_Q+5}, v14\ns_mov_b32 exec_hi, -1\ns_nop 1")
        row_pass()
        for x in range(3): A(f"ds_write_b128 v{V_PJ}, {vr(V_O+4*x,4)} offset:{x*1024}")
        A(f"v_add_u32 v{V_PJ}, 12288, v{V_PJ}\ns_add_u32 s44, s44, 1\ns_cmp_lt_u32 s44, 4\ns_cbranch_scc1 {JL}")
        A("s_waitcnt lgkmcnt(0)\ns_barrier")
        for x in range(4):
            for y in range(3): A(f"ds_read_b128 {vr(V_T + (x*3+y)*4, 4)}, v{V_PR} offset:{x*3072 + y*1024}")
        A("s_waitcnt lgkmcnt(0)")
        for i in range(12):
            A(f"v_add_f32 v{V_T+i}, v{V_T+i}, v{V_T+12+i}\nv_add_f32 v{V_T+24+i}, v{V_T+24+i}, v{V_T+36+i}\nv_add_f32 v{V_T+i}, v{V_T+i}, v{V_T+24+i}")
        A(f"v_mov_b32 v13, v{V_T+10}\nv_mov_b32 v14, v{V_T+10}\ns_nop 1\nv_permlane32_swap_b32 v13, v14\ns_nop 1")
    V_ZERO = 15
    V_PJ = 3
    L_MAX = 49152
    L_BAD = 49152 + 512
    A(f"v_mov_b32 v{V_ZERO}, 0")
    GL = A.uid("BG"); SLOW = A.uid("BS"); FIN = A.uid("BN")
    A.label(GL)
    group(False)
    A(f"v_mov_b32 v14, s41\nv_med3_f32 v14, v13, s40, v14\nv_cmp_neq_f32 vcc, v14, v13")
    A(f"""
    s_cmp_lg_u64 vcc, 0
    s_cselect_b32 s28, 1, 0
    v_mov_b32 v14, s28
    s_lshl_b32 s29, s{S_W}, 2
    v_mov_b32 v12, s29
    ds_write_b32 v12, v14 offset:{L_BAD}
    s_waitcnt lgkmcnt(0)
    s_barrier
    v_mov_b32 v12, 0
    ds_read_b128 v[4:7], v12 offset:{L_BAD}
    s_waitcnt lgkmcnt(0)
    v_or3_b32 v4, v4, v5, v6
    v_or_b32 v4, v4, v7
    s_nop 0
    v_readfirstlane_b32 s28, v4
    s_cmp_lg_u32 s28, 0
    s_cbranch_scc1 {SLOW}
    """)
    A.label(FIN)
    A(f"v_rcp_f32 v13, v13\ns_nop 0")
    for i in range(10): A(f"v_mul_f32 v{V_T+i}, v{V_T+i}, v13")
    for i in range(5): A(f"v_cvt_pk_bf16_f32 v{V_T+i}, v{V_T+2*i}, v{V_T+2*i+1}")
    A(f"""
    s_lshl_b32 s28, s42, 2
    s_add_u32 s28, s28, s{S_W}
    s_mul_i32 s28, s28, 1152
    v_add_u32 v12, s28, v{V_OW}
    ds_write2_b32 v12, v{V_T}, v{V_T+1} offset0:0 offset1:1
    ds_write2_b32 v12, v{V_T+2}, v{V_T+3} offset0:4 offset1:5
    s_mov_b32 exec_hi, 0
    ds_write_b32 v12, v{V_T+4} offset:32
    s_mov_b32 exec_hi, -1
    s_waitcnt lgkmcnt(0)
    s_barrier
    s_add_u32 s42, s42, 1
    s_cmp_lt_u32 s42, 4
    s_cbranch_scc1 {GL}
    """)
    def load_o():
        A(f"""
        v_bfe_u32 v5, v{V_L16}, 4, 4
        v_mul_u32_u24 v5, 1152, v5
        v_lshrrev_b32 v6, 8, v{V_L16}
        v_lshl_add_u32 v5, v6, 4, v5
        v_add_u32 v5, {L_OB}, v5
        """)
        for cc in range(18):
            A(f"ds_read_b128 {vr(V_XF+4*cc,4)}, v5 offset:{cc*64}")
            if cc % 8 == 7: A("s_waitcnt lgkmcnt(0)")
        A("s_waitcnt lgkmcnt(0)")
    def o_epi():
        make_srd(A, 20, KA['out'], None, 2048*2304)
        A(f"""
        v_bfe_u32 v5, v{V_L16}, 4, 4
        v_mul_u32_u24 v5, 2304, v5
        v_lshrrev_b32 v6, 8, v{V_L16}
        v_lshl_add_u32 v5, v6, 3, v5
        s_mul_i32 s28, s{S_BLK}, {16*2304}
        s_mul_i32 s29, s{S_W}, 288
        s_add_u32 s28, s28, s29
        s_add_u32 s28, s28, 1152
        """)
        for t in range(9):
            d = V_PA + 4*t
            A(f"v_cvt_pk_bf16_f32 v{d}, v{d}, v{d+1}\nv_cvt_pk_bf16_f32 v{d+1}, v{d+2}, v{d+3}")
            A(f"buffer_store_dwordx2 {vr(d,2)}, v5, s[20:23], s28 offen offset:{t*32}")
    proj16(A, KA['B_wo'], 576*1152, load_o, o_epi)
    A(f"s_branch {END}")
    A.label(SLOW)
    ML = A.uid("BM")
    A("s_mov_b32 s44, 0")
    A.label(ML)
    A(f"s_lshl_b32 s28, s42, 2\ns_add_u32 s28, s28, s44\ns_lshl_b32 s43, s28, 11")
    load_q(43)
    A(f"v_mov_b32 v13, 0xff800000")
    for kt in range(16):
        for x in s_tile(kt, V_S0): A(x)
        A("s_nop 15")
        for i in range(0, 16, 2): A(f"v_max3_f32 v13, v{V_S0+i}, v{V_S0+i+1}, v13")
    A(f"v_mov_b32 v14, v13\ns_nop 1\nv_permlane32_swap_b32 v13, v14\ns_nop 1\nv_max_f32 v13, v13, v14")
    A(f"v_bfe_u32 v12, v{V_L16}, 4, 5\nv_lshlrev_b32 v12, 2, v12\ns_lshl_b32 s28, s{S_W}, 7\nv_add_u32 v12, s28, v12\ns_lshl_b32 s28, s44, 9\nv_add_u32 v12, s28, v12")
    A(f"ds_write_b32 v12, v13 offset:{L_MAX + 1024}")
    A(f"s_add_u32 s44, s44, 1\ns_cmp_lt_u32 s44, 4\ns_cbranch_scc1 {ML}")
    A("s_waitcnt lgkmcnt(0)\ns_barrier")
    A(f"v_bfe_u32 v12, v{V_L16}, 4, 5\nv_lshlrev_b32 v12, 2, v12\ns_lshl_b32 s28, s{S_W}, 9\nv_add_u32 v13, s28, v12")
    for x in range(4): A(f"ds_read_b32 v{4+x}, v13 offset:{L_MAX + 1024 + x*128}")
    A(f"s_waitcnt lgkmcnt(0)\nv_max3_f32 v4, v4, v5, v6\nv_max_f32 v4, v4, v7\ns_lshl_b32 s28, s{S_W}, 7\nv_add_u32 v12, s28, v12")
    A(f"ds_write_b32 v12, v4 offset:{L_MAX}\ns_waitcnt lgkmcnt(0)\ns_barrier")
    group(True)
    A(f"s_branch {FIN}")
    A.label(FAIL)
    A(f"s_mov_b32 s{S_FAILB}, 1")
    A.label(END)
```

```python
from asmlib import *
from layout import *
import struct

def f32bits(x): return struct.unpack("<I", struct.pack("<f", x))[0]

V_L16, V_IDX, V_QKW, V_TR, V_OW, V_P1, V_RD, V_MST, V_WO, V_SR = 0, 1, 2, 3, 4, 5, 6, 7, 8, 9
V_ONES = 52
V_SX = 14
V_PM = 18
V_ZERO = 19
V_OUT = 14
V_SEL = 48
V_PF = 6
NRING = 4
V_VX0, V_VX1 = 20, 10
S_ONES = 12
V_R = 24
V_AQ = 40
V_F23 = 48
V_AK = 56
V_KA = 64
V_KB = 72
def F(c): return [V_AQ, V_AQ + 4, V_F23, V_F23 + 4][c]
def KX(c): return [V_KA, V_KA + 4, V_KB, V_KB + 4][c]
V_AV = V_KA
V_VX = V_KB
V_AVX = V_AK
V_S0 = V_KA
V_SM = V_KA + 4

S_H, S_W, S_STEP, S_FAIL = 16, 17, 18, 19
S_P1, S_MC, S_MN, S_MT = 20, 21, 22, 23
S_KV, S_KM, S_VM, S_SPIN = 24, 25, 26, 27
S_T0, S_T1, S_T2 = 28, 29, 30
S_GW = 31
S_VALID = 32
S_MMASK = 34
S_TAU512 = 36
S_T3, S_T4 = 37, 38
S_TAG, S_TAG4 = 39, 40
S_MC6 = 46
S_SELO = 50
S_KXO, S_VXO = 47, 49
SRD_WS = 8
SRD_W = 12
SPIN_MAX = 400000
STAMPS = ['0','1','3','4','5','6','7','8','11','12','13']
DELAYS = [0, 1, 2]
S_R2 = 45
S_LHI = 44
S_CFO = 43
GSLEEP = 0
PGAP = 1
RGAP = 2
G01 = 0
CUT = None
PROF0 = 54

def wfrag(mat, et, c):
    idx = mat * 18 + et * 9 + c
    if idx < 32: return ar(idx * 8, 8)
    return vr(80 + (idx - 32) * 8, 8)
def wfrag_regs(mat, et, c):
    idx = mat * 18 + et * 9 + c
    return ("a", idx * 8) if idx < 32 else ("v", 80 + (idx - 32) * 8)

def load_qkv(A, kaoff, mat):
    lw = A.uid("LW"); lr = A.uid("LR")
    A(f"""
    s_load_dwordx2 s[4:5], s[0:1], {kaoff}
    s_waitcnt lgkmcnt(0)
    s_lshl_b32 s{S_T0}, s{S_H}, 8
    s_add_u32 s{SRD_W}, s4, s{S_T0}
    s_addc_u32 s{SRD_W+1}, s5, 0
    s_sub_u32 s{SRD_W+2}, {576*8192}, s{S_T0}
    s_mov_b32 s{SRD_W+3}, 0x00020000
    v_lshrrev_b32 v24, 8, v{V_L16}          ; l>>4
    v_and_b32 v25, 1, v24
    s_lshl_b32 s{S_T0}, s{S_W}, 1           ; (w&1)<<1 | (w>>1)<<2 == w<<1
    v_or_b32 v25, s{S_T0}, v25              ; f
    v_bfe_u32 v26, v{V_L16}, 5, 3           ; (l&15)>>1
    v_xor_b32 v26, v26, v25
    v_lshlrev_b32 v26, 5, v26
    v_lshl_add_u32 v26, v24, 13, v26
    v_and_b32 v27, 16, v{V_L16}             ; (l&1)*16
    v_add_u32 v26, v26, v27
    s_lshl_b32 s{S_T0}, s{S_W}, 15          ; soffset = a*32768, a = 4i + w
    s_lshl_b32 s{S_T1}, s{S_W}, 10
    s_add_u32 s{S_T1}, s{S_T1}, {L_WO}      ; m0 = L_WO + a*1024
    s_mov_b32 s{S_T2}, 0
    {lw}:
    s_mov_b32 m0, s{S_T1}
    s_nop 0
    buffer_load_dwordx4 v26, s[{SRD_W}:{SRD_W+3}], s{S_T0} offen lds
    s_add_u32 s{S_T0}, s{S_T0}, {4*32768}
    s_add_u32 s{S_T1}, s{S_T1}, 4096
    s_add_u32 s{S_T2}, s{S_T2}, 1
    s_cmp_lt_u32 s{S_T2}, 36
    s_cbranch_scc1 {lw}
    s_waitcnt vmcnt(0)
    s_barrier
    v_lshrrev_b32 v24, 8, v{V_L16}          ; gB
    v_bfe_u32 v25, v{V_L16}, 6, 2           ; r = n>>2
    v_bfe_u32 v26, v{V_L16}, 4, 2           ; cq = n&3
    v_lshrrev_b32 v27, 1, v24               ; gB>>1
    v_lshlrev_b32 v27, 4, v27
    v_lshrrev_b32 v28, 1, v25               ; r>>1
    v_lshl_add_u32 v27, v28, 3, v27
    v_and_b32 v29, 1, v24                   ; gB&1
    v_lshl_add_u32 v27, v29, 2, v27
    v_and_b32 v30, 1, v25                   ; r&1
    v_add_u32 v27, v27, v30                 ; row
    v_lshlrev_b32 v27, 8, v27
    v_lshl_add_u32 v30, v29, 1, v30
    v_lshl_add_u32 v30, v28, 2, v30         ; f
    v_lshl_add_u32 v27, v26, 3, v27         ; + cq*8
    v_add_u32 v27, {L_WO}, v27
    s_lshl_b32 s{S_T0}, s{S_W}, 1
    """)
    for et in range(2):
        A(f"""
        s_add_u32 s{S_T1}, s{S_T0}, {et}
        v_xor_b32 v31, s{S_T1}, v30
        v_lshl_add_u32 v31, v31, 5, v27
        """)
        for c in range(9):
            kind, base = wfrag_regs(mat, et, c)
            for Hh in range(2):
                for rr in range(2):
                    reg = base + 4 * Hh + 2 * rr
                    A(f"ds_read_b64_tr_b16 {kind}[{reg}:{reg+1}], v31 offset:{Hh*8192 + rr*512}")
            A(f"s_waitcnt lgkmcnt(0)\nv_add_u32 v31, 16384, v31")
    A("s_barrier")

def load_wo(A):
    lw = A.uid("LW")
    A(f"""
    s_load_dwordx2 s[4:5], s[0:1], {KA['A_Wo']}
    s_waitcnt lgkmcnt(0)
    s_mul_i32 s{S_T0}, s{S_H}, {128*1152}
    s_add_u32 s{SRD_W}, s4, s{S_T0}
    s_addc_u32 s{SRD_W+1}, s5, 0
    s_mov_b32 s{SRD_W+2}, {128*1152}
    s_mov_b32 s{SRD_W+3}, 0x00020000
    v_lshrrev_b32 v24, 5, v{V_L16}          ; l>>1
    v_mul_u32_u24 v24, 1152, v24
    v_and_b32 v25, 16, v{V_L16}
    v_add_u32 v24, v24, v25
    """)
    for sg in range(3):
        for tau in range(3):
            for a in range(4):
                A(f"""
                s_mul_i32 s{S_T0}, s{S_W}, 96
                s_add_u32 s{S_T0}, s{S_T0}, {(12*sg + tau)*32 + a*32*1152}
                s_mul_i32 s{S_T1}, s{S_W}, 36864
                s_add_u32 s{S_T1}, s{S_T1}, {L_WO + (sg*3+tau)*4096 + a*1024}
                s_mov_b32 m0, s{S_T1}
                s_nop 0
                buffer_load_dwordx4 v24, s[{SRD_W}:{SRD_W+3}], s{S_T0} offen lds
                """)
    A("s_waitcnt vmcnt(0)")
    A(f"""
    v_lshrrev_b32 v24, 8, v{V_L16}          ; gB
    v_bfe_u32 v25, v{V_L16}, 6, 2           ; r
    v_bfe_u32 v26, v{V_L16}, 4, 2           ; cq
    v_and_b32 v27, 1, v24
    v_lshlrev_b32 v27, 5, v27
    v_lshrrev_b32 v28, 1, v25
    v_lshl_add_u32 v27, v28, 4, v27
    v_lshrrev_b32 v28, 1, v24
    v_lshl_add_u32 v27, v28, 2, v27
    v_and_b32 v28, 1, v25
    v_add_u32 v27, v27, v28
    v_lshlrev_b32 v27, 5, v27
    v_lshl_add_u32 v27, v26, 3, v27
    s_mul_i32 s{S_T1}, s{S_W}, 36864
    s_add_u32 s{S_T1}, s{S_T1}, {L_WO}
    v_add_u32 v27, s{S_T1}, v27
    """)
    for sl in range(9):
        for k in range(2):
            for Hh in range(2):
                for rr in range(2):
                    reg = 32 + k * 8 + Hh * 4 + rr * 2
                    A(f"ds_read_b64_tr_b16 v[{reg}:{reg+1}], v27 offset:{sl*4096 + (64*k + 8*Hh + 2*rr)*32}")
        A("s_waitcnt lgkmcnt(0)")
        for k in range(2):
            for Hh in range(2):
                reg = 32 + k * 8 + Hh * 4
                A(f"ds_write_b128 v{V_WO}, v[{reg}:{reg+3}] offset:{sl*4096 + k*2048 + Hh*1024}")
        A("s_waitcnt lgkmcnt(0)")
    A("s_barrier")

class Lg:
    def __init__(self, A): self.A = A; self.n = 0; self.done = 0
    def issue(self, txt):
        self.A(txt); self.n += 1; return self.n
    def wait(self, i):
        if i <= self.done: return
        cnt = self.n - i
        assert cnt <= 15, cnt
        self.A(f"s_waitcnt lgkmcnt({cnt})"); self.done = i
    def waitall(self):
        self.wait(self.n)

def smf(d, a, b): return f"v_smfmac_f32_16x16x64_bf16 {vr(d,4)}, {vr(a,4)}, {b}, v{V_IDX}"
def mf32(d, a, b, c): return f"v_mfma_f32_16x16x32_bf16 {vr(d,4)}, {vr(a,4)}, {vr(b,4)}, {c}"
def mf16(d, a, b, c): return f"v_mfma_f32_16x16x16_bf16 {vr(d,4)}, {vr(a,2)}, {vr(b,2)}, {c}"

def check4(A, r, tmp):
    A(f"v_max3_u32 v{tmp}, v{r}, v{r+1}, v{r+2}\nv_max_u32 v{tmp}, v{tmp}, v{r+3}\nv_cmp_eq_u32 vcc, -1, v{tmp}")


def setup_regs(A):
    A(f"""
    v_lshrrev_b32 v24, 6, v0
    v_and_b32 v25, 63, v0               ; lane
    s_nop 0
    v_readfirstlane_b32 s{S_W}, v24
    v_lshlrev_b32 v{V_L16}, 4, v25      ; l16
    v_and_b32 v26, 15, v25              ; n
    v_lshrrev_b32 v27, 4, v25           ; g
    v_bfe_u32 v28, v26, 1, 1            ; hf(n)
    v_mul_u32_u24 v29, 0xAAAA, v28
    v_add_u32 v{V_IDX}, 0x4444, v29
    s_lshl_b32 s{S_T0}, s{S_W}, 10
    s_add_u32 s{S_T0}, s{S_T0}, {L_QK}
    v_lshrrev_b32 v30, 2, v26               ; n>>2
    v_xor_b32 v30, v30, v27                 ; g ^ (n>>2)
    v_lshlrev_b32 v29, 5, v26
    v_lshl_add_u32 v29, v30, 3, v29
    v_add_u32 v{V_QKW}, s{S_T0}, v29
    v_lshrrev_b32 v29, 2, v26
    v_lshl_add_u32 v29, v27, 2, v29
    v_lshlrev_b32 v29, 5, v29
    v_and_b32 v30, 3, v26
    v_xor_b32 v30, v30, v27
    v_lshl_add_u32 v29, v30, 3, v29
    v_add_u32 v{V_TR}, {L_QK}, v29
    ; OW = L_O + (w>>1)*1024 + (g*16 + n - 2)*16 + (w&1)*8
    s_lshr_b32 s{S_T0}, s{S_W}, 1
    s_lshl_b32 s{S_T0}, s{S_T0}, 10
    s_and_b32 s{S_T1}, s{S_W}, 1
    s_lshl_b32 s{S_T1}, s{S_T1}, 3
    s_add_u32 s{S_T0}, s{S_T0}, s{S_T1}
    s_add_u32 s{S_T0}, s{S_T0}, {L_O - 32}
    v_add_u32 v{V_OW}, s{S_T0}, v{V_L16}
    s_lshl_b32 s{S_T0}, s{S_W}, 3
    v_lshrrev_b32 v29, 3, v26
    v_lshl_add_u32 v29, v27, 1, v29
    v_add_u32 v29, s{S_T0}, v29
    v_lshlrev_b32 v29, 12, v29
    v_and_b32 v30, 7, v26
    v_lshl_add_u32 v29, v30, 4, v29
    s_lshl_b32 s{S_T0}, s{S_H}, 7
    v_add_u32 v{V_P1}, s{S_T0}, v29
    s_lshl_b32 s51, s{S_W}, 5
    s_add_u32 s51, s51, s{S_H}
    s_lshl_b32 s{S_T1}, s51, 12
    v_lshl_add_u32 v29, v27, 1, v28
    v_lshlrev_b32 v29, 7, v29
    v_lshrrev_b32 v30, 2, v26
    v_lshlrev_b32 v30, 1, v30
    v_and_b32 v31, 1, v26
    v_add_u32 v30, v30, v31                 ; irow(n)
    v_lshl_add_u32 v29, v30, 4, v29
    v_add_u32 v{V_RD}, s{S_T1}, v29
    v_lshrrev_b32 v29, 1, v{V_L16}
    v_add_u32 v{V_SR}, {L_S}, v29
    s_lshr_b32 s{S_T1}, s51, 3
    s_mul_i32 s{S_T1}, s{S_T1}, 768
    s_and_b32 s{S_T2}, s51, 7
    s_lshl_b32 s{S_T2}, s{S_T2}, 5
    s_add_u32 s{S_T1}, s{S_T1}, s{S_T2}
    v_bfe_u32 v29, v26, 1, 2                ; tau
    v_lshlrev_b32 v29, 8, v29
    v_lshl_add_u32 v29, v31, 4, v29
    v_lshl_add_u32 v29, v27, 2, v29
    v_add_u32 v{V_MST}, s{S_T1}, v29
    s_mul_i32 s{S_T0}, s{S_W}, 36864
    s_add_u32 s{S_T0}, s{S_T0}, {L_WO}
    v_add_u32 v{V_WO}, s{S_T0}, v{V_L16}
    v_mov_b32 v{V_ZERO}, 0
    s_mov_b32 s{S_VALID}, 0xcccccccc
    s_mov_b32 s{S_VALID+1}, 0xcccccccc
    s_mov_b32 s{S_MMASK}, 0x003f003f
    s_mov_b32 s{S_MMASK+1}, 0x003f003f
    s_lshr_b32 s{S_TAU512}, s{S_W}, 1
    s_lshl_b32 s{S_TAU512}, s{S_TAU512}, 9
    s_add_u32 s{S_GW}, s{S_W}, 1
    s_and_b32 s{S_GW}, s{S_GW}, 3
    s_lshl_b32 s{S_GW}, s{S_GW}, 10
    s_cmp_eq_u32 s{S_W}, 2
    s_cselect_b32 s{S_GW}, 0, s{S_GW}
    v_mov_b32 v{V_PM}, 0
    s_mov_b32 s{S_FAIL}, 0
    s_mov_b32 s{S_T4}, 0x21800000       ; 2^-60
    s_mov_b32 s{S_LHI}, 0x5f800000      ; 2^64
    """)

def init_state(A):
    A(f"""
    s_mov_b32 s{S_STEP}, 0
    s_mov_b32 s{S_P1}, {WS_P1}
    s_mov_b32 s{S_MC}, {WS_M}
    s_mov_b32 s{S_MN}, {WS_M + M_SLOT}
    s_mov_b32 s{S_MT}, {WS_M + 2*M_SLOT}
    s_lshl_b32 s{S_T0}, s{S_H}, 14
    s_add_u32 s{S_KV}, s{S_T0}, {WS_KV}
    s_lshl_b32 s{S_T0}, s{S_H}, 11
    s_lshl_b32 s{S_T1}, s{S_W}, 9
    s_add_u32 s{S_T0}, s{S_T0}, s{S_T1}
    s_add_u32 s{S_VM}, s{S_T0}, {WS_VM}
    s_add_u32 s{S_KM}, s{S_T0}, {WS_KM}
    s_add_u32 s{S_MC6}, s{S_MC}, 6144
    s_lshl_b32 s{S_T0}, s{S_TAU512}, 3
    s_add_u32 s{S_KXO}, s{S_T0}, s{S_KV}
    s_lshl_b32 s{S_T0}, s{S_W}, 11
    s_add_u32 s{S_T0}, s{S_T0}, s{S_KV}
    s_add_u32 s{S_VXO}, s{S_T0}, 8192
    s_mov_b32 s{S_T3}, {f32bits(QSCALE):#x}
    s_mov_b32 s{S_SPIN}, {SPIN_MAX}
    s_mov_b32 s{S_ONES}, 0x3f803f80
    s_mov_b32 s{S_ONES+1}, 0x3f803f80
    s_mov_b32 s{S_SELO}, {WS_SEL}
    v_add_u32 v{V_PM}, s{S_GW}, v{V_L16}
    """)
    ws = f"s[{SRD_WS}:{SRD_WS+3}]"
    for c in range(4): A(f"buffer_load_dwordx4 {vr(KX(c),4)}, v{V_L16}, {ws}, s{S_KXO} offen offset:{c*1024}")
    for et in range(2): A(f"buffer_load_dwordx4 {vr([V_VX0,V_VX1][et],4)}, v{V_L16}, {ws}, s{S_VXO} offen offset:{et*1024}")
    A("s_waitcnt vmcnt(0)")
    for b in (V_AQ, V_AK):
        for i in range(4): A(f"v_mov_b64 {vr(b+2*i,2)}, 0")

def housekeeping():
    return [
      f"s_xor_b32 s{S_P1}, s{S_P1}, {P1_SLOT}",
      f"s_mov_b32 s{S_T0}, s{S_MC}", f"s_mov_b32 s{S_MC}, s{S_MN}", f"s_mov_b32 s{S_MN}, s{S_MT}", f"s_mov_b32 s{S_MT}, s{S_T0}",
      f"s_add_u32 s{S_KV}, s{S_KV}, {32*16384}", f"s_add_u32 s{S_KM}, s{S_KM}, {32*2048}", f"s_add_u32 s{S_VM}, s{S_VM}, {32*2048}",
      f"s_add_u32 s{S_STEP}, s{S_STEP}, 1", f"s_add_u32 s{S_TAG}, s{S_TAG}, 1", f"s_add_u32 s{S_TAG4}, s{S_TAG4}, 4",
      f"s_add_u32 s{S_MC6}, s{S_MC}, 6144",
      f"s_add_u32 s{S_KXO}, s{S_KXO}, {32*16384}", f"s_add_u32 s{S_VXO}, s{S_VXO}, {32*16384}",
    ]


def chain_step(A, st, prof=False, nsteps=64, opt=()):
    ws = f"s[{SRD_WS}:{SRD_WS+3}]"
    CUTL = A.uid("CUT")
    def stamp(name):
        name = str(name)
        if CUT == name: A(f"s_memtime s[72:73]\ns_branch {CUTL}")
        if not prof or name not in STAMPS: return
        i = STAMPS.index(name)
        if "abs" in opt: A(f"s_memrealtime s[{70+2*i}:{71+2*i}]")
        else: A(f"s_memtime s[{70+2*i}:{71+2*i}]")
    def stamp_acc():
        if not prof: return
        A("s_waitcnt lgkmcnt(0)")
        if "abs" in opt:
            A(f"s_cmp_eq_u32 s{S_STEP}, 31")
            for i in range(len(STAMPS)): A(f"s_cselect_b32 s{PROF0+i}, s{70+2*i}, s{PROF0+i}")
            return
        prev = 48
        for i in range(len(STAMPS)):
            A(f"s_sub_u32 s52, s{70+2*i}, s{prev}\ns_add_u32 s{PROF0+i}, s{PROF0+i}, s52")
            prev = 70+2*i
        A(f"s_mov_b32 s48, s{70+2*(len(STAMPS)-1)}")
    STEP = A.uid("STEP"); FAIL = A.uid("FAIL"); DONE = A.uid("DONE"); JOIN = A.uid("JOIN")
    GA, GB, GC, GC2 = 24, 28, 48, 52
    TMP = 14
    def spin(extra=""):
        A(f"s_sub_u32 s{S_SPIN}, s{S_SPIN}, 1\ns_cbranch_scc1 {FAIL}")
        if prof and extra: A(f"s_add_u32 {extra}, {extra}, 1")
    def chk(r, lab, neg=False):
        A(f"v_max3_u32 v{TMP}, v{r}, v{r+1}, v{r+2}\nv_max_u32 v{TMP}, v{TMP}, v{r+3}\nv_cmp_eq_u32 vcc, -1, v{TMP}\n{'s_cbranch_vccz' if neg else 's_cbranch_vccnz'} {lab}")
    def ld(r, which):
        so, off = [(S_MC, 0), (S_MC, 3072), (S_MC6, 0)][which]
        return f"buffer_load_dwordx4 {vr(r,4)}, v{V_PM}, {ws}, s{so} offen offset:{off} sc1"
    def wr(r, which): return f"ds_write_b128 v{V_PM}, {vr(r,4)} offset:{L_MEM + 3072*which}"
    P0, P1, GOK = A.uid("P0"), A.uid("P1"), A.uid("GOK")
    A.label(STEP)
    A(f"s_cmp_eq_u32 s{S_W}, 2\ns_cbranch_scc1 {JOIN}")
    S1 = (64, 68, 72); S2 = (48, 52, 76)
    def lds3(S): return "\n".join(ld(S[i], i) for i in range(3))
    def wrs3(S): return "\n".join(wr(S[i], i) for i in range(3))
    def chk3(S, lab, neg=False):
        regs = [S[i]+j for i in range(3) for j in range(4)]
        A(f"v_max3_u32 v{TMP}, v{regs[0]}, v{regs[1]}, v{regs[2]}")
        for j in range(3, 11, 2): A(f"v_max3_u32 v{TMP}, v{regs[j]}, v{regs[j+1]}, v{TMP}")
        A(f"v_max_u32 v{TMP}, v{regs[11]}, v{TMP}\nv_cmp_eq_u32 vcc, -1, v{TMP}\n{'s_cbranch_vccz' if neg else 's_cbranch_vccnz'} {lab}")
    A(lds3(S1))
    if PGAP: A(f"s_sleep {PGAP}")
    A.label(P0)
    A(lds3(S2))
    A("s_waitcnt vmcnt(3)")
    A(wrs3(S1))
    chk3(S1, GOK, neg=True)
    spin("s99")
    A(lds3(S1))
    A("s_waitcnt vmcnt(3)")
    A(wrs3(S2))
    chk3(S2, P0)
    A.label(GOK)
    A("s_waitcnt lgkmcnt(0)")
    A.label(JOIN)
    stamp(0)
    A("s_barrier")
    if CUT: A("s_memtime s[70:71]")
    L = Lg(A)
    Q, K, V = 0, 1, 2
    order = [(Q,c) for c in range(9)] + [(K,c) for c in range(9)] + [(V,c) for c in range(9)]
    rid = {}; nxt = [0]
    def rd():
        i = nxt[0]
        if i >= len(order): return False
        rid[i] = L.issue(f"ds_read_b128 {vr(V_R + 4*(i%NRING), 4)}, v{V_L16} offset:{L_MEM + order[i][1]*1024}")
        nxt[0] += 1
        return True
    ACCS = [V_AQ, V_AK, V_AVX]
    def item(i, f1=(), f2=()):
        mat, c = order[i]
        L.wait(rid[i])
        skip = ("noV" in opt and mat == 2) or ("noQ" in opt and mat == 0) or ("noK" in opt and mat == 1)
        if not skip: A(smf(ACCS[mat], V_R + 4*(i%NRING), wfrag(mat,0,c)))
        for x in f1: A(x)
        if not skip: A(smf(ACCS[mat]+4, V_R + 4*(i%NRING), wfrag(mat,1,c)))
        while nxt[0] < i + 1 + NRING and rd(): pass
        for x in f2: A(x)
    for _ in range(NRING): rd()
    if "flags" in opt:
        CFL, CFLb = A.uid("CF"), A.uid("CFb")
        A(f"s_cmp_eq_u32 s{S_W}, 1\ns_cbranch_scc1 {CFL}")
        A.label(CFLb)
    npf = 0 if "nopf" in opt else 1
    PF3, PF3b = A.uid("PF3"), A.uid("PF3b")
    kvl = [f"buffer_load_dwordx4 {vr(KX(c),4)}, v{V_L16}, {ws}, s{S_KXO} offen offset:{c*1024}" for c in range(4)] + \
          [f"buffer_load_dwordx4 {vr([V_VX0,V_VX1][et],4)}, v{V_L16}, {ws}, s{S_VXO} offen offset:{et*1024}" for et in range(2)]
    for i in range(0, 9): item(i, (), [kvl[i//2]] if i % 2 == 0 else ())
    stamp(1)
    item(9); item(10, (), [kvl[5]])
    if npf:
        A(f"s_cmp_eq_u32 s{S_W}, 3\ns_cbranch_scc1 {PF3}")
        A.label(PF3b)
    qfold = []
    for t in range(2):
        b = V_AQ + 4*t
        qfold += [f"v_add_f32 v{b}, v{b}, v{b+2}", f"v_add_f32 v{b+1}, v{b+1}, v{b+3}",
                  f"v_mul_f32 v{b}, s{S_T3}, v{b}", f"v_mul_f32 v{b+1}, s{S_T3}, v{b+1}",
                  f"v_cvt_pk_bf16_f32 v{V_SX+t}, v{b}, v{b+1}"]
    item(11, qfold[0:1], qfold[1:2]); item(12, qfold[2:3], qfold[3:4]); item(13, qfold[4:5], qfold[5:6])
    item(14, qfold[6:7], qfold[7:8]); item(15, qfold[8:9], qfold[9:10])
    qw = L.issue(f"ds_write2_b32 v{V_QKW}, v{V_SX}, v{V_SX+1} offset0:1 offset1:129")
    item(16); item(17)
    L.wait(qw)
    A("s_barrier")
    fr = {}
    f2 = [f"ds_read_b64_tr_b16 {vr(F(cc)+2*Hh,2)}, v{V_TR} offset:{cc*1024 + Hh*512}" for cc in range(4) for Hh in range(2)]
    f2k = [(cc,Hh) for cc in range(4) for Hh in range(2)]
    for j in range(4): fr[f2k[j]] = L.issue(f2[j])
    stamp(3)
    PUB = "" if "pubplain" in opt else "sc1"
    npub = 0 if "nopub" in opt else 2
    A(f"s_waitcnt vmcnt({2*npf})" if False else "")
    W2, W2b = A.uid("W2"), A.uid("W2b")
    A(f"s_cmp_eq_u32 s{S_W}, 3\ns_cbranch_scc1 {W2}\ns_waitcnt vmcnt(0)")
    A.label(W2b)
    for t in range(2):
        b = V_AK + 4*t
        A(f"v_add_f32 v{b}, v{b}, v{b+2}\nv_add_f32 v{b+1}, v{b+1}, v{b+3}\nv_cvt_pk_bf16_f32 v{V_SX+2+t}, v{b}, v{b+1}")
    kw = L.issue(f"ds_write2_b32 v{V_QKW}, v{V_SX+2}, v{V_SX+3} offset0:0 offset1:128")
    stamp("kw")
    for j in range(4, 8): fr[f2k[j]] = L.issue(f2[j])
    for i in range(4): A(f"v_mov_b64 {vr(V_AVX+2*i,2)}, 0")
    A("s_nop 0")
    item(18)
    L.wait(fr[(0,1)])
    A(mf32(V_SX, KX(0), F(0), "0"))
    L.wait(fr[(3,1)])
    L.wait(kw)
    A(mf32(V_SX, KX(1), F(1), vr(V_SX,4)))
    stamp("prebk")
    A("s_barrier")
    A(mf32(V_SX, KX(2), F(2), vr(V_SX,4)))
    fr[(0,0)] = L.issue(f2[0]); fr[(0,1)] = L.issue(f2[1]); fr[(1,0)] = L.issue(f2[2])
    A(mf32(V_SX, KX(3), F(3), vr(V_SX,4)))
    fr[(1,1)] = L.issue(f2[3]); fr[(2,0)] = L.issue(f2[4]); fr[(2,1)] = L.issue(f2[5])
    fr[(3,0)] = L.issue(f2[6]); fr[(3,1)] = L.issue(f2[7])
    stamp("sx")
    item(19, [f"v_add_u32 v{V_PM}, s{S_TAU512}, v{V_SR}"])
    exo = [f"v_exp_f32 v{V_SX+r}, v{V_SX+r}" for r in range(4)]
    item(20, exo[0:1], exo[1:2])
    A(exo[2]); A(exo[3])
    sm = V_SM
    stamp("exo")
    L.wait(fr[(0,1)])
    A(mf32(sm, F(0), F(0), "0"))
    A(f"v_cvt_pk_bf16_f32 v{V_SX}, v{V_SX}, v{V_SX+1}\nv_cvt_pk_bf16_f32 v{V_SX+1}, v{V_SX+2}, v{V_SX+3}")
    L.wait(fr[(1,1)])
    A(mf32(sm, F(1), F(1), vr(sm,4)))
    sw = L.issue(f"ds_write_b64 v{V_PM}, {vr(V_SX,2)}")
    L.wait(fr[(3,1)])
    A(mf32(sm, F(2), F(2), vr(sm,4)))
    A(mf32(sm, F(3), F(3), vr(sm,4)))
    stamp("sm")
    item(21, [f"v_mov_b64 {vr(V_ONES,2)}, s[{S_ONES}:{S_ONES+1}]"], [f"v_mov_b64 {vr(V_ONES+2,2)}, s[{S_ONES}:{S_ONES+1}]"])
    L.wait(sw)
    A("s_barrier")
    s0 = L.issue(f"ds_read2_b64 {vr(V_S0,4)}, v{V_SR} offset0:0 offset1:64")
    stamp(4)
    item(22)
    A(f"v_exp_f32 v{sm}, v{sm}\nv_exp_f32 v{sm+1}, v{sm+1}")
    item(23, (), [f"v_cvt_pk_bf16_f32 v{V_PM}, v{sm}, v{sm+1}"])
    L.wait(s0)
    A(mf32(F(0), V_VX0, V_S0, "0"))
    A(mf32(F(1), V_VX1, V_S0, "0"))
    A(mf32(F(2), V_ONES, V_S0, "0"))
    stamp("pvx")
    NF = 18
    WB = [V_KB, V_KA, V_R, V_R+8, V_AK, V_AQ]
    NB = len(WB)
    wf = {}
    def wrd(f):
        if "noWrd" in opt:
            wf[f] = L.n; return
        if f < NF:
            sl, k = divmod(f, 2)
            L.issue(f"ds_read_b128 {vr(WB[f%NB],4)}, v{V_WO} offset:{sl*4096 + k*2048}")
            wf[f] = L.issue(f"ds_read_b128 {vr(WB[f%NB]+4,4)}, v{V_WO} offset:{sl*4096 + k*2048 + 1024}")
    kr = L.issue(f"ds_read2_b32 {vr(V_SX+2,2)}, v{V_QKW} offset0:0 offset1:128")
    item(24)
    A("s_nop 2")
    A(mf16(F(2), V_ONES, V_PM, vr(F(2),4)))
    wrd(0)
    item(25)
    wrd(1)
    item(26)
    stamp(5)
    AV = V_AVX
    A(f"v_lshrrev_b32 v{V_SX+1}, 2, v{V_L16}")
    A(f"v_mov_b32 v{V_SX}, s{S_LHI}")
    A(f"v_med3_f32 v{V_SX}, v{F(2)}, s{S_T4}, v{V_SX}")
    A(f"v_cmp_neq_f32 vcc, v{V_SX}, v{F(2)}")
    A(f"v_rcp_f32 v{V_SX}, v{F(2)}")
    A(f"s_and_b64 vcc, vcc, s[{S_VALID}:{S_VALID+1}]")
    A("s_nop 1")
    for b in (AV, AV+4):
        A(f"v_add_f32 v{b}, v{b}, v{b+2}\nv_add_f32 v{b+1}, v{b+1}, v{b+3}\nv_cvt_pk_bf16_f32 v{b}, v{b}, v{b+1}\nv_mov_b32 v{b+1}, 0")
    SLOW = A.uid("SLOW"); BACK = A.uid("BACK"); LAST = A.uid("LAST")
    A(f"s_cbranch_vccnz {SLOW}")
    A(mf16(F(0), AV, V_PM, vr(F(0),4)))
    A(mf16(F(1), AV+4, V_PM, vr(F(1),4)))
    A.label(BACK)
    stamp("pvm")
    wrd(2)
    A(f"s_cmp_eq_u32 s{S_STEP}, {nsteps-1}\ns_cbranch_scc1 {LAST}")
    A("s_nop 2")
    for r in range(4): A(f"v_mul_f32 v{F(0)+r}, v{F(0)+r}, v{V_SX}")
    A(f"v_cvt_pk_bf16_f32 v{F(0)}, v{F(0)}, v{F(0)+1}\nv_cvt_pk_bf16_f32 v{F(0)+1}, v{F(0)+2}, v{F(0)+3}")
    for r in range(4): A(f"v_mul_f32 v{F(1)+r}, v{F(1)+r}, v{V_SX}")
    A(f"v_cvt_pk_bf16_f32 v{F(1)}, v{F(1)}, v{F(1)+1}\nv_cvt_pk_bf16_f32 v{F(1)+1}, v{F(1)+2}, v{F(1)+3}")
    A(f"s_mov_b64 exec, s[{S_VALID}:{S_VALID+1}]")
    ow = L.issue(f"ds_write2_b64 v{V_OW}, {vr(F(0),2)}, {vr(F(1),2)} offset0:0 offset1:4")
    A("s_mov_b64 exec, -1")
    stamp(6)
    pubs = []
    if npub:
        pubs = [f"buffer_store_dword v{AV}, v{V_SX+1}, {ws}, s{S_VM} offen {PUB}", f"buffer_store_dword v{AV+4}, v{V_SX+1}, {ws}, s{S_VM} offen offset:256 {PUB}",
                f"buffer_store_dword v{V_SX+2}, v{V_SX+1}, {ws}, s{S_KM} offen {PUB}", f"buffer_store_dword v{V_SX+3}, v{V_SX+1}, {ws}, s{S_KM} offen offset:256 {PUB}"]
    wrd(3)
    L.wait(kr)
    for x in pubs: A(x)
    ACC = [V_VX0, V_VX1, V_F23+4 if False else None]
    ACC = [V_VX0, V_VX1]
    for a in ACC:
        A(f"v_mov_b64 {vr(a,2)}, 0\nv_mov_b64 {vr(a+2,2)}, 0")
    L.wait(ow)
    A("s_barrier")
    o0 = L.issue(f"ds_read_b128 {vr(V_F23,4)}, v{V_L16} offset:{L_O}")
    o1 = L.issue(f"ds_read_b128 {vr(V_F23+4,4)}, v{V_L16} offset:{L_O+1024}")
    wrd(4); wrd(5)
    A(f"v_mov_b32 v{V_OUT+3}, s{S_TAG}")
    L.wait(o1)
    stamp(7)
    NT = 9
    NA = len(ACC)
    def epi(sl):
        a = ACC[sl % NA]; tau = sl % 3
        q = [f"v_add_f32 v{a}, v{a}, v{a+2}", f"v_add_f32 v{a+1}, v{a+1}, v{a+3}", f"v_cvt_pk_bf16_f32 v{V_OUT+tau}, v{a}, v{a+1}"]
        if sl < NT - NA: q += [f"v_mov_b64 {vr(a,2)}, 0", f"v_mov_b64 {vr(a+2,2)}, 0"]
        if tau == 2:
            sg = sl // 3
            q += [f"s_add_u32 s{S_T0}, s{S_P1}, {sg*131072}", f"buffer_store_dwordx4 {vr(V_OUT,4)}, v{V_P1}, {ws}, s{S_T0} offen {st}"]
        return q
    for sl in range(NT):
        if sl in (3, 6): stamp(f"wo{sl}")
        L.wait(wf[2*sl+1])
        for k in range(2):
            f = 2*sl + k
            if "noWo" not in opt: A(smf(ACC[sl%NA], V_F23 + 4*k, vr(WB[f%NB], 8)))
            wrd(f + NB)
        if sl >= 1:
            if 2*sl + NB >= NF: A("s_nop 3")
            for x in epi(sl - 1): A(x)
            A("s_nop 0")
    A("s_nop 6")
    for x in epi(NT-1): A(x)
    stamp(8)
    hk = housekeeping()
    if "fixkv" in opt: hk = [x for x in hk if f"s{S_KXO}," not in x and f"s{S_VXO}," not in x]
    zero = [f"v_mov_b64 {vr(b+2*i,2)}, 0" for b in (V_AQ, V_AK) for i in range(4)]
    NR = A.uid("NR"); R0 = A.uid("R0"); R1 = A.uid("R1"); RB = A.uid("RB"); RW3 = A.uid("RW3")
    SEL = V_F23
    A(f"s_cmp_eq_u32 s{S_W}, 3\ns_cbranch_scc1 {RW3}")
    A(f"s_mov_b32 s{S_T1}, s{S_P1}\ns_mov_b32 s{S_T2}, s{S_MN}\ns_mov_b32 s53, s{S_MC}\ns_mov_b32 s41, s{S_TAG4}")
    A(f"buffer_load_dwordx4 {vr(SEL,4)}, v{V_L16}, {ws}, s{S_SELO} offen")
    for x in hk + zero: A(x)
    d0, d1, d2 = DELAYS
    if d0: A(f"s_sleep {d0}")
    A(f"s_cmp_eq_u32 s{S_W}, 0\ns_cbranch_scc1 {R0}")
    if d1: A(f"s_sleep {d1}")
    A(f"s_cmp_eq_u32 s{S_W}, 1\ns_cbranch_scc1 {R0}")
    if d2: A(f"s_sleep {d2}")
    A.label(R0)
    stamp(11)
    BX, BY = V_R, V_KA
    def rl(B): return [f"buffer_load_dwordx4 {vr(B+4*q,4)}, v{V_RD}, {ws}, s{S_T1} offen offset:{q*1024} sc1" for q in range(4)]
    def proc(B):
        for q in range(4):
            A(f"s_waitcnt vmcnt({7-q})")
            A(mf32(V_SX, B+4*q, SEL, "0" if q == 0 else vr(V_SX,4)))
        A(f"v_add3_u32 v{V_PM}, v{B+3}, v{B+7}, v{B+11}\nv_add_u32 v{V_PM}, v{V_PM}, v{B+15}\nv_cmp_ne_u32 vcc, s41, v{V_PM}")
    FIN = A.uid("FIN")
    for x in rl(BX): A(x)
    if RGAP: A(f"s_sleep {RGAP}")
    A.label(RB)
    for x in rl(BY): A(x)
    proc(BX)
    A(f"s_cbranch_vccz {FIN}")
    spin("s98")
    for x in rl(BX): A(x)
    proc(BY)
    A(f"s_cbranch_vccnz {RB}")
    A("s_nop 0")
    A.label(FIN)
    stamp(12)
    A(f"v_mov_b32 v{V_PM}, -1\ns_mov_b64 exec, s[{S_MMASK}:{S_MMASK+1}]\ns_nop 1")
    A(f"v_add_f32 v{V_SX}, v{V_SX}, v{V_SX+2}\nv_add_f32 v{V_SX+1}, v{V_SX+1}, v{V_SX+3}\nv_cvt_pk_bf16_f32 v{V_SX}, v{V_SX}, v{V_SX+1}")
    A(f"buffer_store_dword v{V_SX}, v{V_MST}, {ws}, s{S_T2} offen {st}")
    A(f"buffer_store_dword v{V_PM}, v{V_MST}, {ws}, s53 offen {st}")
    A("s_mov_b64 exec, -1")
    if G01: A(f"s_sleep {G01}")
    A.label(NR)
    A(f"v_add_u32 v{V_PM}, s{S_GW}, v{V_L16}")
    stamp(13)
    stamp_acc()
    A(f"s_mov_b32 s{S_SPIN}, {SPIN_MAX}")
    A(f"s_branch {STEP}")
    A.label(RW3)
    for x in hk + zero: A(x)
    if GSLEEP: A(f"s_sleep {GSLEEP}")
    stamp(11); stamp(12)
    A(f"s_branch {NR}")
    if "flags" in opt:
        A.label(CFL)
        A(f"s_add_u32 s{S_T0}, s7, s{S_STEP}\nv_mov_b32 v{V_SX}, s{S_T0}\nv_mov_b32 v{V_SX+1}, 0\ns_mov_b64 exec, 1")
        A(f"buffer_store_dword v{V_SX}, v{V_SX+1}, {ws}, s{S_CFO} offen sc1\ns_mov_b64 exec, -1\ns_branch {CFLb}")
    if npf:
        A.label(PF3)
        A(f"v_lshlrev_b32 v{V_PF}, 3, v{V_L16}\nv_add_u32 v{V_PF+1}, 8192, v{V_PF}")
        A(f"s_add_u32 s{S_T0}, s{S_KV}, {32*16384}")
        A(f"buffer_load_dword v{V_PF}, v{V_PF}, {ws}, s{S_T0} offen\nbuffer_load_dword v{V_PF+1}, v{V_PF+1}, {ws}, s{S_T0} offen\ns_branch {PF3b}")
    A.label(W2); A(f"s_waitcnt vmcnt({2*npf})\ns_branch {W2b}")

    A.label(SLOW)
    L2 = Lg(A)
    A("s_nop 7")
    for cc in range(4):
        for Hh in range(2):
            L2.issue(f"ds_read_b64_tr_b16 {vr(F(cc)+2*Hh,2)}, v{V_TR} offset:{cc*1024 + Hh*512}")
    T0r, T1r = V_S0, V_SX
    for tau in range(2):
        A(f"s_add_u32 s{S_T0}, s{S_KV}, {tau*4096}")
        for c in range(4): A(f"buffer_load_dwordx4 {vr(V_R+4*c,4)}, v{V_L16}, {ws}, s{S_T0} offen offset:{c*1024}")
        A("s_waitcnt vmcnt(0) lgkmcnt(0)")
        d = [T0r, T1r][tau]
        for c in range(4): A(mf32(d, V_R+4*c, F(c), "0" if c == 0 else vr(d,4)))
        A("s_nop 7")
    for c in range(4):
        A(mf32(sm, F(c), F(c), "0" if c == 0 else vr(sm,4)))
    A("s_nop 7\ns_nop 1")
    a0, a1 = T0r, T1r
    A(f"v_max3_f32 v{V_PM}, v{a0}, v{a0+1}, v{a0+2}")
    A(f"v_max3_f32 v{V_PM}, v{a0+3}, v{a1}, v{V_PM}")
    A(f"v_max3_f32 v{V_PM}, v{a1+1}, v{a1+2}, v{V_PM}")
    A(f"v_max3_f32 v{V_PM}, v{a1+3}, v{sm}, v{V_PM}")
    A(f"v_max_f32 v{V_PM}, v{sm+1}, v{V_PM}")
    t = F(3)
    A(f"v_mov_b32 v{t}, v{V_PM}\ns_nop 1\nv_permlane32_swap_b32 v{t}, v{V_PM}\ns_nop 1\nv_max_f32 v{V_PM}, v{V_PM}, v{t}")
    A(f"v_mov_b32 v{t}, v{V_PM}\ns_nop 1\nv_permlane16_swap_b32 v{t}, v{V_PM}\ns_nop 1\nv_max_f32 v{V_PM}, v{V_PM}, v{t}")
    rs = list(range(a0, a0+4)) + list(range(a1, a1+4)) + [sm, sm+1]
    for r in rs: A(f"v_sub_f32 v{r}, v{r}, v{V_PM}")
    for r in rs: A(f"v_exp_f32 v{r}, v{r}")
    A("s_nop 0")
    A(f"v_cvt_pk_bf16_f32 v{a0}, v{a0}, v{a0+1}\nv_cvt_pk_bf16_f32 v{a0+1}, v{a0+2}, v{a0+3}")
    A(f"v_cvt_pk_bf16_f32 v{a0+2}, v{a1}, v{a1+1}\nv_cvt_pk_bf16_f32 v{a0+3}, v{a1+2}, v{a1+3}")
    A(f"v_cvt_pk_bf16_f32 v{V_PM}, v{sm}, v{sm+1}")
    A(f"v_lshrrev_b32 v{V_SX+1}, 2, v{V_L16}")
    A(f"v_mov_b64 {vr(V_ONES,2)}, s[{S_ONES}:{S_ONES+1}]\nv_mov_b64 {vr(V_ONES+2,2)}, s[{S_ONES}:{S_ONES+1}]\ns_nop 1")
    A(mf32(F(0), V_VX0, V_S0, "0"))
    A(mf32(F(1), V_VX1, V_S0, "0"))
    A(mf32(F(2), V_ONES, V_S0, "0"))
    A("s_nop 7")
    A(mf16(F(2), V_ONES, V_PM, vr(F(2),4)))
    A(mf16(F(0), AV, V_PM, vr(F(0),4)))
    A(mf16(F(1), AV+4, V_PM, vr(F(1),4)))
    A(f"ds_read2_b32 {vr(V_SX+2,2)}, v{V_QKW} offset0:0 offset1:128")
    for f in range(2):
        sl, k = divmod(f, 2)
        A(f"ds_read_b128 {vr(WB[f],4)}, v{V_WO} offset:{sl*4096 + k*2048}\nds_read_b128 {vr(WB[f]+4,4)}, v{V_WO} offset:{sl*4096 + k*2048 + 1024}")
    A("s_waitcnt lgkmcnt(0)\ns_nop 7")
    A(f"v_rcp_f32 v{V_SX}, v{F(2)}")
    A(f"s_branch {BACK}")
    A.label(LAST)
    A("s_waitcnt lgkmcnt(0)")
    for x in pubs: A(x)
    if "flags" in opt:
        A(f"s_waitcnt vmcnt(0)\ns_barrier\ns_cmp_eq_u32 s{S_W}, 1\ns_cbranch_scc0 {DONE}")
        A(f"s_add_u32 s{S_T0}, s7, {nsteps}\nv_mov_b32 v{V_SX}, s{S_T0}\nv_mov_b32 v{V_SX+1}, 0\ns_mov_b64 exec, 1")
        A(f"buffer_store_dword v{V_SX}, v{V_SX+1}, {ws}, s{S_CFO} offen sc1\ns_mov_b64 exec, -1")
    A(f"s_branch {DONE}")
    if CUT:
        A.label(CUTL)
        A(f"s_mov_b64 exec, -1\ns_waitcnt vmcnt(0) lgkmcnt(0)\ns_nop 7\ns_sub_u32 s72, s72, s70\ns_add_u32 s54, s54, s72")
        for b in (V_AQ, V_AK):
            for i in range(4): A(f"v_mov_b64 {vr(b+2*i,2)}, 0")
        for c in range(4): A(f"buffer_load_dwordx4 {vr(KX(c),4)}, v{V_L16}, {ws}, s{S_KXO} offen offset:{c*1024}")
        for et in range(2): A(f"buffer_load_dwordx4 {vr([V_VX0,V_VX1][et],4)}, v{V_L16}, {ws}, s{S_VXO} offen offset:{et*1024}")
        A(f"s_waitcnt vmcnt(0)\ns_add_u32 s{S_STEP}x, 0, 0".replace(f"s_add_u32 s{S_STEP}x, 0, 0", "s_add_u32 s55, s55, 1"))
        A(f"s_cmp_lt_u32 s55, 63\ns_cbranch_scc1 {JOIN}\ns_branch {DONE}")
    A.label(FAIL)
    A(f"s_mov_b64 exec, -1\ns_mov_b32 s{S_FAIL}, 1")
    A.label(DONE)


def chain_init_mem(A, st):
    ws = f"s[{SRD_WS}:{SRD_WS+3}]"
    N0 = A.uid("IM"); N1 = A.uid("IM")
    A(f"""
    s_cmp_lt_u32 s{S_H}, 9
    s_cbranch_scc0 {N1}
    s_cmp_eq_u32 s{S_W}, 0
    s_cbranch_scc0 {N0}
    s_load_dwordx2 s[4:5], s[0:1], {KA['A_mem0']}
    s_waitcnt lgkmcnt(0)
    s_mov_b32 s{SRD_W}, s4
    s_mov_b32 s{SRD_W+1}, s5
    s_mov_b32 s{SRD_W+2}, {8*1152}
    s_mov_b32 s{SRD_W+3}, 0x00020000
    v_bfe_u32 v24, v{V_L16}, 4, 4            ; n
    v_lshrrev_b32 v25, 2, v24
    v_lshlrev_b32 v25, 1, v25
    v_and_b32 v26, 1, v24
    v_add_u32 v25, v25, v26                  ; irow
    v_mul_u32_u24 v25, 1152, v25
    v_bfe_u32 v26, v24, 1, 1                 ; hf
    v_lshl_add_u32 v25, v26, 4, v25
    v_lshrrev_b32 v26, 8, v{V_L16}           ; g
    v_lshl_add_u32 v25, v26, 5, v25
    s_lshl_b32 s{S_T0}, s{S_H}, 7            ; c*128 bytes
    buffer_load_dwordx4 v[28:31], v25, s[{SRD_W}:{SRD_W+3}], s{S_T0} offen
    s_lshl_b32 s{S_T0}, s{S_H}, 10
    s_add_u32 s{S_T0}, s{S_T0}, {WS_M}
    s_waitcnt vmcnt(0)
    buffer_store_dwordx4 v[28:31], v{V_L16}, {ws}, s{S_T0} offen {st}
    s_branch {N1}
    {N0}:
    v_mov_b32 v28, -1
    v_mov_b32 v29, -1
    v_mov_b32 v30, -1
    v_mov_b32 v31, -1
    s_mul_i32 s{S_T0}, s{S_W}, {M_SLOT}
    s_lshl_b32 s{S_T1}, s{S_H}, 10
    s_add_u32 s{S_T0}, s{S_T0}, s{S_T1}
    s_add_u32 s{S_T0}, s{S_T0}, {WS_M}
    s_cmp_eq_u32 s{S_W}, 3
    s_cbranch_scc1 {N0}s
    buffer_store_dwordx4 v[28:31], v{V_L16}, {ws}, s{S_T0} offen {st}
    s_branch {N1}
    {N0}s:
    v_bfe_u32 v24, v{V_L16}, 4, 3            ; j = n & 7
    v_and_b32 v25, 1, v24
    v_lshlrev_b32 v25, 4, v25
    v_mov_b32 v26, 0x3f80
    v_lshlrev_b32 v25, v25, v26              ; X
    v_lshrrev_b32 v24, 1, v24
    """)
    for r in range(4):
        A(f"v_cmp_eq_u32 vcc, {r}, v24\ns_nop 1\nv_cndmask_b32 v{28+r}, 0, v25, vcc")
    A(f"s_mov_b32 s{S_T0}, {WS_SEL}\nbuffer_store_dwordx4 v[28:31], v{V_L16}, {ws}, s{S_T0} offen {st}")
    A.label(N1)
    A("s_waitcnt vmcnt(0)")
```

```python
from asmlib import *
from layout import *
import struct
def f32bits(x): return struct.unpack("<I", struct.pack("<f", x))[0]

SRD_WS = 8
SRD_A = 12
S_H, S_W = 16, 17
S_NONCE = 7
V_L16 = 0

def srd_ws(A):
    A(f"""
    s_load_dwordx2 s[4:5], s[0:1], {KA['ws']}
    s_waitcnt lgkmcnt(0)
    s_mov_b32 s{SRD_WS}, s4
    s_mov_b32 s{SRD_WS+1}, s5
    s_mov_b32 s{SRD_WS+2}, {WS_SIZE}
    s_mov_b32 s{SRD_WS+3}, 0x00020000
    """)

def lane_setup(A):
    A(f"""
    v_lshrrev_b32 v1, 6, v0
    v_and_b32 v0, 63, v0
    s_nop 0
    v_readfirstlane_b32 s{S_W}, v1
    v_lshlrev_b32 v0, 4, v0
    """)

def make_srd(A, srd, kaoff, add_sgpr, nbytes_total, tmp=4):
    A(f"""
    s_load_dwordx2 s[{tmp}:{tmp+1}], s[0:1], {kaoff}
    s_waitcnt lgkmcnt(0)
    """)
    if add_sgpr is None:
        A(f"s_mov_b32 s{srd}, s{tmp}\ns_mov_b32 s{srd+1}, s{tmp+1}\ns_mov_b32 s{srd+2}, {nbytes_total}\ns_mov_b32 s{srd+3}, 0x00020000")
    else:
        A(f"s_add_u32 s{srd}, s{tmp}, s{add_sgpr}\ns_addc_u32 s{srd+1}, s{tmp+1}, 0\ns_sub_u32 s{srd+2}, {nbytes_total}, s{add_sgpr}\ns_mov_b32 s{srd+3}, 0x00020000")

def load_head_slice(A, kaoff, regmap, lds_base, t0=28, t1=29, t2=30):
    lw = A.uid("LW")
    A(f"s_lshl_b32 s{t0}, s{S_H}, 8")
    make_srd(A, SRD_A, kaoff, t0, 576*8192)
    A(f"""
    v_lshrrev_b32 v24, 8, v{V_L16}          ; l>>4
    v_and_b32 v25, 1, v24
    s_lshl_b32 s{t0}, s{S_W}, 1
    v_or_b32 v25, s{t0}, v25                ; f(row)
    v_bfe_u32 v26, v{V_L16}, 5, 3           ; (l&15)>>1
    v_xor_b32 v26, v26, v25
    v_lshlrev_b32 v26, 5, v26
    v_lshl_add_u32 v26, v24, 13, v26
    v_and_b32 v27, 16, v{V_L16}
    v_add_u32 v26, v26, v27
    s_lshl_b32 s{t0}, s{S_W}, 15
    s_lshl_b32 s{t1}, s{S_W}, 10
    s_add_u32 s{t1}, s{t1}, {lds_base}
    s_mov_b32 s{t2}, 0
    {lw}:
    s_mov_b32 m0, s{t1}
    s_nop 0
    buffer_load_dwordx4 v26, s[{SRD_A}:{SRD_A+3}], s{t0} offen lds
    s_add_u32 s{t0}, s{t0}, {4*32768}
    s_add_u32 s{t1}, s{t1}, 4096
    s_add_u32 s{t2}, s{t2}, 1
    s_cmp_lt_u32 s{t2}, 36
    s_cbranch_scc1 {lw}
    s_waitcnt vmcnt(0)
    s_barrier
    v_lshrrev_b32 v24, 8, v{V_L16}          ; g
    v_bfe_u32 v25, v{V_L16}, 6, 2           ; r
    v_bfe_u32 v26, v{V_L16}, 4, 2           ; cq
    v_lshl_add_u32 v27, v24, 3, v25         ; 8g + r
    v_lshlrev_b32 v27, 8, v27
    v_lshl_add_u32 v27, v26, 3, v27
    v_add_u32 v27, {lds_base}, v27
    v_and_b32 v28, 1, v25
    v_and_b32 v29, 1, v24
    v_lshl_add_u32 v28, v29, 2, v28
    v_or_b32 v29, 2, v28
    s_lshl_b32 s{t0}, s{S_W}, 1
    """)
    for et in range(2):
        A(f"""
        s_add_u32 s{t1}, s{t0}, {et}
        v_xor_b32 v30, s{t1}, v28
        v_lshl_add_u32 v30, v30, 5, v27
        v_xor_b32 v31, s{t1}, v29
        v_lshl_add_u32 v31, v31, 5, v27
        v_add_u32 v31, 1024, v31
        """)
        for cc in range(18):
            kind, base = regmap(et, cc)
            off = (cc % 8) * 8192
            A(f"ds_read_b64_tr_b16 {kind}[{base}:{base+1}], v30 offset:{off}")
            A(f"ds_read_b64_tr_b16 {kind}[{base+2}:{base+3}], v31 offset:{off}")
            if cc % 8 == 7:
                A("s_waitcnt lgkmcnt(0)\nv_add_u32 v30, 65536, v30\nv_add_u32 v31, 65536, v31")
        A("s_waitcnt lgkmcnt(0)")
    A("s_barrier")

def x_dma(A, srd_x, voff, s_row, lds_base_sgpr, t0=28, t1=29):
    A(f"s_mul_i32 s{t0}, s{S_W}, 9")
    for i in range(9):
        A(f"""
        s_add_u32 s{t1}, s{t0}, {i}
        s_cmp_ge_u32 s{t1}, 18
        s_cselect_b32 s31, {16*1152 - 18*64}, 0
        s_lshl_b32 s33, s{t1}, 6
        s_add_u32 s31, s31, s33
        s_add_u32 s31, s31, s{s_row}
        s_lshl_b32 s33, s{t1}, 10
        s_add_u32 s33, s33, s{lds_base_sgpr}
        s_mov_b32 m0, s33
        s_nop 0
        buffer_load_dwordx4 v{voff}, s[{srd_x}:{srd_x+3}], s31 offen lds
        """)
```

```python
S_TOK, DM, H, DH, NSEG, SEG, MROWS = 2048, 576, 32, 128, 64, 32, 8

KA = dict(A_x=0, A_mem0=8, A_Wq=16, A_Wk=24, A_Wv=32, A_Wo=40, seg_len=48, B_x=56, B_wq=64, B_wk=72, B_wv=80, B_wo=88, out=96, dbg=104, ws=112)

P1_SLOT = 96 * 4096
WS_P1 = 0
WS_M = 2 * P1_SLOT
M_SLOT = 9216
WS_SEL = 0xC7000
WS_FLAGS = 0xC8000
WS_KV = 0x100000
WS_KM = WS_KV + 64 * 32 * 16384
WS_MEMS = WS_KM
WS_VM = WS_KM + 65 * 16384
WS_O = WS_VM
WS_O_END = WS_O + 64 * 2 * 128 * 1024
WS_SIZE = 268435456

L_MEM = 0
L_QK = 9216
L_S = 13312
L_O = 14336
L_WO = 16384
LDS_TOTAL = 163840

def irow(x): return 2 * (x >> 2) + (x & 1)
def hf(x): return (x >> 1) & 1
QSCALE = (128 ** -0.5) * 1.4426950408889634

F_P = 0
F_C = 1024
F_O = 8192
F_B = 16384
WS_BK = WS_O_END
WS_BV = WS_BK + 64*2*1024
WS_BEND = WS_BV + 64*2*1024
```

```python
from common import *

V_XO = 2
V_ACC = 8
V_XF = 40
V_T = 64
SRD_X = 20
S_SEG, S_ROW, S_LB, S_KVO, S_CNT = 24, 25, 26, 27, 34
L_X0, L_X1 = 0, 36864

def wmap(mat):
    def f(et, cc):
        idx = mat*36 + et*18 + cc
        return ("a", idx*4) if idx < 64 else ("v", 224 + (idx-64)*4)
    return f
def wreg(mat, et, cc):
    k, b = wmap(mat)(et, cc); return f"{k}[{b}:{b+3}]"

def p_station(A, s_rho, nrep=7, flag=True):
    ws = f"s[{SRD_WS}:{SRD_WS+3}]"
    load_head_slice(A, KA['A_Wk'], wmap(0), 0)
    load_head_slice(A, KA['A_Wv'], wmap(1), 0)
    make_srd(A, SRD_X, KA['A_x'], None, 2048*1152)
    A(f"""
    v_bfe_u32 v{V_XO}, v{V_L16}, 4, 4        ; n
    v_mul_u32_u24 v{V_XO}, 1152, v{V_XO}
    v_lshrrev_b32 v3, 8, v{V_L16}            ; g
    v_lshl_add_u32 v{V_XO}, v3, 4, v{V_XO}
    s_mov_b32 s{S_SEG}, s{s_rho}
    s_mul_i32 s{S_ROW}, s{S_SEG}, {32*1152}
    s_mov_b32 s{S_LB}, {L_X0}
    """)
    x_dma(A, SRD_X, V_XO, S_ROW, S_LB)
    LOOP = A.uid("PL"); NODMA = A.uid("PN"); END = A.uid("PE")
    A.label(LOOP)
    A("s_waitcnt vmcnt(0)\ns_barrier")
    A(f"""
    s_add_u32 s35, s{S_SEG}, {nrep}
    s_cmp_lt_u32 s35, 64
    s_cbranch_scc0 {NODMA}
    s_mul_i32 s{S_ROW}, s35, {32*1152}
    s_xor_b32 s36, s{S_LB}, {L_X1}
    """)
    x_dma(A, SRD_X, V_XO, S_ROW, 36)
    A.label(NODMA)
    A(f"v_add_u32 v3, s{S_LB}, v{V_L16}")
    def xr(cc):
        st = cc % 3
        for tt in range(2):
            A(f"ds_read_b128 {vr(V_XF + (st*2+tt)*4, 4)}, v3 offset:{(tt*18+cc)*1024}")
    xr(0); xr(1)
    for cc in range(18):
        if cc + 2 < 18: xr(cc + 2)
        later = 2 * min(2, 17 - cc)
        A(f"s_waitcnt lgkmcnt({later})")
        st = cc % 3
        for et in range(2):
            for tt in range(2):
                d = V_ACC + (et*2+tt)*4
                A(f"v_mfma_f32_16x16x32_bf16 {vr(d,4)}, {wreg(0,et,cc)}, {vr(V_XF+(st*2+tt)*4,4)}, {'0' if cc==0 else vr(d,4)}")
        for tt in range(2):
            for et in range(2):
                d = V_ACC + 16 + (tt*2+et)*4
                A(f"v_mfma_f32_16x16x32_bf16 {vr(d,4)}, {vr(V_XF+(st*2+tt)*4,4)}, {wreg(1,et,cc)}, {'0' if cc==0 else vr(d,4)}")
    A(f"""
    s_lshl_b32 s35, s{S_SEG}, 5
    s_add_u32 s35, s35, s{S_H}
    s_lshl_b32 s35, s35, 14
    s_add_u32 s35, s35, {WS_KV}
    s_lshl_b32 s36, s{S_W}, 10
    s_add_u32 s36, s36, s35                 ; K: + tau*4096 + w*1024
    s_lshl_b32 s37, s{S_W}, 11
    s_add_u32 s37, s37, s35
    s_add_u32 s37, s37, 8192                ; V: + w*2048 + et*1024
    s_nop 4
    """)
    for tt in range(2):
        t = V_T + tt*4
        for et in range(2):
            d = V_ACC + (et*2+tt)*4
            A(f"v_cvt_pk_bf16_f32 v{t+2*et}, v{d}, v{d+1}\nv_cvt_pk_bf16_f32 v{t+2*et+1}, v{d+2}, v{d+3}")
        A(f"s_add_u32 s38, s36, {tt*4096}")
        A(f"buffer_store_dwordx4 {vr(t,4)}, v{V_L16}, {ws}, s38 offen sc1")
    for et in range(2):
        t = V_T + 8 + et*4
        for tt in range(2):
            d = V_ACC + 16 + (tt*2+et)*4
            A(f"v_cvt_pk_bf16_f32 v{t+2*tt}, v{d}, v{d+1}\nv_cvt_pk_bf16_f32 v{t+2*tt+1}, v{d+2}, v{d+3}")
        A(f"buffer_store_dwordx4 {vr(t,4)}, v{V_L16}, {ws}, s37 offen offset:{et*1024} sc1")
    A(f"""
    s_xor_b32 s{S_LB}, s{S_LB}, {L_X1}
    s_add_u32 s{S_SEG}, s{S_SEG}, {nrep}
    s_cmp_lt_u32 s{S_SEG}, 64
    s_cbranch_scc1 {LOOP}
    s_waitcnt vmcnt(0)
    s_barrier
    """)
    if flag:
        A(f"""
        s_cmp_eq_u32 s{S_W}, 0
        s_cbranch_scc0 {END}
        s_lshl_b32 s35, s{S_H}, 5
        s_lshl_b32 s36, s{s_rho}, 2
        s_add_u32 s35, s35, s36
        s_add_u32 s35, s35, {WS_FLAGS + F_P}
        v_mov_b32 v3, s{S_NONCE}
        v_mov_b32 v4, 0
        s_mov_b64 exec, 1
        buffer_store_dword v3, v4, {ws}, s35 offen sc1
        s_mov_b64 exec, -1
        """)
        A.label(END)
```

```python
from common import *

V_AD = 2
V_OF = 8
V_ACC = 72
V_T = 96
V_OUTA = 7
S_CG, S_SEG, S_SPIN, S_FAIL = 24, 25, 26, 19
SRD_O = 20
SPIN_MAX = 2000000
L_RED = 0

def wmap(ct, kc):
    idx = ct*32 + kc
    return ("a", idx*4) if idx < 64 else ("v", 128 + (idx-64)*4)
def wreg(ct, kc):
    k, b = wmap(ct, kc); return f"{k}[{b}:{b+3}]"

def load_wo_cols(A):
    A(f"s_mul_i32 s28, s{S_CG}, 96")
    A(f"s_mul_i32 s29, s{S_W}, {1024*1152}\ns_add_u32 s28, s28, s29")
    make_srd(A, SRD_A, KA['A_Wo'], 28, 4096*1152)
    A(f"""
    v_lshrrev_b32 v2, 4, v{V_L16}            ; lane
    s_mul_i32 s30, s{S_W}, 24576
    v_lshrrev_b32 v4, 8, v{V_L16}            ; g
    v_bfe_u32 v5, v{V_L16}, 6, 2             ; r
    v_bfe_u32 v6, v{V_L16}, 4, 2             ; cq
    v_lshl_add_u32 v4, v4, 2, v5
    v_mul_u32_u24 v4, 96, v4
    v_lshl_add_u32 v4, v6, 3, v4
    v_add_u32 v4, s30, v4
    """)
    for rnd in range(4):
        for i in range(24):
            A(f"""
            v_add_u32 v3, {64*i}, v2
            v_mul_u32_u24 v5, 43691, v3
            v_lshrrev_b32 v5, 18, v5
            v_mul_u32_u24 v6, 6, v5
            v_sub_u32 v6, v3, v6                 ; part
            v_mul_u32_u24 v5, 1152, v5
            v_lshl_add_u32 v5, v6, 4, v5
            s_add_u32 s31, s30, {i*1024}
            s_mov_b32 m0, s31
            s_mov_b32 s33, {rnd*256*1152}
            buffer_load_dwordx4 v5, s[{SRD_A}:{SRD_A+3}], s33 offen lds
            """)
        A("s_waitcnt vmcnt(0)")
        for kk in range(8):
            kc = rnd*8 + kk
            for ct in range(3):
                kind, base = wmap(ct, kc)
                for Hh in range(2):
                    A(f"ds_read_b64_tr_b16 {kind}[{base+2*Hh}:{base+2*Hh+1}], v4 offset:{kk*32*96 + Hh*16*96 + ct*32}")
            A("s_waitcnt lgkmcnt(0)")

def w_station(A, s_cg, s_rep, nrep, wait=True):
    ws = f"s[{SRD_WS}:{SRD_WS+3}]"
    A(f"s_mov_b32 s{S_CG}, s{s_cg}\ns_mov_b32 s{S_SEG}, s{s_rep}\ns_mov_b32 s{S_FAIL}, 0")
    load_wo_cols(A)
    make_srd(A, SRD_O, KA['out'], None, 2048*2304)
    A(f"""
    v_bfe_u32 v2, v{V_L16}, 4, 4
    v_mul_u32_u24 v2, 2304, v2
    v_lshrrev_b32 v3, 8, v{V_L16}
    v_lshl_add_u32 v{V_OUTA}, v3, 3, v2
    s_barrier
    """)
    LOOP = A.uid("WL"); END = A.uid("WE"); FAIL = A.uid("WF")
    A.label(LOOP)
    if wait:
        W = A.uid("WW")
        A(f"""
        s_lshl_b32 s28, s{S_SEG}, 7
        s_add_u32 s28, s28, {WS_FLAGS + F_O}
        s_mov_b32 s{S_SPIN}, {SPIN_MAX}
        v_lshrrev_b32 v2, 2, v{V_L16}
        v_and_b32 v2, 127, v2
        """)
        A.label(W)
        A(f"""
        buffer_load_dword v3, v2, {ws}, s28 offen sc1
        s_waitcnt vmcnt(0)
        v_cmp_ne_u32 vcc, s{S_NONCE}, v3
        s_cbranch_vccz {W}k
        s_sub_u32 s{S_SPIN}, s{S_SPIN}, 1
        s_cbranch_scc1 {FAIL}
        s_sleep 8
        s_branch {W}
        {W}k:
        """)
    A(f"""
    s_lshl_b32 s28, s{S_SEG}, 8
    s_lshl_b32 s29, s{S_W}, 5
    s_add_u32 s28, s28, s29
    s_lshl_b32 s28, s28, 10
    s_add_u32 s28, s28, {WS_O}               ; tt = 0
    s_add_u32 s29, s28, {128*1024}           ; tt = 1
    """)
    NS = 8
    def ld(kc):
        sl = kc % NS
        if kc % 4 == 0 and kc > 0: A("s_add_u32 s28, s28, 4096\ns_add_u32 s29, s29, 4096")
        A(f"buffer_load_dwordx4 {vr(V_OF + sl*8, 4)}, v{V_L16}, {ws}, s28 offen offset:{(kc%4)*1024}")
        A(f"buffer_load_dwordx4 {vr(V_OF + sl*8 + 4, 4)}, v{V_L16}, {ws}, s29 offen offset:{(kc%4)*1024}")
    for kc in range(NS): ld(kc)
    for kc in range(32):
        later = 2 * min(NS - 1, 31 - kc)
        A(f"s_waitcnt vmcnt({later})")
        sl = kc % NS
        for ct in range(3):
            for tt in range(2):
                d = V_ACC + (ct*2+tt)*4
                A(f"v_mfma_f32_16x16x32_bf16 {vr(d,4)}, {wreg(ct,kc)}, {vr(V_OF+sl*8+4*tt,4)}, {'0' if kc==0 else vr(d,4)}")
        if kc + NS < 32: ld(kc + NS)
    A(f"s_mul_i32 s28, s{S_W}, 6144\nv_add_u32 v2, s28, v{V_L16}\ns_nop 5")
    for t in range(6): A(f"ds_write_b128 v2, {vr(V_ACC+4*t,4)} offset:{t*1024}")
    A("s_waitcnt lgkmcnt(0)\ns_barrier")
    NOST = A.uid("WN")
    A(f"""
    s_cmp_lt_u32 s{S_W}, 3
    s_cbranch_scc0 {NOST}
    s_lshl_b32 s28, s{S_W}, 11
    v_add_u32 v2, s28, v{V_L16}
    """)
    for tt in range(2):
        for x in range(4): A(f"ds_read_b128 {vr(V_T + (tt*4+x)*4, 4)}, v2 offset:{x*6144 + tt*1024}")
    A("s_waitcnt lgkmcnt(0)")
    A(f"""
    s_mul_i32 s28, s{S_SEG}, {32*2304}
    s_mul_i32 s29, s{S_CG}, 96
    s_add_u32 s28, s28, s29
    s_lshl_b32 s29, s{S_W}, 5
    s_add_u32 s28, s28, s29
    """)
    for tt in range(2):
        b = V_T + tt*16
        for r in range(4):
            A(f"v_add_f32 v{b+r}, v{b+r}, v{b+4+r}\nv_add_f32 v{b+8+r}, v{b+8+r}, v{b+12+r}\nv_add_f32 v{b+r}, v{b+r}, v{b+8+r}")
        A(f"v_cvt_pk_bf16_f32 v{b}, v{b}, v{b+1}\nv_cvt_pk_bf16_f32 v{b+1}, v{b+2}, v{b+3}")
        if tt == 1: A(f"s_add_u32 s28, s28, {16*2304}")
        A(f"buffer_store_dwordx2 {vr(b,2)}, v{V_OUTA}, s[{SRD_O}:{SRD_O+3}], s28 offen")
    A.label(NOST)
    A(f"""
    s_barrier
    s_add_u32 s{S_SEG}, s{S_SEG}, {nrep}
    s_cmp_lt_u32 s{S_SEG}, 64
    s_cbranch_scc1 {LOOP}
    s_branch {END}
    """)
    A.label(FAIL)
    A(f"s_mov_b32 s{S_FAIL}, 1")
    A.label(END)
```

```python
import sys
sys.path.insert(0, "gen")
from common import *
import chain3 as C, pstation as P, astation as AS, wstation as W, bstation as B

KNAME = "concat_heads__memory_aug_recurrent_mem_tr__grouped_kv_mqa__prompt_kernel"
SPIN = 4000000

def poll_flags(A, s_off, nflags, fail, tmp=(2, 3), spin=35):
    ws = f"s[{SRD_WS}:{SRD_WS+3}]"
    Wl = A.uid("PW")
    a, b = tmp
    A(f"v_lshrrev_b32 v{a}, 2, v{V_L16}\nv_cmp_gt_u32 vcc, {4*nflags}, v{a}\ns_nop 1\nv_cndmask_b32 v{a}, 0, v{a}, vcc\ns_mov_b32 s{spin}, {SPIN}")
    A.label(Wl)
    A(f"""
    buffer_load_dword v{b}, v{a}, {ws}, s{s_off} offen sc1
    s_waitcnt vmcnt(0)
    v_cmp_ne_u32 vcc, s{S_NONCE}, v{b}
    s_cbranch_vccz {Wl}k
    s_sub_u32 s{spin}, s{spin}, 1
    s_cbranch_scc1 {fail}
    s_sleep 4
    s_branch {Wl}
    {Wl}k:
    """)

def build(opt=()):
    A = Asm()
    END = "K_END"
    A(f"""
    s_cmp_lt_u32 s2, 256
    s_cbranch_scc1 K_GO
    s_endpgm
    K_GO:
    s_load_dwordx2 s[4:5], s[0:1], {KA['ws']}
    s_load_dwordx2 s[20:21], s[0:1], {KA['dbg']}
    s_getreg_b32 s3, hwreg(HW_REG_XCC_ID, 0, 4)
    s_waitcnt lgkmcnt(0)
    s_mov_b32 s{SRD_WS}, s4
    s_mov_b32 s{SRD_WS+1}, s5
    s_mov_b32 s{SRD_WS+2}, {WS_SIZE}
    s_mov_b32 s{SRD_WS+3}, 0x00020000
    s_mov_b32 s12, s20
    s_mov_b32 s13, s21
    s_mov_b32 s14, 256
    s_mov_b32 s15, 0x00020000
    """)
    lane_setup(A)
    A(f"""
    s_cmp_eq_u32 s{S_W}, 0
    s_cbranch_scc0 K_TK1
    s_mov_b64 exec, 1
    v_mov_b32 v2, 1
    v_mov_b32 v3, 0
    s_mov_b32 s22, -1
    s_cmp_eq_u32 s3, 0
    s_cbranch_scc0 K_TB
    buffer_atomic_add v2, v3, s[12:15], 0 offen sc0
    s_waitcnt vmcnt(0)
    v_readfirstlane_b32 s22, v2
    s_cmp_lt_u32 s22, 32
    s_cbranch_scc1 K_TW
    K_TB:
    v_mov_b32 v2, 1
    buffer_atomic_add v2, v3, s[12:15], 0 offen offset:64 sc0
    s_waitcnt vmcnt(0)
    v_readfirstlane_b32 s23, v2              ; ticket B
    s_mov_b32 s22, -1
    s_cmp_lt_u32 s23, 224
    s_cbranch_scc1 K_TB2
    s_sub_u32 s22, 255, s23
    K_TB2:
    s_cmp_eq_u32 s23, 0
    s_cbranch_scc0 K_TW2
    s_memrealtime s[24:25]
    s_waitcnt lgkmcnt(0)
    s_or_b32 s24, s24, 1
    v_mov_b32 v2, s24
    buffer_store_dword v2, v3, s[12:15], 0 offen offset:128 sc1
    s_branch K_TW2
    K_TW:
    s_mov_b32 s23, -1
    K_TW2:
    v_mov_b32 v4, s22
    v_mov_b32 v5, s23
    ds_write_b64 v3, v[4:5]
    s_waitcnt lgkmcnt(0)
    s_mov_b64 exec, -1
    K_TK1:
    s_barrier
    v_mov_b32 v3, 0
    ds_read_b64 v[4:5], v3
    s_waitcnt lgkmcnt(0)
    v_readfirstlane_b32 s22, v4
    v_readfirstlane_b32 s23, v5
    s_barrier
    s_cmp_eq_u32 s22, -1
    s_cbranch_scc1 K_BULK
    s_branch K_CHAIN
    K_BULK:
    """)
    def get_nonce(fail):
        Wl = A.uid("NW")
        A(f"v_mov_b32 v3, 0\ns_mov_b32 s35, {SPIN}")
        A.label(Wl)
        A(f"""
        buffer_load_dword v2, v3, s[12:15], 0 offen offset:128 sc1
        s_waitcnt vmcnt(0)
        v_readfirstlane_b32 s{S_NONCE}, v2
        s_cmp_lg_u32 s{S_NONCE}, 0
        s_cbranch_scc1 {Wl}k
        s_sub_u32 s35, s35, 1
        s_cbranch_scc1 {fail}
        s_sleep 2
        s_branch {Wl}
        {Wl}k:
        """)
    A(f"s_and_b32 s{S_H}, s23, 31\ns_lshr_b32 s50, s23, 5\ns_mov_b32 s51, s23")
    get_nonce(END)
    n0 = len(A.lines)
    P.p_station(A, 50, nrep=7, flag=True)
    hz = check_hazards(A.lines[n0:], "P")
    A(f"""
    s_cmp_lt_u32 s50, 2
    s_cbranch_scc1 K_A
    s_cmp_eq_u32 s50, 2
    s_cbranch_scc1 K_WB1
    s_branch K_B2
    K_A:
    s_lshl_b32 s28, s{S_H}, 5
    s_add_u32 s28, s28, {WS_FLAGS + F_P}
    """)
    poll_flags(A, 28, 7, END)
    n0 = len(A.lines)
    AS.a_station(A, s_par=50, nrep=2, wait_chain=True, flag=True)
    hz += check_hazards(A.lines[n0:], "A")
    A(f"s_branch {END}")
    A.label("K_WB1")
    A(f"""
    s_sub_u32 s52, s51, 64                   ; 0..31
    s_cmp_lt_u32 s52, 24
    s_cbranch_scc0 K_B1
    s_cmp_ge_u32 s52, 12
    s_cselect_b32 s54, 1, 0
    s_mul_i32 s53, s54, 12
    s_sub_u32 s53, s52, s53
    """)
    n0 = len(A.lines)
    W.w_station(A, 53, 54, 2, wait=True)
    hz += check_hazards(A.lines[n0:], "W")
    A(f"s_branch {END}")
    A.label("K_B1")
    A("s_sub_u32 s53, s52, 24")
    n0 = len(A.lines)
    B.b1_station(A, 53)
    hz += check_hazards(A.lines[n0:], "B1")
    A(f"s_branch {END}")
    A.label("K_B2")
    A("s_sub_u32 s53, s51, 96")
    n0 = len(A.lines)
    B.b2_station(A, 53, wait=True)
    hz += check_hazards(A.lines[n0:], "B2")
    A(f"s_endpgm")
    A.label("K_CHAIN")
    A(f"s_mov_b32 s{C.S_H}, s22\nv_lshrrev_b32 v0, 4, v0\ns_lshl_b32 s28, s{S_W}, 6\nv_add_u32 v0, s28, v0")
    A("s_mov_b32 s60, s12\ns_mov_b32 s61, s13\ns_mov_b32 s62, s14\ns_mov_b32 s63, s15")
    C.setup_regs(A)
    C.load_qkv(A, KA['A_Wq'], 0)
    C.load_qkv(A, KA['A_Wk'], 1)
    C.load_qkv(A, KA['A_Wv'], 2)
    C.load_wo(A)
    A(f"""
    v_mov_b32 v25, 0
    s_mov_b32 s65, {SPIN}
    K_MW:
    buffer_load_dword v24, v25, s[60:63], 0 offen sc1
    buffer_load_dword v26, v25, s[60:63], 0 offen offset:64 sc1
    buffer_load_dword v27, v25, s[60:63], 0 offen offset:128 sc1
    s_waitcnt vmcnt(0)
    v_readfirstlane_b32 s28, v24
    v_readfirstlane_b32 s29, v26
    v_readfirstlane_b32 s{S_NONCE}, v27
    s_cmp_eq_u32 s{S_NONCE}, 0
    s_cbranch_scc1 K_MW2
    s_mov_b32 s64, 0
    s_cmp_ge_u32 s28, 32
    s_cbranch_scc1 K_MK
    s_mov_b32 s64, 1
    s_cmp_gt_u32 s29, 224
    s_cbranch_scc1 K_MK
    K_MW2:
    s_sub_u32 s65, s65, 1
    s_cbranch_scc1 {END}
    s_sleep 2
    s_branch K_MW
    K_MK:
    """)
    if "forceslow" in opt: A("s_mov_b32 s64, 1")
    for mode, st in ((0, ""), (1, "sc1")):
        lab = f"K_M{mode}"
        if mode == 0: A(f"s_cmp_eq_u32 s64, 1\ns_cbranch_scc1 K_M1")
        else: A.label("K_M1")
        C.chain_init_mem(A, st)
        A(f"""
        s_barrier
        s_cmp_eq_u32 s{S_W}, 0
        s_cbranch_scc0 {lab}r
        s_mov_b64 exec, 1
        v_mov_b32 v24, 1
        v_mov_b32 v25, 0
        buffer_atomic_add v24, v25, s[60:63], 0 offen offset:192
        s_mov_b64 exec, -1
        {lab}r:
        v_mov_b32 v25, 0
        s_mov_b32 s65, {SPIN}
        {lab}w:
        buffer_load_dword v24, v25, s[60:63], 0 offen offset:192 sc1
        s_waitcnt vmcnt(0)
        v_readfirstlane_b32 s28, v24
        s_cmp_ge_u32 s28, 32
        s_cbranch_scc1 {lab}k
        s_sub_u32 s65, s65, 1
        s_cbranch_scc1 {END}
        s_sleep 2
        s_branch {lab}w
        {lab}k:
        s_lshl_b32 s28, s{C.S_H}, 5
        s_add_u32 s28, s28, {WS_FLAGS + F_P}
        """)
        poll_flags(A, 28, 7, END, tmp=(24, 25), spin=65)
        A(f"""
        s_and_b32 s{C.S_TAG}, s{S_NONCE}, 0x3fff3f00
        s_add_u32 s{C.S_TAG}, s{C.S_TAG}, 1
        s_lshl_b32 s{C.S_TAG4}, s{C.S_TAG}, 2
        s_lshl_b32 s{C.S_CFO}, s{C.S_H}, 7
        s_add_u32 s{C.S_CFO}, s{C.S_CFO}, {WS_FLAGS + F_C}
        """)
        C.init_state(A)
        n0 = len(A.lines)
        C.chain_step(A, st, prof=False, nsteps=64, opt=("flags",))
        hz += check_hazards(A.lines[n0:], "chain")
        A("s_endpgm")
    A.label(END)
    return A, hz

HEADER = open("concat_heads__memory_aug_recurrent_mem_tr__grouped_kv_mqa__prompt.s.ref").read().split("; Override launch geometry")[0]

def full_text(opt=()):
    A, hz = build(opt)
    for m in hz: print("HAZARD", m)
    txt = HEADER + "; @launch grid=(256,1,1) block=(256,1,1) lds=163840\n"
    txt += f""".amdgcn_target "amdgcn-amd-amdhsa--gfx950"
.text
.globl {KNAME}
.p2align 8
.type {KNAME},@function
{KNAME}:
"""
    body = "\n".join(l.split(";")[0].rstrip().lstrip() if not l.lstrip().startswith(";") else "" for l in A.lines)
    body = "\n".join(l for l in body.split("\n") if l)
    txt += body + f"""
s_endpgm
.section .rodata,"a"
.p2align 6
.amdhsa_kernel {KNAME}
  .amdhsa_next_free_vgpr 512
  .amdhsa_next_free_sgpr 102
  .amdhsa_accum_offset 256
  .amdhsa_group_segment_fixed_size 0
  .amdhsa_kernarg_size 120
  .amdhsa_user_sgpr_count 2
  .amdhsa_user_sgpr_kernarg_segment_ptr 1
  .amdhsa_system_sgpr_workgroup_id_x 1
.end_amdhsa_kernel
"""
    return txt

if __name__ == "__main__":
    opt = tuple(a[2:] for a in sys.argv[1:] if a.startswith("--"))
    for a in sys.argv[1:]:
        if a.startswith("d="): C.DELAYS[:] = [int(x) for x in a[2:].split(",")]
        if a.startswith("g="): C.GSLEEP = int(a[2:])
        if a.startswith("g01="): C.G01 = int(a[4:])
        if a.startswith("pg="): C.PGAP = int(a[3:])
        if a.startswith("rg="): C.RGAP = int(a[3:])
    t = full_text(opt)
    out = "concat_heads__memory_aug_recurrent_mem_tr__grouped_kv_mqa__prompt.s"
    open(out, "w").write(t)
    print("written", len(t), "bytes")
```

```python
import sys
sys.path.insert(0, "gen")
from common import *
import chain3 as C, pstation as P, astation as AS, wstation as W, bstation as B

KNAME = "concat_heads__memory_aug_recurrent_mem_tr__grouped_kv_mqa__prompt_kernel"
SPIN = 4000000

def poll_flags(A, s_off, nflags, fail, tmp=(2, 3), spin=35):
    ws = f"s[{SRD_WS}:{SRD_WS+3}]"
    Wl = A.uid("PW")
    a, b = tmp
    A(f"v_lshrrev_b32 v{a}, 2, v{V_L16}\nv_cmp_gt_u32 vcc, {4*nflags}, v{a}\ns_nop 1\nv_cndmask_b32 v{a}, 0, v{a}, vcc\ns_mov_b32 s{spin}, {SPIN}")
    A.label(Wl)
    A(f"""
    buffer_load_dword v{b}, v{a}, {ws}, s{s_off} offen sc1
    s_waitcnt vmcnt(0)
    v_cmp_ne_u32 vcc, s{S_NONCE}, v{b}
    s_cbranch_vccz {Wl}k
    s_sub_u32 s{spin}, s{spin}, 1
    s_cbranch_scc1 {fail}
    s_sleep 4
    s_branch {Wl}
    {Wl}k:
    """)

def build(opt=()):
    A = Asm()
    END = "K_END"
    A(f"""
    s_cmp_lt_u32 s2, 256
    s_cbranch_scc1 K_GO
    s_endpgm
    K_GO:
    s_load_dwordx2 s[4:5], s[0:1], {KA['ws']}
    s_load_dwordx2 s[20:21], s[0:1], {KA['dbg']}
    s_getreg_b32 s3, hwreg(HW_REG_XCC_ID, 0, 4)
    s_waitcnt lgkmcnt(0)
    s_mov_b32 s{SRD_WS}, s4
    s_mov_b32 s{SRD_WS+1}, s5
    s_mov_b32 s{SRD_WS+2}, {WS_SIZE}
    s_mov_b32 s{SRD_WS+3}, 0x00020000
    s_mov_b32 s12, s20
    s_mov_b32 s13, s21
    s_mov_b32 s14, 256
    s_mov_b32 s15, 0x00020000
    """)
    lane_setup(A)
    A(f"""
    s_cmp_eq_u32 s{S_W}, 0
    s_cbranch_scc0 K_TK1
    s_mov_b64 exec, 1
    v_mov_b32 v2, 1
    v_mov_b32 v3, 0
    s_mov_b32 s22, -1
    s_cmp_eq_u32 s3, 0
    s_cbranch_scc0 K_TB
    buffer_atomic_add v2, v3, s[12:15], 0 offen sc0
    s_waitcnt vmcnt(0)
    v_readfirstlane_b32 s22, v2
    s_cmp_lt_u32 s22, 32
    s_cbranch_scc1 K_TW
    K_TB:
    v_mov_b32 v2, 1
    buffer_atomic_add v2, v3, s[12:15], 0 offen offset:64 sc0
    s_waitcnt vmcnt(0)
    v_readfirstlane_b32 s23, v2              ; ticket B
    s_mov_b32 s22, -1
    s_cmp_lt_u32 s23, 224
    s_cbranch_scc1 K_TB2
    s_sub_u32 s22, 255, s23
    K_TB2:
    s_cmp_eq_u32 s23, 0
    s_cbranch_scc0 K_TW2
    s_memrealtime s[24:25]
    s_waitcnt lgkmcnt(0)
    s_or_b32 s24, s24, 1
    v_mov_b32 v2, s24
    buffer_store_dword v2, v3, s[12:15], 0 offen offset:128 sc1
    s_branch K_TW2
    K_TW:
    s_mov_b32 s23, -1
    K_TW2:
    v_mov_b32 v4, s22
    v_mov_b32 v5, s23
    ds_write_b64 v3, v[4:5]
    s_waitcnt lgkmcnt(0)
    s_mov_b64 exec, -1
    K_TK1:
    s_barrier
    v_mov_b32 v3, 0
    ds_read_b64 v[4:5], v3
    s_waitcnt lgkmcnt(0)
    v_readfirstlane_b32 s22, v4
    v_readfirstlane_b32 s23, v5
    s_barrier
    s_cmp_eq_u32 s23, -1
    s_cbranch_scc1 K_ROK
    s_cmp_lt_u32 s23, 256
    s_cbranch_scc1 K_ROK
    s_endpgm
    K_ROK:
    s_cmp_eq_u32 s22, -1
    s_cbranch_scc1 K_BULK
    s_branch K_CHAIN
    K_BULK:
    """)
    def get_nonce(fail):
        Wl = A.uid("NW")
        A(f"v_mov_b32 v3, 0\ns_mov_b32 s35, {SPIN}")
        A.label(Wl)
        A(f"""
        buffer_load_dword v2, v3, s[12:15], 0 offen offset:128 sc1
        s_waitcnt vmcnt(0)
        v_readfirstlane_b32 s{S_NONCE}, v2
        s_cmp_lg_u32 s{S_NONCE}, 0
        s_cbranch_scc1 {Wl}k
        s_sub_u32 s35, s35, 1
        s_cbranch_scc1 {fail}
        s_sleep 2
        s_branch {Wl}
        {Wl}k:
        """)
    A(f"s_and_b32 s{S_H}, s23, 31\ns_lshr_b32 s50, s23, 5\ns_mov_b32 s51, s23")
    get_nonce(END)
    n0 = len(A.lines)
    P.p_station(A, 50, nrep=7, flag=True)
    hz = check_hazards(A.lines[n0:], "P")
    A(f"""
    s_cmp_lt_u32 s50, 2
    s_cbranch_scc1 K_A
    s_cmp_eq_u32 s50, 2
    s_cbranch_scc1 K_WB1
    s_branch K_B2
    K_A:
    s_lshl_b32 s28, s{S_H}, 5
    s_add_u32 s28, s28, {WS_FLAGS + F_P}
    """)
    poll_flags(A, 28, 7, END)
    n0 = len(A.lines)
    AS.a_station(A, s_par=50, nrep=2, wait_chain=True, flag=True)
    hz += check_hazards(A.lines[n0:], "A")
    A(f"s_branch {END}")
    A.label("K_WB1")
    A(f"""
    s_sub_u32 s52, s51, 64                   ; 0..31
    s_cmp_lt_u32 s52, 24
    s_cbranch_scc0 K_B1
    s_cmp_ge_u32 s52, 12
    s_cselect_b32 s54, 1, 0
    s_mul_i32 s53, s54, 12
    s_sub_u32 s53, s52, s53
    """)
    n0 = len(A.lines)
    W.w_station(A, 53, 54, 2, wait=True)
    hz += check_hazards(A.lines[n0:], "W")
    A(f"s_branch {END}")
    A.label("K_B1")
    A("s_sub_u32 s53, s52, 24")
    n0 = len(A.lines)
    B.b1_station(A, 53)
    hz += check_hazards(A.lines[n0:], "B1")
    A(f"s_branch {END}")
    A.label("K_B2")
    A("s_sub_u32 s53, s51, 96")
    n0 = len(A.lines)
    B.b2_station(A, 53, wait=True)
    hz += check_hazards(A.lines[n0:], "B2")
    A(f"s_endpgm")
    A.label("K_CHAIN")
    A(f"s_mov_b32 s{C.S_H}, s22\nv_lshrrev_b32 v0, 4, v0\ns_lshl_b32 s28, s{S_W}, 6\nv_add_u32 v0, s28, v0")
    A("s_mov_b32 s60, s12\ns_mov_b32 s61, s13\ns_mov_b32 s62, s14\ns_mov_b32 s63, s15")
    C.setup_regs(A)
    C.load_qkv(A, KA['A_Wq'], 0)
    C.load_qkv(A, KA['A_Wk'], 1)
    C.load_qkv(A, KA['A_Wv'], 2)
    C.load_wo(A)
    A(f"""
    v_mov_b32 v25, 0
    s_mov_b32 s65, {SPIN}
    K_MW:
    buffer_load_dword v24, v25, s[60:63], 0 offen sc1
    buffer_load_dword v26, v25, s[60:63], 0 offen offset:64 sc1
    buffer_load_dword v27, v25, s[60:63], 0 offen offset:128 sc1
    s_waitcnt vmcnt(0)
    v_readfirstlane_b32 s28, v24
    v_readfirstlane_b32 s29, v26
    v_readfirstlane_b32 s{S_NONCE}, v27
    s_cmp_eq_u32 s{S_NONCE}, 0
    s_cbranch_scc1 K_MW2
    s_mov_b32 s64, 0
    s_cmp_ge_u32 s28, 32
    s_cbranch_scc1 K_MK
    s_mov_b32 s64, 1
    s_cmp_gt_u32 s29, 224
    s_cbranch_scc1 K_MK
    K_MW2:
    s_sub_u32 s65, s65, 1
    s_cbranch_scc1 {END}
    s_sleep 2
    s_branch K_MW
    K_MK:
    """)
    if "forceslow" in opt: A("s_mov_b32 s64, 1")
    for mode, st in ((0, ""), (1, "sc1")):
        lab = f"K_M{mode}"
        if mode == 0: A(f"s_cmp_eq_u32 s64, 1\ns_cbranch_scc1 K_M1")
        else: A.label("K_M1")
        C.chain_init_mem(A, st)
        A(f"""
        s_barrier
        s_cmp_eq_u32 s{S_W}, 0
        s_cbranch_scc0 {lab}r
        s_mov_b64 exec, 1
        v_mov_b32 v24, 1
        v_mov_b32 v25, 0
        buffer_atomic_add v24, v25, s[60:63], 0 offen offset:192
        s_mov_b64 exec, -1
        {lab}r:
        v_mov_b32 v25, 0
        s_mov_b32 s65, {SPIN}
        {lab}w:
        buffer_load_dword v24, v25, s[60:63], 0 offen offset:192 sc1
        s_waitcnt vmcnt(0)
        v_readfirstlane_b32 s28, v24
        s_cmp_ge_u32 s28, 32
        s_cbranch_scc1 {lab}k
        s_sub_u32 s65, s65, 1
        s_cbranch_scc1 {END}
        s_sleep 2
        s_branch {lab}w
        {lab}k:
        s_lshl_b32 s28, s{C.S_H}, 5
        s_add_u32 s28, s28, {WS_FLAGS + F_P}
        """)
        poll_flags(A, 28, 7, END, tmp=(24, 25), spin=65)
        A(f"""
        s_and_b32 s{C.S_TAG}, s{S_NONCE}, 0x3fff3f00
        s_add_u32 s{C.S_TAG}, s{C.S_TAG}, 1
        s_lshl_b32 s{C.S_TAG4}, s{C.S_TAG}, 2
        s_lshl_b32 s{C.S_CFO}, s{C.S_H}, 7
        s_add_u32 s{C.S_CFO}, s{C.S_CFO}, {WS_FLAGS + F_C}
        """)
        C.init_state(A)
        n0 = len(A.lines)
        C.chain_step(A, st, prof=False, nsteps=64, opt=("flags",))
        hz += check_hazards(A.lines[n0:], "chain")
        A("s_endpgm")
    A.label(END)
    return A, hz

HEADER = open("concat_heads__memory_aug_recurrent_mem_tr__grouped_kv_mqa__prompt.s.ref").read().split("; Override launch geometry")[0]

def full_text(opt=()):
    A, hz = build(opt)
    for m in hz: print("HAZARD", m)
    txt = HEADER + "; @launch grid=(256,1,1) block=(256,1,1) lds=163840\n"
    txt += f""".amdgcn_target "amdgcn-amd-amdhsa--gfx950"
.text
.globl {KNAME}
.p2align 8
.type {KNAME},@function
{KNAME}:
"""
    body = "\n".join(l.split(";")[0].rstrip().lstrip() if not l.lstrip().startswith(";") else "" for l in A.lines)
    body = "\n".join(l for l in body.split("\n") if l)
    txt += body + f"""
s_endpgm
.section .rodata,"a"
.p2align 6
.amdhsa_kernel {KNAME}
  .amdhsa_next_free_vgpr 512
  .amdhsa_next_free_sgpr 102
  .amdhsa_accum_offset 256
  .amdhsa_group_segment_fixed_size 0
  .amdhsa_kernarg_size 120
  .amdhsa_user_sgpr_count 2
  .amdhsa_user_sgpr_kernarg_segment_ptr 1
  .amdhsa_system_sgpr_workgroup_id_x 1
.end_amdhsa_kernel
"""
    return txt

if __name__ == "__main__":
    opt = tuple(a[2:] for a in sys.argv[1:] if a.startswith("--"))
    for a in sys.argv[1:]:
        if a.startswith("d="): C.DELAYS[:] = [int(x) for x in a[2:].split(",")]
        if a.startswith("g="): C.GSLEEP = int(a[2:])
        if a.startswith("g01="): C.G01 = int(a[4:])
        if a.startswith("pg="): C.PGAP = int(a[3:])
        if a.startswith("rg="): C.RGAP = int(a[3:])
    t = full_text(opt)
    out = "concat_heads__memory_aug_recurrent_mem_tr__grouped_kv_mqa__prompt.s"
    open(out, "w").write(t)
    print("written", len(t), "bytes")
```

```python
from common import *

V_XO, V_T3, V_QW, V_QR, V_MO, V_KFW, V_VFW, V_VFR = 2, 3, 4, 5, 6, 7, 8, 9
V_T0, V_T1 = 10, 11
V_ONES = 12
V_BIAS = 16
V_BM = 24
V_XF = 28
V_QA = 52
V_MF = 28
V_KA, V_VA = 40, 48
V_QF = 28
V_AR = 44
V_SM = 56
V_SX = 60
V_PX = 68
V_PM = 72
V_O = 28
V_L = 76
V_TMP = 56
SRD_X = 20
S_SEG, S_ROW, S_LB, S_EH, S_SPIN = 24, 25, 26, 34, 35
S_KVO, S_MO, S_OO, S_KB = 40, 41, 43, 42
S_LO, S_HI = 44, 45
S_FAIL = 19
L_X0, L_X1 = 0, 36864
L_QF = 73728
L_KF = L_QF + 8192
L_VF = L_KF + 4096
L_KV0 = L_VF + 4096
L_MF = L_KV0 + 32768
QS = f32bits(QSCALE)
SPIN_MAX = 2000000

def wmap(mat):
    def f(et, cc):
        idx = mat*36 + et*18 + cc
        return ("a", idx*4) if idx < 64 else ("v", 80 + (idx-64)*4)
    return f
def wreg(mat, et, cc):
    k, b = wmap(mat)(et, cc); return f"{k}[{b}:{b+3}]"
def mf32(d, a, b, c): return f"v_mfma_f32_16x16x32_bf16 {vr(d,4)}, {a}, {b}, {c}"
def mf16(d, a, b, c): return f"v_mfma_f32_16x16x16_bf16 {vr(d,4)}, {vr(a,2)}, {vr(b,2)}, {c}"

def a_station(A, s_par=None, nrep=1, wait_chain=True, flag=True):
    ws = f"s[{SRD_WS}:{SRD_WS+3}]"
    load_head_slices_pipelined(A, [KA['A_Wq'], KA['A_Wk'], KA['A_Wv']], 0, natural_tr(A, [wmap(0), wmap(1), wmap(2)], 0))
    make_srd(A, SRD_X, KA['A_x'], None, 2048*1152)
    A(f"""
    v_bfe_u32 v28, v{V_L16}, 4, 4            ; n
    v_lshrrev_b32 v29, 8, v{V_L16}           ; g
    v_mul_u32_u24 v{V_XO}, 1152, v28
    v_lshl_add_u32 v{V_XO}, v29, 4, v{V_XO}
    s_lshl_b32 s28, s{S_W}, 10
    s_add_u32 s29, s28, {L_QF}
    v_add_u32 v{V_QW}, s29, v{V_L16}
    s_add_u32 s29, s28, {L_KF}
    v_add_u32 v{V_KFW}, s29, v{V_L16}
    s_and_b32 s28, s{S_W}, 1
    s_lshl_b32 s28, s28, 12
    s_add_u32 s28, s28, {L_QF}
    v_add_u32 v{V_QR}, s28, v{V_L16}
    s_lshr_b32 s{S_EH}, s{S_W}, 1
    v_lshrrev_b32 v30, 1, v{V_L16}           ; lane*8
    s_lshl_b32 s28, s{S_W}, 10
    s_add_u32 s28, s28, {L_VF}
    v_add_u32 v{V_VFW}, s28, v30             ; tiles 2w, 2w+1 (+512)
    s_lshl_b32 s28, s{S_EH}, 11
    s_add_u32 s28, s28, {L_VF}
    v_add_u32 v{V_VFR}, s28, v30
    v_and_b32 v30, 7, v28
    v_lshrrev_b32 v31, 1, v30
    v_lshlrev_b32 v31, 2, v31
    v_and_b32 v30, 1, v30
    v_add_u32 v31, v31, v30
    v_and_b32 v30, 1, v29
    v_lshl_add_u32 v31, v30, 1, v31
    v_lshlrev_b32 v31, 4, v31
    v_lshrrev_b32 v30, 1, v29
    v_lshl_add_u32 v{V_MO}, v30, 8, v31
    s_and_b32 s28, s{S_W}, 1
    s_lshl_b32 s28, s28, 4
    v_add_u32 v30, s28, v28                  ; query
    v_lshlrev_b32 v31, 2, v29                ; 4g
    v_mov_b32 v32, 0xf149f2ca                ; -1e30
    """)
    for tau in range(2):
        for r in range(4):
            A(f"v_add_u32 v33, {16*tau + r}, v31\nv_cmp_gt_u32 vcc, v33, v30\ns_nop 1\nv_cndmask_b32 v{V_BIAS + 4*tau + r}, 0, v32, vcc")
    A(f"v_cmp_lt_u32 vcc, 1, v29\ns_nop 1")
    for r in range(4): A(f"v_cndmask_b32 v{V_BM + r}, 0, v32, vcc")
    for i in range(4): A(f"v_mov_b32 v{V_ONES+i}, 0x3f803f80")
    A(f"""
    s_mov_b32 s{S_LO}, 0x21800000
    s_mov_b32 s{S_HI}, 0x5f800000
    s_mov_b32 s{S_SEG}, {('s%d' % s_par) if s_par is not None else 0}
    s_mul_i32 s{S_ROW}, s{S_SEG}, {32*1152}
    s_mov_b32 s{S_LB}, {L_X0}
    s_mov_b32 s{S_KB}, {L_KV0}
    s_mov_b32 s{S_FAIL}, 0
    """)
    def kv_dma(s_seg, s_lds):
        A(f"s_lshl_b32 s28, s{s_seg}, 5\ns_add_u32 s28, s28, s{S_H}\ns_lshl_b32 s28, s28, 14\ns_add_u32 s28, s28, {WS_KV}")
        A(f"s_lshl_b32 s29, s{S_W}, 12\ns_add_u32 s28, s28, s29\ns_add_u32 s29, s29, s{s_lds}")
        for i in range(4):
            A(f"s_mov_b32 m0, s29\ns_add_u32 s29, s29, 1024\nbuffer_load_dwordx4 v{V_L16}, {ws}, s28 offen lds\ns_add_u32 s28, s28, 1024")
    x_dma(A, SRD_X, V_XO, S_ROW, S_LB)
    kv_dma(S_SEG, S_KB)
    V_OA = V_O
    LOOP = A.uid("AL"); NODMA = A.uid("AN"); END = A.uid("AE"); FAIL = A.uid("AF"); SLOW = A.uid("AS"); BACK = A.uid("AB")
    A.label(LOOP)
    A("s_waitcnt vmcnt(0) lgkmcnt(0)\ns_barrier")
    A(f"""
    s_add_u32 s37, s{S_SEG}, {nrep}
    s_cmp_lt_u32 s37, 64
    s_cbranch_scc0 {NODMA}
    s_mul_i32 s{S_ROW}, s37, {32*1152}
    s_xor_b32 s36, s{S_LB}, {L_X1}
    s_xor_b32 s38, s{S_KB}, {L_KV0 ^ (L_KV0 + 16384)}
    """)
    x_dma(A, SRD_X, V_XO, S_ROW, 36)
    kv_dma(37, 38)
    A.label(NODMA)
    A(f"v_add_u32 v{V_T3}, s{S_LB}, v{V_L16}")
    def xr(cc):
        st = cc % 3
        for tt in range(2):
            A(f"ds_read_b128 {vr(V_XF + (st*2+tt)*4, 4)}, v{V_T3} offset:{(tt*18+cc)*1024}")
    xr(0); xr(1)
    for cc in range(18):
        if cc + 2 < 18: xr(cc + 2)
        A(f"s_waitcnt lgkmcnt({2 * min(2, 17 - cc)})")
        st = cc % 3
        for et in range(2):
            for tt in range(2):
                d = V_QA + (et*2+tt)*4
                A(mf32(d, wreg(0,et,cc), vr(V_XF+(st*2+tt)*4,4), '0' if cc==0 else vr(d,4)))
    A(f"s_mov_b32 s29, {QS:#x}\ns_nop 6")
    for tt in range(2):
        t = V_XF + 4*tt
        for et in range(2):
            d = V_QA + (et*2+tt)*4
            for r in range(4): A(f"v_mul_f32 v{d+r}, s29, v{d+r}")
            A(f"v_cvt_pk_bf16_f32 v{t+2*et}, v{d}, v{d+1}\nv_cvt_pk_bf16_f32 v{t+2*et+1}, v{d+2}, v{d+3}")
        A(f"ds_write_b128 v{V_QW}, {vr(t,4)} offset:{tt*4096}")
    if wait_chain:
        W = A.uid("AW"); OK = A.uid("AK")
        A(f"""
        s_mov_b32 s28, {WS_FLAGS + F_C}
        s_mov_b32 s{S_SPIN}, {SPIN_MAX}
        v_lshrrev_b32 v{V_T0}, 2, v{V_L16}
        v_cmp_gt_u32 vcc, 36, v{V_T0}
        s_nop 1
        v_cndmask_b32 v{V_T0}, 0, v{V_T0}, vcc
        s_add_u32 s29, s{S_NONCE}, s{S_SEG}
        s_add_u32 s29, s29, 1                ; nonce + s + 1
        s_sub_u32 s30, 63, s{S_SEG}
        """)
        A.label(W)
        A(f"""
        buffer_load_dword v{V_T1}, v{V_T0}, {ws}, s28 offen sc1
        s_waitcnt vmcnt(0)
        v_subrev_u32 v{V_T1}, s29, v{V_T1}
        v_cmp_lt_u32 vcc, s30, v{V_T1}
        s_cbranch_vccz {OK}
        s_sub_u32 s{S_SPIN}, s{S_SPIN}, 1
        s_cbranch_scc1 {FAIL}
        s_sleep 4
        s_branch {W}
        """)
        A.label(OK)
    A(f"s_lshl_b32 s{S_MO}, s{S_SEG}, 14\ns_add_u32 s{S_MO}, s{S_MO}, {WS_MEMS}")
    A(f"s_lshl_b32 s28, s{S_W}, 9\ns_add_u32 s28, s28, s{S_MO}\ns_lshl_b32 s29, s{S_W}, 10\ns_add_u32 s29, s29, {L_MF}")
    for i in range(5):
        if i == 4:
            NM = A.uid("ANM")
            A(f"s_cmp_lt_u32 s{S_W}, 2\ns_cbranch_scc0 {NM}")
        A(f"s_mov_b32 m0, s29\ns_add_u32 s29, s29, 4096\nbuffer_load_dwordx4 v{V_MO}, {ws}, s28 offen lds\ns_add_u32 s28, s28, 2048")
        if i == 4: A.label(NM)
    A("s_waitcnt vmcnt(0) lgkmcnt(0)\ns_barrier")
    A(f"v_add_u32 v{V_T0}, {L_MF}, v{V_L16}")
    def mr(cc): A(f"ds_read_b128 {vr(V_MF + (cc%3)*4, 4)}, v{V_T0} offset:{cc*1024}")
    mr(0); mr(1)
    for cc in range(18):
        if cc + 2 < 18: mr(cc + 2)
        A(f"s_waitcnt lgkmcnt({min(2, 17 - cc)})")
        m = vr(V_MF + (cc%3)*4, 4)
        for et in range(2):
            A(mf32(V_KA+4*et, wreg(1,et,cc), m, '0' if cc==0 else vr(V_KA+4*et,4)))
            A(mf32(V_VA+4*et, m, wreg(2,et,cc), '0' if cc==0 else vr(V_VA+4*et,4)))
    A("s_nop 7")
    t = V_SM
    for et in range(2):
        d = V_KA + 4*et
        A(f"v_cvt_pk_bf16_f32 v{t+2*et}, v{d}, v{d+1}\nv_cvt_pk_bf16_f32 v{t+2*et+1}, v{d+2}, v{d+3}")
    A(f"ds_write_b128 v{V_KFW}, {vr(t,4)}")
    for et in range(2):
        d = V_VA + 4*et
        A(f"v_cvt_pk_bf16_f32 v{d}, v{d}, v{d+1}\nv_cvt_pk_bf16_f32 v{d+1}, v{d+2}, v{d+3}")
        A(f"ds_write_b64 v{V_VFW}, {vr(d,2)} offset:{et*512}")
    A("s_waitcnt lgkmcnt(0)\ns_barrier")
    for c in range(4):
        A(f"ds_read_b128 {vr(V_QF+4*c,4)}, v{V_QR} offset:{c*1024}")
    A(f"v_add_u32 v{V_T3}, s{S_KB}, v{V_L16}\nv_add_u32 v{V_T0}, {L_KF}, v{V_L16}")
    def scores():
        src = [(V_T0, c*1024) for c in range(4)] + [(V_T3, tau*4096 + c*1024) for tau in range(2) for c in range(4)]
        def rd(i): A(f"ds_read_b128 {vr(V_AR + (i%3)*4, 4)}, v{src[i][0]} offset:{src[i][1]}")
        rd(0); rd(1)
        for i in range(12):
            if i + 2 < 12: rd(i + 2)
            A(f"s_waitcnt lgkmcnt({min(2, 11 - i)})")
            c = i % 4
            if i < 4: d, c0 = V_SM, vr(V_BM,4)
            else: d, c0 = V_SX + 4*((i-4)//4), vr(V_BIAS + 4*((i-4)//4), 4)
            A(mf32(d, vr(V_AR + (i%3)*4, 4), vr(V_QF+4*c,4), c0 if c == 0 else vr(d,4)))
        A("s_nop 7\ns_nop 0")
    def tail():
        A(f"v_cvt_pk_bf16_f32 v{V_PM}, v{V_SM}, v{V_SM+1}\nv_cvt_pk_bf16_f32 v{V_PM+1}, v{V_SM+2}, v{V_SM+3}")
        A(f"v_cvt_pk_bf16_f32 v{V_PX}, v{V_SX}, v{V_SX+1}\nv_cvt_pk_bf16_f32 v{V_PX+1}, v{V_SX+2}, v{V_SX+3}")
        A(f"v_cvt_pk_bf16_f32 v{V_PX+2}, v{V_SX+4}, v{V_SX+5}\nv_cvt_pk_bf16_f32 v{V_PX+3}, v{V_SX+6}, v{V_SX+7}")
        A(f"s_lshl_b32 s28, s{S_EH}, 12\ns_add_u32 s28, s28, 8192\nv_add_u32 v{V_T1}, s28, v{V_T3}")
        VMR = V_SM
        for j in range(3): A(f"ds_read_b128 {vr(V_AR+4*j,4)}, v{V_T1} offset:{j*1024}")
        for j in range(4): A(f"ds_read_b64 {vr(VMR+2*j,2)}, v{V_VFR} offset:{j*512}")
        A(mf32(V_L, vr(V_ONES,4), vr(V_PX,4), '0'))
        A("s_waitcnt lgkmcnt(0)")
        for j in range(3): A(mf32(V_OA+4*j, vr(V_AR+4*j,4), vr(V_PX,4), '0'))
        A(f"ds_read_b128 {vr(V_AR,4)}, v{V_T1} offset:3072\ns_waitcnt lgkmcnt(0)")
        A(mf32(V_OA+12, vr(V_AR,4), vr(V_PX,4), '0'))
        A("s_nop 7")
        A(mf16(V_L, V_ONES, V_PM, vr(V_L,4)))
        for j in range(4): A(mf16(V_OA+4*j, VMR+2*j, V_PM, vr(V_OA+4*j,4)))
        A("s_nop 7")
    vals = list(range(V_SM, V_SM+4)) + list(range(V_SX, V_SX+8))
    scores()
    for r in vals: A(f"v_exp_f32 v{r}, v{r}")
    A("s_nop 0")
    tail()
    A(f"v_mov_b32 v{V_T0}, s{S_HI}\nv_med3_f32 v{V_T0}, v{V_L}, s{S_LO}, v{V_T0}\nv_cmp_neq_f32 vcc, v{V_T0}, v{V_L}")
    A(f"s_cbranch_vccnz {SLOW}")
    A.label(BACK)
    A(f"v_rcp_f32 v{V_T0}, v{V_L}\ns_nop 0")
    A(f"""
    s_lshl_b32 s28, s{S_SEG}, 1
    s_and_b32 s29, s{S_W}, 1
    s_add_u32 s28, s28, s29                  ; s*2 + tt
    s_lshl_b32 s28, s28, 7
    s_lshl_b32 s29, s{S_H}, 2
    s_add_u32 s28, s28, s29
    s_lshl_b32 s29, s{S_EH}, 1
    s_add_u32 s28, s28, s29                  ; + h*4 + 2eh
    s_lshl_b32 s28, s28, 10
    s_add_u32 s{S_OO}, s28, {WS_O}
    """)
    for c2 in range(2):
        t = 64 + 4*c2
        for half in range(2):
            o = V_OA + 4*(2*c2+half)
            for r in range(4): A(f"v_mul_f32 v{o+r}, v{o+r}, v{V_T0}")
            A(f"v_cvt_pk_bf16_f32 v{t+2*half}, v{o}, v{o+1}\nv_cvt_pk_bf16_f32 v{t+2*half+1}, v{o+2}, v{o+3}")
        A(f"buffer_store_dwordx4 {vr(t,4)}, v{V_L16}, {ws}, s{S_OO} offen offset:{c2*1024} sc1")
    A("s_waitcnt vmcnt(0)\ns_barrier")
    if flag:
        NF = A.uid("ANF")
        A(f"""
        s_cmp_eq_u32 s{S_W}, 0
        s_cbranch_scc0 {NF}
        s_lshl_b32 s28, s{S_SEG}, 7
        s_lshl_b32 s29, s{S_H}, 2
        s_add_u32 s28, s28, s29
        s_add_u32 s28, s28, {WS_FLAGS + F_O}
        v_mov_b32 v{V_T0}, s{S_NONCE}
        v_mov_b32 v{V_T1}, 0
        s_mov_b64 exec, 1
        buffer_store_dword v{V_T0}, v{V_T1}, {ws}, s28 offen sc1
        s_mov_b64 exec, -1
        """)
        A.label(NF)
    A(f"""
    s_xor_b32 s{S_LB}, s{S_LB}, {L_X1}
    s_xor_b32 s{S_KB}, s{S_KB}, {L_KV0 ^ (L_KV0 + 16384)}
    s_add_u32 s{S_SEG}, s{S_SEG}, {nrep}
    s_cmp_lt_u32 s{S_SEG}, 64
    s_cbranch_scc1 {LOOP}
    s_branch {END}
    """)
    A.label(SLOW)
    A("s_nop 7")
    for c in range(4):
        A(f"ds_read_b128 {vr(V_QF+4*c,4)}, v{V_QR} offset:{c*1024}")
    A(f"v_add_u32 v{V_T0}, {L_KF}, v{V_L16}\ns_waitcnt lgkmcnt(0)")
    scores()
    m = V_T0; t = V_T1
    A(f"v_max3_f32 v{m}, v{vals[0]}, v{vals[1]}, v{vals[2]}")
    for i in range(3, 11, 2): A(f"v_max3_f32 v{m}, v{vals[i]}, v{vals[i+1]}, v{m}")
    A(f"v_max_f32 v{m}, v{vals[11]}, v{m}")
    A(f"v_mov_b32 v{t}, v{m}\ns_nop 1\nv_permlane32_swap_b32 v{t}, v{m}\ns_nop 1\nv_max_f32 v{m}, v{m}, v{t}")
    A(f"v_mov_b32 v{t}, v{m}\ns_nop 1\nv_permlane16_swap_b32 v{t}, v{m}\ns_nop 1\nv_max_f32 v{m}, v{m}, v{t}")
    for r in vals: A(f"v_sub_f32 v{r}, v{r}, v{m}")
    for r in vals: A(f"v_exp_f32 v{r}, v{r}")
    A("s_nop 0")
    tail()
    A(f"s_branch {BACK}")
    A.label(FAIL)
    A(f"s_mov_b32 s{S_FAIL}, 1")
    A.label(END)
```

```python
from asmlib import *
from layout import *
import struct

def f32bits(x): return struct.unpack("<I", struct.pack("<f", x))[0]

V_L16, V_IDX, V_QKW, V_TR, V_OW, V_P1, V_RD, V_MST, V_WO, V_SR = 0, 1, 2, 3, 4, 5, 6, 7, 8, 9
V_ONES = 52
V_SX = 14
V_PM = 18
V_ZERO = 19
V_OUT = 14
V_SEL = 48
V_PF = 6
NRING = 4
V_VX0, V_VX1 = 20, 10
S_ONES = 12
V_R = 24
V_AQ = 40
V_F23 = 48
V_AK = 56
V_KA = 64
V_KB = 72
def F(c): return [V_AQ, V_AQ + 4, V_F23, V_F23 + 4][c]
def KX(c): return [V_KA, V_KA + 4, V_KB, V_KB + 4][c]
V_AV = V_KA
V_VX = V_KB
V_AVX = V_AK
V_S0 = V_KA
V_SM = V_KA + 4

S_H, S_W, S_STEP, S_FAIL = 16, 17, 18, 19
S_P1, S_MC, S_MN, S_MT = 20, 21, 22, 23
S_KV, S_KM, S_SPIN = 24, 25, 27
S_T0, S_T1, S_T2 = 28, 29, 30
S_GW = 31
S_VALID = 32
S_MMASK = 34
S_TAU512 = 36
S_T3, S_T4 = 37, 38
S_TAG, S_TAG4 = 39, 40
S_MC6 = 46
S_SELO = 50
S_KXO, S_VXO = 47, 49
SRD_WS = 8
SRD_W = 12
SPIN_MAX = 400000
STAMPS = ['0','1','3','4','5','6','7','8','11','12','13']
DELAYS = [0, 1, 2]
S_LHI = 44
S_CFO = 43
S_PFO, S_PRHO, S_PKK = 42, 68, 69
S_PF0, S_PF1, S_PFA = 45, 26, 51
GSLEEP = 0
PGAP = 1
PUB0 = 2
PUBG = 1
RGAP = 2
G01 = 0
CUT = None
PROF0 = 54

def wfrag(mat, et, c):
    idx = mat * 18 + et * 9 + c
    if idx < 32: return ar(idx * 8, 8)
    return vr(80 + (idx - 32) * 8, 8)
def wfrag_regs(mat, et, c):
    idx = mat * 18 + et * 9 + c
    return ("a", idx * 8) if idx < 32 else ("v", 80 + (idx - 32) * 8)

def load_qkv(A, kaoff, mat):
    lw = A.uid("LW"); lr = A.uid("LR")
    A(f"""
    s_load_dwordx2 s[4:5], s[0:1], {kaoff}
    s_waitcnt lgkmcnt(0)
    s_lshl_b32 s{S_T0}, s{S_H}, 8
    s_add_u32 s{SRD_W}, s4, s{S_T0}
    s_addc_u32 s{SRD_W+1}, s5, 0
    s_sub_u32 s{SRD_W+2}, {576*8192}, s{S_T0}
    s_mov_b32 s{SRD_W+3}, 0x00020000
    v_lshrrev_b32 v24, 8, v{V_L16}          ; l>>4
    v_and_b32 v25, 1, v24
    s_lshl_b32 s{S_T0}, s{S_W}, 1           ; (w&1)<<1 | (w>>1)<<2 == w<<1
    v_or_b32 v25, s{S_T0}, v25              ; f
    v_bfe_u32 v26, v{V_L16}, 5, 3           ; (l&15)>>1
    v_xor_b32 v26, v26, v25
    v_lshlrev_b32 v26, 5, v26
    v_lshl_add_u32 v26, v24, 13, v26
    v_and_b32 v27, 16, v{V_L16}             ; (l&1)*16
    v_add_u32 v26, v26, v27
    s_lshl_b32 s{S_T0}, s{S_W}, 15          ; soffset = a*32768, a = 4i + w
    s_lshl_b32 s{S_T1}, s{S_W}, 10
    s_add_u32 s{S_T1}, s{S_T1}, {L_WO}      ; m0 = L_WO + a*1024
    s_mov_b32 s{S_T2}, 0
    {lw}:
    s_mov_b32 m0, s{S_T1}
    s_nop 0
    buffer_load_dwordx4 v26, s[{SRD_W}:{SRD_W+3}], s{S_T0} offen lds
    s_add_u32 s{S_T0}, s{S_T0}, {4*32768}
    s_add_u32 s{S_T1}, s{S_T1}, 4096
    s_add_u32 s{S_T2}, s{S_T2}, 1
    s_cmp_lt_u32 s{S_T2}, 36
    s_cbranch_scc1 {lw}
    s_waitcnt vmcnt(0)
    s_barrier
    v_lshrrev_b32 v24, 8, v{V_L16}          ; gB
    v_bfe_u32 v25, v{V_L16}, 6, 2           ; r = n>>2
    v_bfe_u32 v26, v{V_L16}, 4, 2           ; cq = n&3
    v_lshrrev_b32 v27, 1, v24               ; gB>>1
    v_lshlrev_b32 v27, 4, v27
    v_lshrrev_b32 v28, 1, v25               ; r>>1
    v_lshl_add_u32 v27, v28, 3, v27
    v_and_b32 v29, 1, v24                   ; gB&1
    v_lshl_add_u32 v27, v29, 2, v27
    v_and_b32 v30, 1, v25                   ; r&1
    v_add_u32 v27, v27, v30                 ; row
    v_lshlrev_b32 v27, 8, v27
    v_lshl_add_u32 v30, v29, 1, v30
    v_lshl_add_u32 v30, v28, 2, v30         ; f
    v_lshl_add_u32 v27, v26, 3, v27         ; + cq*8
    v_add_u32 v27, {L_WO}, v27
    s_lshl_b32 s{S_T0}, s{S_W}, 1
    """)
    for et in range(2):
        A(f"""
        s_add_u32 s{S_T1}, s{S_T0}, {et}
        v_xor_b32 v31, s{S_T1}, v30
        v_lshl_add_u32 v31, v31, 5, v27
        """)
        for c in range(9):
            kind, base = wfrag_regs(mat, et, c)
            for Hh in range(2):
                for rr in range(2):
                    reg = base + 4 * Hh + 2 * rr
                    A(f"ds_read_b64_tr_b16 {kind}[{reg}:{reg+1}], v31 offset:{Hh*8192 + rr*512}")
            A(f"s_waitcnt lgkmcnt(0)\nv_add_u32 v31, 16384, v31")
    A("s_barrier")

def load_wo(A):
    lw = A.uid("LW")
    A(f"""
    s_load_dwordx2 s[4:5], s[0:1], {KA['A_Wo']}
    s_waitcnt lgkmcnt(0)
    s_mul_i32 s{S_T0}, s{S_H}, {128*1152}
    s_add_u32 s{SRD_W}, s4, s{S_T0}
    s_addc_u32 s{SRD_W+1}, s5, 0
    s_mov_b32 s{SRD_W+2}, {128*1152}
    s_mov_b32 s{SRD_W+3}, 0x00020000
    v_lshrrev_b32 v24, 5, v{V_L16}          ; l>>1
    v_mul_u32_u24 v24, 1152, v24
    v_and_b32 v25, 16, v{V_L16}
    v_add_u32 v24, v24, v25
    """)
    for sg in range(3):
        for tau in range(3):
            for a in range(4):
                A(f"""
                s_mul_i32 s{S_T0}, s{S_W}, 96
                s_add_u32 s{S_T0}, s{S_T0}, {(12*sg + tau)*32 + a*32*1152}
                s_mul_i32 s{S_T1}, s{S_W}, 36864
                s_add_u32 s{S_T1}, s{S_T1}, {L_WO + (sg*3+tau)*4096 + a*1024}
                s_mov_b32 m0, s{S_T1}
                s_nop 0
                buffer_load_dwordx4 v24, s[{SRD_W}:{SRD_W+3}], s{S_T0} offen lds
                """)
    A("s_waitcnt vmcnt(0)")
    A(f"""
    v_lshrrev_b32 v24, 8, v{V_L16}          ; gB
    v_bfe_u32 v25, v{V_L16}, 6, 2           ; r
    v_bfe_u32 v26, v{V_L16}, 4, 2           ; cq
    v_and_b32 v27, 1, v24
    v_lshlrev_b32 v27, 5, v27
    v_lshrrev_b32 v28, 1, v25
    v_lshl_add_u32 v27, v28, 4, v27
    v_lshrrev_b32 v28, 1, v24
    v_lshl_add_u32 v27, v28, 2, v27
    v_and_b32 v28, 1, v25
    v_add_u32 v27, v27, v28
    v_lshlrev_b32 v27, 5, v27
    v_lshl_add_u32 v27, v26, 3, v27
    s_mul_i32 s{S_T1}, s{S_W}, 36864
    s_add_u32 s{S_T1}, s{S_T1}, {L_WO}
    v_add_u32 v27, s{S_T1}, v27
    """)
    for sl in range(9):
        for k in range(2):
            for Hh in range(2):
                for rr in range(2):
                    reg = 32 + k * 8 + Hh * 4 + rr * 2
                    A(f"ds_read_b64_tr_b16 v[{reg}:{reg+1}], v27 offset:{sl*4096 + (64*k + 8*Hh + 2*rr)*32}")
        A("s_waitcnt lgkmcnt(0)")
        for k in range(2):
            for Hh in range(2):
                reg = 32 + k * 8 + Hh * 4
                A(f"ds_write_b128 v{V_WO}, v[{reg}:{reg+3}] offset:{sl*4096 + k*2048 + Hh*1024}")
        A("s_waitcnt lgkmcnt(0)")
    A("s_barrier")

class Lg:
    def __init__(self, A): self.A = A; self.n = 0; self.done = 0
    def issue(self, txt):
        self.A(txt); self.n += 1; return self.n
    def wait(self, i):
        if i <= self.done: return
        cnt = self.n - i
        assert cnt <= 15, cnt
        self.A(f"s_waitcnt lgkmcnt({cnt})"); self.done = i
    def waitall(self):
        self.wait(self.n)

def smf(d, a, b): return f"v_smfmac_f32_16x16x64_bf16 {vr(d,4)}, {vr(a,4)}, {b}, v{V_IDX}"
def mf32(d, a, b, c): return f"v_mfma_f32_16x16x32_bf16 {vr(d,4)}, {vr(a,4)}, {vr(b,4)}, {c}"
def mf16(d, a, b, c): return f"v_mfma_f32_16x16x16_bf16 {vr(d,4)}, {vr(a,2)}, {vr(b,2)}, {c}"

def check4(A, r, tmp):
    A(f"v_max3_u32 v{tmp}, v{r}, v{r+1}, v{r+2}\nv_max_u32 v{tmp}, v{tmp}, v{r+3}\nv_cmp_eq_u32 vcc, -1, v{tmp}")


def setup_regs(A):
    A(f"""
    v_lshrrev_b32 v24, 6, v0
    v_and_b32 v25, 63, v0               ; lane
    s_nop 0
    v_readfirstlane_b32 s{S_W}, v24
    v_lshlrev_b32 v{V_L16}, 4, v25      ; l16
    v_and_b32 v26, 15, v25              ; n
    v_lshrrev_b32 v27, 4, v25           ; g
    v_bfe_u32 v28, v26, 1, 1            ; hf(n)
    v_mul_u32_u24 v29, 0xAAAA, v28
    v_add_u32 v{V_IDX}, 0x4444, v29
    s_lshl_b32 s{S_T0}, s{S_W}, 10
    s_add_u32 s{S_T0}, s{S_T0}, {L_QK}
    v_lshrrev_b32 v30, 2, v26               ; n>>2
    v_xor_b32 v30, v30, v27                 ; g ^ (n>>2)
    v_lshlrev_b32 v29, 5, v26
    v_lshl_add_u32 v29, v30, 3, v29
    v_add_u32 v{V_QKW}, s{S_T0}, v29
    v_lshrrev_b32 v29, 2, v26
    v_lshl_add_u32 v29, v27, 2, v29
    v_lshlrev_b32 v29, 5, v29
    v_and_b32 v30, 3, v26
    v_xor_b32 v30, v30, v27
    v_lshl_add_u32 v29, v30, 3, v29
    v_add_u32 v{V_TR}, {L_QK}, v29
    ; OW = L_O + (w>>1)*1024 + (g*16 + n - 2)*16 + (w&1)*8
    s_lshr_b32 s{S_T0}, s{S_W}, 1
    s_lshl_b32 s{S_T0}, s{S_T0}, 10
    s_and_b32 s{S_T1}, s{S_W}, 1
    s_lshl_b32 s{S_T1}, s{S_T1}, 3
    s_add_u32 s{S_T0}, s{S_T0}, s{S_T1}
    s_add_u32 s{S_T0}, s{S_T0}, {L_O - 32}
    v_add_u32 v{V_OW}, s{S_T0}, v{V_L16}
    s_lshl_b32 s{S_T0}, s{S_W}, 3
    v_lshrrev_b32 v29, 3, v26
    v_lshl_add_u32 v29, v27, 1, v29
    v_add_u32 v29, s{S_T0}, v29
    v_lshlrev_b32 v29, 12, v29
    v_and_b32 v30, 7, v26
    v_lshl_add_u32 v29, v30, 4, v29
    s_lshl_b32 s{S_T0}, s{S_H}, 7
    v_add_u32 v{V_P1}, s{S_T0}, v29
    s_lshl_b32 s51, s{S_W}, 5
    s_add_u32 s51, s51, s{S_H}
    s_lshl_b32 s{S_T1}, s51, 12
    v_lshl_add_u32 v29, v27, 1, v28
    v_lshlrev_b32 v29, 7, v29
    v_lshrrev_b32 v30, 2, v26
    v_lshlrev_b32 v30, 1, v30
    v_and_b32 v31, 1, v26
    v_add_u32 v30, v30, v31                 ; irow(n)
    v_lshl_add_u32 v29, v30, 4, v29
    v_add_u32 v{V_RD}, s{S_T1}, v29
    v_lshrrev_b32 v29, 1, v{V_L16}
    v_add_u32 v{V_SR}, {L_S}, v29
    s_lshr_b32 s{S_T1}, s51, 3
    s_mul_i32 s{S_T1}, s{S_T1}, 768
    s_and_b32 s{S_T2}, s51, 7
    s_lshl_b32 s{S_T2}, s{S_T2}, 5
    s_add_u32 s{S_T1}, s{S_T1}, s{S_T2}
    v_bfe_u32 v29, v26, 1, 2                ; tau
    v_lshlrev_b32 v29, 8, v29
    v_lshl_add_u32 v29, v31, 4, v29
    v_lshl_add_u32 v29, v27, 2, v29
    v_add_u32 v{V_MST}, s{S_T1}, v29
    s_mul_i32 s{S_T0}, s{S_W}, 36864
    s_add_u32 s{S_T0}, s{S_T0}, {L_WO}
    v_add_u32 v{V_WO}, s{S_T0}, v{V_L16}
    v_mov_b32 v{V_ZERO}, 0
    s_mov_b32 s{S_VALID}, 0xcccccccc
    s_mov_b32 s{S_VALID+1}, 0xcccccccc
    s_mov_b32 s{S_MMASK}, 0x003f003f
    s_mov_b32 s{S_MMASK+1}, 0x003f003f
    s_lshr_b32 s{S_TAU512}, s{S_W}, 1
    s_lshl_b32 s{S_TAU512}, s{S_TAU512}, 9
    s_lshl_b32 s{S_GW}, s{S_W}, 10
    v_mov_b32 v{V_PM}, 0
    s_mov_b32 s{S_FAIL}, 0
    s_mov_b32 s{S_T4}, 0x21800000       ; 2^-60
    s_mov_b32 s{S_LHI}, 0x5f800000      ; 2^64
    """)

def init_state(A):
    L3 = A.uid("L3")
    A(f"""
    s_mov_b32 s{S_STEP}, 0
    s_mov_b32 s{S_P1}, {WS_P1}
    s_mov_b32 s{S_MC}, {WS_M}
    s_mov_b32 s{S_MN}, {WS_M + M_SLOT}
    s_mov_b32 s{S_MT}, {WS_M + 2*M_SLOT}
    s_lshl_b32 s{S_T0}, s{S_H}, 14
    s_add_u32 s{S_KV}, s{S_T0}, {WS_KV}
    s_mov_b32 s{S_KM}, {WS_MEMS}
    s_add_u32 s{S_PF0}, s{S_KV}, {32*16384}
    s_add_u32 s{S_PF1}, s{S_PF0}, 8192
    s_add_u32 s{S_MC6}, s{S_MC}, 6144
    s_lshl_b32 s{S_T0}, s{S_TAU512}, 3
    s_add_u32 s{S_KXO}, s{S_T0}, s{S_KV}
    s_lshl_b32 s{S_T0}, s{S_W}, 11
    s_add_u32 s{S_T0}, s{S_T0}, s{S_KV}
    s_add_u32 s{S_VXO}, s{S_T0}, 8192
    s_mov_b32 s{S_T3}, {f32bits(QSCALE):#x}
    s_mov_b32 s{S_SPIN}, {SPIN_MAX}
    s_mov_b32 s{S_ONES}, 0x3f803f80
    s_mov_b32 s{S_ONES+1}, 0x3f803f80
    s_mov_b32 s{S_SELO}, {WS_SEL}
    v_add_u32 v{V_PM}, s{S_GW}, v{V_L16}
    s_cmp_eq_u32 s{S_W}, 3
    s_cbranch_scc0 {L3}
    v_lshlrev_b32 v{V_PF}, 3, v{V_L16}
    {L3}:
    """)
    ws = f"s[{SRD_WS}:{SRD_WS+3}]"
    for c in range(4): A(f"buffer_load_dwordx4 {vr(KX(c),4)}, v{V_L16}, {ws}, s{S_KXO} offen offset:{c*1024}")
    for et in range(2): A(f"buffer_load_dwordx4 {vr([V_VX0,V_VX1][et],4)}, v{V_L16}, {ws}, s{S_VXO} offen offset:{et*1024}")
    A("s_waitcnt vmcnt(0)")
    for b in (V_AQ, V_AK):
        for i in range(4): A(f"v_mov_b64 {vr(b+2*i,2)}, 0")

def housekeeping():
    return [
      f"s_xor_b32 s{S_P1}, s{S_P1}, {P1_SLOT}",
      f"s_mov_b32 s{S_T0}, s{S_MC}", f"s_mov_b32 s{S_MC}, s{S_MN}", f"s_mov_b32 s{S_MN}, s{S_MT}", f"s_mov_b32 s{S_MT}, s{S_T0}",
      f"s_add_u32 s{S_KV}, s{S_KV}, {32*16384}", f"s_add_u32 s{S_KM}, s{S_KM}, 16384",
      f"s_add_u32 s{S_STEP}, s{S_STEP}, 1", f"s_add_u32 s{S_TAG}, s{S_TAG}, 1", f"s_add_u32 s{S_TAG4}, s{S_TAG4}, 4",
      f"s_add_u32 s{S_MC6}, s{S_MC}, 6144",
      f"s_add_u32 s{S_KXO}, s{S_KXO}, {32*16384}", f"s_add_u32 s{S_VXO}, s{S_VXO}, {32*16384}",
    ]


def chain_step(A, st, prof=False, nsteps=64, opt=()):
    ws = f"s[{SRD_WS}:{SRD_WS+3}]"
    CUTL = A.uid("CUT")
    def stamp(name):
        name = str(name)
        if CUT == name: A(f"s_memtime s[72:73]\ns_branch {CUTL}")
        if not prof or name not in STAMPS: return
        i = STAMPS.index(name)
        if "abs" in opt: A(f"s_memrealtime s[{70+2*i}:{71+2*i}]")
        else: A(f"s_memtime s[{70+2*i}:{71+2*i}]")
    def stamp_acc():
        if not prof: return
        A("s_waitcnt lgkmcnt(0)")
        if "abs" in opt:
            A(f"s_cmp_eq_u32 s{S_STEP}, 31")
            for i in range(len(STAMPS)): A(f"s_cselect_b32 s{PROF0+i}, s{70+2*i}, s{PROF0+i}")
            return
        prev = 48
        for i in range(len(STAMPS)):
            A(f"s_sub_u32 s52, s{70+2*i}, s{prev}\ns_add_u32 s{PROF0+i}, s{PROF0+i}, s52")
            prev = 70+2*i
        A(f"s_mov_b32 s48, s{70+2*(len(STAMPS)-1)}")
    STEP = A.uid("STEP"); FAIL = A.uid("FAIL"); DONE = A.uid("DONE"); JOIN = A.uid("JOIN"); FINAL = A.uid("FINAL")
    GA, GB, GC, GC2 = 24, 28, 48, 52
    TMP = 14
    def spin(extra=""):
        A(f"s_sub_u32 s{S_SPIN}, s{S_SPIN}, 1\ns_cbranch_scc1 {FAIL}")
        if prof and extra: A(f"s_add_u32 {extra}, {extra}, 1")
    def chk(r, lab, neg=False):
        A(f"v_max3_u32 v{TMP}, v{r}, v{r+1}, v{r+2}\nv_max_u32 v{TMP}, v{TMP}, v{r+3}\nv_cmp_eq_u32 vcc, -1, v{TMP}\n{'s_cbranch_vccz' if neg else 's_cbranch_vccnz'} {lab}")
    def ld(r, which):
        so, off = [(S_MC, 0), (S_MC, 3072), (S_MC6, 0)][which]
        return f"buffer_load_dwordx4 {vr(r,4)}, v{V_PM}, {ws}, s{so} offen offset:{off} sc1"
    def wr(r, which): return f"ds_write_b128 v{V_PM}, {vr(r,4)} offset:{L_MEM + 3072*which}"

    P0, P1, GOK = A.uid("P0"), A.uid("P1"), A.uid("GOK")
    A.label(STEP)
    A(f"s_cmp_eq_u32 s{S_W}, 3\ns_cbranch_scc1 {JOIN}")
    S1 = (64, 68, 72); S2 = (48, 52, 76)
    def lds3(S): return "\n".join(ld(S[i], i) for i in range(3))
    def wrs3(S): return "\n".join(wr(S[i], i) for i in range(3))
    def chk3(S, lab, neg=False):
        regs = [S[i]+j for i in range(3) for j in range(4)]
        A(f"v_max3_u32 v{TMP}, v{regs[0]}, v{regs[1]}, v{regs[2]}")
        for j in range(3, 11, 2): A(f"v_max3_u32 v{TMP}, v{regs[j]}, v{regs[j+1]}, v{TMP}")
        A(f"v_max_u32 v{TMP}, v{regs[11]}, v{TMP}\nv_cmp_eq_u32 vcc, -1, v{TMP}\n{'s_cbranch_vccz' if neg else 's_cbranch_vccnz'} {lab}")
    A(lds3(S1))
    if PGAP: A(f"s_sleep {PGAP}")
    A.label(P0)
    A(lds3(S2))
    A("s_waitcnt vmcnt(3)")
    A(wrs3(S1))
    chk3(S1, GOK, neg=True)
    spin("s99")
    A(lds3(S1))
    A("s_waitcnt vmcnt(3)")
    A(wrs3(S2))
    chk3(S2, P0)
    A.label(GOK)
    A("s_waitcnt lgkmcnt(0)")
    A.label(JOIN)
    stamp(0)
    A("s_barrier")
    if CUT: A("s_memtime s[70:71]")
    L = Lg(A)
    Q, K, V = 0, 1, 2
    order = [(Q,c) for c in range(9)] + [(K,c) for c in range(9)] + [(V,c) for c in range(9)]
    rid = {}; nxt = [0]
    def rd():
        i = nxt[0]
        if i >= len(order): return False
        rid[i] = L.issue(f"ds_read_b128 {vr(V_R + 4*(i%NRING), 4)}, v{V_L16} offset:{L_MEM + order[i][1]*1024}")
        nxt[0] += 1
        return True
    ACCS = [V_AQ, V_AK, V_AVX]
    def item(i, f1=(), f2=()):
        mat, c = order[i]
        L.wait(rid[i])
        skip = ("noV" in opt and mat == 2) or ("noQ" in opt and mat == 0) or ("noK" in opt and mat == 1)
        if not skip: A(smf(ACCS[mat], V_R + 4*(i%NRING), wfrag(mat,0,c)))
        for x in f1: A(x)
        if not skip: A(smf(ACCS[mat]+4, V_R + 4*(i%NRING), wfrag(mat,1,c)))
        while nxt[0] < i + 1 + NRING and rd(): pass
        for x in f2: A(x)
    if "flags" in opt:
        A(f"s_cmp_eq_u32 s{S_STEP}, {nsteps-1}\ns_cbranch_scc1 {FINAL}")
    for _ in range(NRING): rd()
    npf = 0 if "nopf" in opt else 1
    PF3, PF3b = A.uid("PF3"), A.uid("PF3b")
    kvl = [f"buffer_load_dwordx4 {vr(KX(c),4)}, v{V_L16}, {ws}, s{S_KXO} offen offset:{c*1024}" for c in range(4)] + \
          [f"buffer_load_dwordx4 {vr([V_VX0,V_VX1][et],4)}, v{V_L16}, {ws}, s{S_VXO} offen offset:{et*1024}" for et in range(2)]
    for i in range(0, 9): item(i, (), [kvl[i//2]] if i % 2 == 0 else ())
    stamp(1)
    item(9); item(10, (), [kvl[5]])
    if npf:
        A(f"s_cmp_eq_u32 s{S_W}, 3\ns_cbranch_scc1 {PF3}")
        A.label(PF3b)
    qfold = []
    for t in range(2):
        b = V_AQ + 4*t
        qfold += [f"v_add_f32 v{b}, v{b}, v{b+2}", f"v_add_f32 v{b+1}, v{b+1}, v{b+3}",
                  f"v_mul_f32 v{b}, s{S_T3}, v{b}", f"v_mul_f32 v{b+1}, s{S_T3}, v{b+1}",
                  f"v_cvt_pk_bf16_f32 v{V_SX+t}, v{b}, v{b+1}"]
    item(11, qfold[0:1], qfold[1:2]); item(12, qfold[2:3], qfold[3:4]); item(13, qfold[4:5], qfold[5:6])
    item(14, qfold[6:7], qfold[7:8]); item(15, qfold[8:9], qfold[9:10])
    qw = L.issue(f"ds_write2_b32 v{V_QKW}, v{V_SX}, v{V_SX+1} offset0:1 offset1:129")
    item(16); item(17)
    L.wait(qw)
    A("s_barrier")
    fr = {}
    f2 = [f"ds_read_b64_tr_b16 {vr(F(cc)+2*Hh,2)}, v{V_TR} offset:{cc*1024 + Hh*512}" for cc in range(4) for Hh in range(2)]
    f2k = [(cc,Hh) for cc in range(4) for Hh in range(2)]
    for j in range(4): fr[f2k[j]] = L.issue(f2[j])
    stamp(3)
    PUB = "" if "pubplain" in opt else "sc1"
    npub = 0 if "nopub" in opt else 2
    A(f"s_waitcnt vmcnt({2*npf})" if False else "")
    W2, W2b = A.uid("W2"), A.uid("W2b")
    A(f"s_cmp_eq_u32 s{S_W}, 3\ns_cbranch_scc1 {W2}\ns_waitcnt vmcnt(0)")
    A.label(W2b)
    for t in range(2):
        b = V_AK + 4*t
        A(f"v_add_f32 v{b}, v{b}, v{b+2}\nv_add_f32 v{b+1}, v{b+1}, v{b+3}\nv_cvt_pk_bf16_f32 v{V_SX+2+t}, v{b}, v{b+1}")
    kw = L.issue(f"ds_write2_b32 v{V_QKW}, v{V_SX+2}, v{V_SX+3} offset0:0 offset1:128")
    stamp("kw")
    for j in range(4, 8): fr[f2k[j]] = L.issue(f2[j])
    for i in range(4): A(f"v_mov_b64 {vr(V_AVX+2*i,2)}, 0")
    A("s_nop 0")
    item(18); item(19)
    L.wait(fr[(1,1)])
    A(mf32(V_SX, KX(0), F(0), "0"))
    A(mf32(V_SX, KX(1), F(1), vr(V_SX,4)))
    L.wait(fr[(3,1)])
    L.wait(kw)
    stamp("prebk")
    A("s_barrier")
    A(mf32(V_SX, KX(2), F(2), vr(V_SX,4)))
    fr[(0,0)] = L.issue(f2[0]); fr[(0,1)] = L.issue(f2[1]); fr[(1,0)] = L.issue(f2[2])
    A(mf32(V_SX, KX(3), F(3), vr(V_SX,4)))
    fr[(1,1)] = L.issue(f2[3]); fr[(2,0)] = L.issue(f2[4]); fr[(2,1)] = L.issue(f2[5])
    fr[(3,0)] = L.issue(f2[6]); fr[(3,1)] = L.issue(f2[7])
    stamp("sx")
    item(20, [f"v_add_u32 v{V_PM}, s{S_TAU512}, v{V_SR}"])
    stamp("i20")
    exo = [f"v_exp_f32 v{V_SX+r}, v{V_SX+r}" for r in range(4)]
    item(21, exo[0:1], exo[1:2])
    stamp("i21")
    item(22, exo[2:3], exo[3:4])
    sm = V_SM
    stamp("exo")
    A(f"v_cvt_pk_bf16_f32 v{V_SX}, v{V_SX}, v{V_SX+1}\nv_cvt_pk_bf16_f32 v{V_SX+1}, v{V_SX+2}, v{V_SX+3}")
    sw = L.issue(f"ds_write_b64 v{V_PM}, {vr(V_SX,2)}")
    L.wait(fr[(1,1)])
    A(mf32(sm, F(0), F(0), "0"))
    A(mf32(sm, F(1), F(1), vr(sm,4)))
    L.wait(fr[(3,1)])
    A(mf32(sm, F(2), F(2), vr(sm,4)))
    A(mf32(sm, F(3), F(3), vr(sm,4)))
    stamp("sm")
    item(23, [f"v_mov_b64 {vr(V_ONES,2)}, s[{S_ONES}:{S_ONES+1}]"], [f"v_mov_b64 {vr(V_ONES+2,2)}, s[{S_ONES}:{S_ONES+1}]"])
    L.wait(sw)
    A("s_barrier")
    s0 = L.issue(f"ds_read2_b64 {vr(V_S0,4)}, v{V_SR} offset0:0 offset1:64")
    stamp(4)
    NF = 18
    WB = [V_KB, V_KA, V_R, V_R+8, V_AK, V_AQ]
    NB = len(WB)
    wf = {}
    def wrd(f):
        if "noWrd" in opt:
            wf[f] = L.n; return
        if f < NF:
            sl, k = divmod(f, 2)
            L.issue(f"ds_read_b128 {vr(WB[f%NB],4)}, v{V_WO} offset:{sl*4096 + k*2048}")
            wf[f] = L.issue(f"ds_read_b128 {vr(WB[f%NB]+4,4)}, v{V_WO} offset:{sl*4096 + k*2048 + 1024}")
    item(24, [f"v_exp_f32 v{sm}, v{sm}"], [f"v_exp_f32 v{sm+1}, v{sm+1}"])
    item(25, (), [f"v_cvt_pk_bf16_f32 v{V_PM}, v{sm}, v{sm+1}"])
    L.wait(s0)
    A(mf32(F(2), V_ONES, V_S0, "0"))
    A(mf32(F(0), V_VX0, V_S0, "0"))
    A(mf32(F(1), V_VX1, V_S0, "0"))
    stamp("pvx")
    wrd(0)
    item(26)
    A("s_nop 0")
    A(mf16(F(2), V_ONES, V_PM, vr(F(2),4)))
    stamp(5)
    AV = V_AVX
    A(f"v_mov_b32 v{V_SX}, s{S_LHI}")
    A("s_nop 5")
    for b in (AV, AV+4):
        A(f"v_add_f32 v{b}, v{b}, v{b+2}\nv_add_f32 v{b+1}, v{b+1}, v{b+3}\nv_cvt_pk_bf16_f32 v{b}, v{b}, v{b+1}\nv_mov_b32 v{b+1}, 0")
    A(f"v_med3_f32 v{V_SX}, v{F(2)}, s{S_T4}, v{V_SX}")
    A(mf16(F(0), AV, V_PM, vr(F(0),4)))
    A(f"v_cmp_neq_f32 vcc, v{V_SX}, v{F(2)}")
    A(mf16(F(1), AV+4, V_PM, vr(F(1),4)))
    A(f"v_rcp_f32 v{V_SX}, v{F(2)}")
    A(f"s_and_b64 vcc, vcc, s[{S_VALID}:{S_VALID+1}]")
    SLOW = A.uid("SLOW"); BACK = A.uid("BACK"); LAST = A.uid("LAST")
    A(f"s_cbranch_vccnz {SLOW}")
    A.label(BACK)
    stamp("pvm")
    A(f"s_cmp_eq_u32 s{S_STEP}, {nsteps-1}\ns_cbranch_scc1 {LAST}")
    A("s_nop 0")
    stamp("n1")
    if "x32" in opt:
        for i in range(32): A(f"v_mov_b32 v{V_PM}, v{V_ZERO}")
    if "w64" in opt: A("s_nop 15")
    if "pkmul" in opt:
        for r in (0, 2): A(f"v_pk_mul_f32 {vr(F(0)+r,2)}, {vr(F(0)+r,2)}, {vr(V_SX,2)} op_sel_hi:[1,0]")
    for r in range(4):
        if "nomul" not in opt and "pkmul" not in opt: A(f"v_mul_f32 v{F(0)+r}, v{F(0)+r}, v{V_SX}")
    stamp("n2")
    A(f"v_cvt_pk_bf16_f32 v{F(0)}, v{F(0)}, v{F(0)+1}\nv_cvt_pk_bf16_f32 v{F(0)+1}, v{F(0)+2}, v{F(0)+3}")
    stamp("n3")
    if "pkmul" in opt:
        for r in (0, 2): A(f"v_pk_mul_f32 {vr(F(1)+r,2)}, {vr(F(1)+r,2)}, {vr(V_SX,2)} op_sel_hi:[1,0]")
    for r in range(4):
        if "nomul" not in opt and "pkmul" not in opt: A(f"v_mul_f32 v{F(1)+r}, v{F(1)+r}, v{V_SX}")
    stamp("n4")
    A(f"v_cvt_pk_bf16_f32 v{F(1)}, v{F(1)}, v{F(1)+1}\nv_cvt_pk_bf16_f32 v{F(1)+1}, v{F(1)+2}, v{F(1)+3}")
    stamp("n5")
    A(f"s_mov_b64 exec, s[{S_VALID}:{S_VALID+1}]")
    ow = L.issue(f"ds_write2_b64 v{V_OW}, {vr(F(0),2)}, {vr(F(1),2)} offset0:0 offset1:4")
    A("s_mov_b64 exec, -1")
    stamp(6)
    ACC = [V_VX0, V_VX1]
    for a in ACC:
        A(f"v_mov_b64 {vr(a,2)}, 0\nv_mov_b64 {vr(a+2,2)}, 0")
    A(f"v_mov_b32 v{V_OUT+3}, s{S_TAG}")
    stamp("o1")
    L.wait(ow)
    stamp("o2")
    A("s_barrier")
    stamp("o3")
    o0 = L.issue(f"ds_read_b128 {vr(V_F23,4)}, v{V_L16} offset:{L_O}")
    o1 = L.issue(f"ds_read_b128 {vr(V_F23+4,4)}, v{V_L16} offset:{L_O+1024}")
    wrd(1); wrd(2)
    stamp("o4")
    stamp("o5")
    wrd(3); wrd(4); wrd(5)
    stamp("o6")
    L.wait(o1)
    stamp(7)
    NT = 9
    NA = len(ACC)
    def epi(sl):
        a = ACC[sl % NA]; tau = sl % 3
        q = [f"v_add_f32 v{a}, v{a}, v{a+2}", f"v_add_f32 v{a+1}, v{a+1}, v{a+3}", f"v_cvt_pk_bf16_f32 v{V_OUT+tau}, v{a}, v{a+1}"]
        if sl < NT - NA: q += [f"v_mov_b64 {vr(a,2)}, 0", f"v_mov_b64 {vr(a+2,2)}, 0"]
        if tau == 2:
            sg = sl // 3
            q += [f"s_add_u32 s{S_T0}, s{S_P1}, {sg*131072}", f"buffer_store_dwordx4 {vr(V_OUT,4)}, v{V_P1}, {ws}, s{S_T0} offen {st}"]
        return q
    for sl in range(NT):
        if sl in (3, 6): stamp(f"wo{sl}")
        L.wait(wf[2*sl+1])
        for k in range(2):
            f = 2*sl + k
            if "noWo" not in opt: A(smf(ACC[sl%NA], V_F23 + 4*k, vr(WB[f%NB], 8)))
            wrd(f + NB)
        if sl >= 1:
            if 2*sl + NB >= NF: A("s_nop 3")
            for x in epi(sl - 1): A(x)
            A("s_nop 0")
    A("s_nop 6")
    for x in epi(NT-1): A(x)
    stamp(8)
    hk = housekeeping()
    if "fixkv" in opt: hk = [x for x in hk if f"s{S_KXO}," not in x and f"s{S_VXO}," not in x]
    zero = [f"v_mov_b64 {vr(b+2*i,2)}, 0" for b in (V_AQ, V_AK) for i in range(4)]
    NR = A.uid("NR"); R0 = A.uid("R0"); R1 = A.uid("R1"); RB = A.uid("RB"); RW3 = A.uid("RW3")
    SEL = V_F23
    A(f"s_cmp_eq_u32 s{S_W}, 3\ns_cbranch_scc1 {RW3}")
    A(f"s_mov_b32 s{S_T1}, s{S_P1}\ns_mov_b32 s{S_T2}, s{S_MN}\ns_mov_b32 s53, s{S_MC}\ns_mov_b32 s41, s{S_TAG4}")
    A(f"buffer_load_dwordx4 {vr(SEL,4)}, v{V_L16}, {ws}, s{S_SELO} offen")
    zeroq = [f"v_mov_b64 {vr(V_AQ+2*i,2)}, 0" for i in range(4)]
    zerok = [f"v_mov_b64 {vr(V_AK+2*i,2)}, 0" for i in range(4)]
    for x in hk + zeroq: A(x)
    d0, d1, d2 = DELAYS
    if d0: A(f"s_sleep {d0}")
    A(f"s_cmp_eq_u32 s{S_W}, 0\ns_cbranch_scc1 {R0}")
    if d1: A(f"s_sleep {d1}")
    A(f"s_cmp_eq_u32 s{S_W}, 1\ns_cbranch_scc1 {R0}")
    if d2: A(f"s_sleep {d2}")
    A.label(R0)
    stamp(11)
    BX, BY = V_R, V_KA
    def rl(B): return [f"buffer_load_dwordx4 {vr(B+4*q,4)}, v{V_RD}, {ws}, s{S_T1} offen offset:{q*1024} sc1" for q in range(4)]
    def proc(B, young=4):
        for q in range(4):
            A(f"s_waitcnt vmcnt({young + 3 - q})")
            A(mf32(V_SX, B+4*q, SEL, "0" if q == 0 else vr(V_SX,4)))
        A(f"v_add3_u32 v{V_PM}, v{B+3}, v{B+7}, v{B+11}\nv_add_u32 v{V_PM}, v{V_PM}, v{B+15}\nv_cmp_ne_u32 vcc, s41, v{V_PM}")
    FIN = A.uid("FIN")
    for x in rl(BX): A(x)
    for x in zerok: A(x)
    if RGAP: A(f"s_sleep {RGAP}")
    for x in rl(BY): A(x)
    proc(BX, 4)
    A(f"s_cbranch_vccz {FIN}")
    A.label(RB)
    spin("s98")
    for x in rl(BX): A(x)
    proc(BY)
    A(f"s_cbranch_vccz {FIN}")
    spin("s98")
    for x in rl(BY): A(x)
    proc(BX)
    A(f"s_cbranch_vccnz {RB}")
    A("s_nop 0")
    A.label(FIN)
    stamp(12)
    A(f"v_mov_b32 v{V_PM}, -1\ns_mov_b64 exec, s[{S_MMASK}:{S_MMASK+1}]\ns_nop 1")
    A(f"v_add_f32 v{V_SX}, v{V_SX}, v{V_SX+2}\nv_add_f32 v{V_SX+1}, v{V_SX+1}, v{V_SX+3}\nv_cvt_pk_bf16_f32 v{V_SX}, v{V_SX}, v{V_SX+1}")
    A(f"buffer_store_dword v{V_SX}, v{V_MST}, {ws}, s{S_T2} offen {st}")
    A(f"buffer_store_dword v{V_PM}, v{V_MST}, {ws}, s53 offen {st}")
    A("s_mov_b64 exec, -1")
    if G01:
        NG01 = A.uid("NG")
        A(f"s_cmp_eq_u32 s{S_W}, 2\ns_cbranch_scc1 {NR}\ns_sleep {G01}")
    A.label(NR)
    A(f"v_add_u32 v{V_PM}, s{S_GW}, v{V_L16}")
    stamp(13)
    stamp_acc()
    A(f"s_mov_b32 s{S_SPIN}, {SPIN_MAX}")
    A(f"s_branch {STEP}")
    A.label(RW3)
    for x in hk + zeroq + zerok: A(x)
    if "flags" in opt:
        A(f"s_waitcnt vmcnt(3)")
        PW, PK = A.uid("PW"), A.uid("PK")
        A(f"s_cmp_lt_u32 s{S_STEP}, 62\ns_cbranch_scc0 {PK}")
        A.label(PW)
        A(f"v_readfirstlane_b32 s{S_T1}, v{V_PF+1}")
        A(f"s_sub_u32 s{S_T1}, s{S_T1}, s7\ns_sub_u32 s{S_T1}, s{S_T1}, 1\ns_cmp_lt_u32 s{S_T1}, 16\ns_cbranch_scc0 {PW}n\ns_cmp_ge_u32 s{S_T1}, s{S_PKK}\ns_cbranch_scc1 {PK}")
        A.label(PW + "n")
        spin()
        A(f"s_sleep 8\nbuffer_load_dword v{V_PF+1}, v{V_ZERO}, {ws}, s{S_PFA} offen sc1\ns_waitcnt vmcnt(0)\ns_branch {PW}")
        A.label(PK)
        A(f"s_add_u32 s{S_PRHO}, s{S_PRHO}, 1\ns_cmp_eq_u32 s{S_PRHO}, 7\ns_cselect_b32 s{S_T0}, 1, 0\ns_cselect_b32 s{S_PRHO}, 0, s{S_PRHO}\ns_add_u32 s{S_PKK}, s{S_PKK}, s{S_T0}")
        A(f"s_lshl_b32 s{S_PFA}, s{S_PRHO}, 2\ns_add_u32 s{S_PFA}, s{S_PFA}, s{S_PFO}")
    A(f"s_add_u32 s{S_PF0}, s{S_KV}, {32*16384}\ns_add_u32 s{S_PF1}, s{S_PF0}, 8192")
    stamp(11); stamp(12)
    A(f"s_branch {NR}")
    if npf:
        A.label(PF3)
        if "flags" in opt:
            NM = A.uid("NM")
            A(f"s_cmp_lt_u32 s{S_H}, 9\ns_cbranch_scc0 {NM}")
            A(f"s_lshl_b32 s{S_T0}, s{S_H}, 10\nv_add_u32 v{V_PM}, s{S_T0}, v{V_L16}\nds_read_b128 {vr(V_F23,4)}, v{V_PM} offset:{L_MEM}")
            A(f"s_add_u32 s{S_T1}, s7, s{S_STEP}\nv_mov_b32 v{V_PM}, s{S_T1}\ns_mov_b64 exec, 1")
            A(f"buffer_store_dword v{V_PM}, v{V_ZERO}, {ws}, s{S_CFO} offen sc1\ns_mov_b64 exec, -1")
            A(f"s_add_u32 s{S_T0}, s{S_T0}, s{S_KM}\ns_waitcnt lgkmcnt(0)")
            A(f"buffer_store_dwordx4 {vr(V_F23,4)}, v{V_L16}, {ws}, s{S_T0} offen sc1")
            A(f"buffer_load_dword v{V_PF+1}, v{V_PF}, {ws}, s{S_PF0} offen\nbuffer_load_dword v{V_PF+1}, v{V_PF}, {ws}, s{S_PF1} offen")
            A(f"buffer_load_dword v{V_PF+1}, v{V_ZERO}, {ws}, s{S_PFA} offen sc1\ns_branch {PF3b}")
            A.label(NM)
        A(f"buffer_load_dword v{V_PF+1}, v{V_PF}, {ws}, s{S_PF0} offen\nbuffer_load_dword v{V_PF+1}, v{V_PF}, {ws}, s{S_PF1} offen")
        if "flags" in opt:
            A(f"buffer_load_dword v{V_PF+1}, v{V_ZERO}, {ws}, s{S_PFA} offen sc1")
        A(f"s_branch {PF3b}")
    A.label(W2)
    if "flags" in opt:
        A(f"s_cmp_lt_u32 s{S_H}, 9\ns_cbranch_scc1 {W2}m\ns_waitcnt vmcnt({2*npf + 1})\ns_branch {W2b}")
        A.label(W2 + "m"); A(f"s_waitcnt vmcnt({2*npf + 3})\ns_branch {W2b}")
    else:
        A(f"s_waitcnt vmcnt({2*npf})\ns_branch {W2b}")

    A.label(SLOW)
    L2 = Lg(A)
    A("s_nop 7")
    for cc in range(4):
        for Hh in range(2):
            L2.issue(f"ds_read_b64_tr_b16 {vr(F(cc)+2*Hh,2)}, v{V_TR} offset:{cc*1024 + Hh*512}")
    T0r, T1r = V_S0, V_SX
    for tau in range(2):
        A(f"s_add_u32 s{S_T0}, s{S_KV}, {tau*4096}")
        for c in range(4): A(f"buffer_load_dwordx4 {vr(V_R+4*c,4)}, v{V_L16}, {ws}, s{S_T0} offen offset:{c*1024}")
        A("s_waitcnt vmcnt(0) lgkmcnt(0)")
        d = [T0r, T1r][tau]
        for c in range(4): A(mf32(d, V_R+4*c, F(c), "0" if c == 0 else vr(d,4)))
        A("s_nop 7")
    for c in range(4):
        A(mf32(sm, F(c), F(c), "0" if c == 0 else vr(sm,4)))
    A("s_nop 7\ns_nop 1")
    a0, a1 = T0r, T1r
    A(f"v_max3_f32 v{V_PM}, v{a0}, v{a0+1}, v{a0+2}")
    A(f"v_max3_f32 v{V_PM}, v{a0+3}, v{a1}, v{V_PM}")
    A(f"v_max3_f32 v{V_PM}, v{a1+1}, v{a1+2}, v{V_PM}")
    A(f"v_max3_f32 v{V_PM}, v{a1+3}, v{sm}, v{V_PM}")
    A(f"v_max_f32 v{V_PM}, v{sm+1}, v{V_PM}")
    t = F(3)
    A(f"v_mov_b32 v{t}, v{V_PM}\ns_nop 1\nv_permlane32_swap_b32 v{t}, v{V_PM}\ns_nop 1\nv_max_f32 v{V_PM}, v{V_PM}, v{t}")
    A(f"v_mov_b32 v{t}, v{V_PM}\ns_nop 1\nv_permlane16_swap_b32 v{t}, v{V_PM}\ns_nop 1\nv_max_f32 v{V_PM}, v{V_PM}, v{t}")
    rs = list(range(a0, a0+4)) + list(range(a1, a1+4)) + [sm, sm+1]
    for r in rs: A(f"v_sub_f32 v{r}, v{r}, v{V_PM}")
    for r in rs: A(f"v_exp_f32 v{r}, v{r}")
    A("s_nop 0")
    A(f"v_cvt_pk_bf16_f32 v{a0}, v{a0}, v{a0+1}\nv_cvt_pk_bf16_f32 v{a0+1}, v{a0+2}, v{a0+3}")
    A(f"v_cvt_pk_bf16_f32 v{a0+2}, v{a1}, v{a1+1}\nv_cvt_pk_bf16_f32 v{a0+3}, v{a1+2}, v{a1+3}")
    A(f"v_cvt_pk_bf16_f32 v{V_PM}, v{sm}, v{sm+1}")
    A(f"v_mov_b64 {vr(V_ONES,2)}, s[{S_ONES}:{S_ONES+1}]\nv_mov_b64 {vr(V_ONES+2,2)}, s[{S_ONES}:{S_ONES+1}]\ns_nop 1")
    A(mf32(F(0), V_VX0, V_S0, "0"))
    A(mf32(F(1), V_VX1, V_S0, "0"))
    A(mf32(F(2), V_ONES, V_S0, "0"))
    A("s_nop 7")
    A(mf16(F(2), V_ONES, V_PM, vr(F(2),4)))
    A(mf16(F(0), AV, V_PM, vr(F(0),4)))
    A(mf16(F(1), AV+4, V_PM, vr(F(1),4)))
    for f in range(1):
        sl, k = divmod(f, 2)
        A(f"ds_read_b128 {vr(WB[f],4)}, v{V_WO} offset:{sl*4096 + k*2048}\nds_read_b128 {vr(WB[f]+4,4)}, v{V_WO} offset:{sl*4096 + k*2048 + 1024}")
    A("s_waitcnt lgkmcnt(0)\ns_nop 7")
    A(f"v_rcp_f32 v{V_SX}, v{F(2)}")
    A(f"s_branch {BACK}")
    A.label(LAST)
    A(f"s_branch {DONE}")
    if "flags" in opt:
        A.label(FINAL)
        A(f"s_cmp_eq_u32 s{S_W}, 3\ns_cbranch_scc0 {DONE}\ns_cmp_lt_u32 s{S_H}, 9\ns_cbranch_scc0 {DONE}")
        A(f"s_lshl_b32 s{S_T0}, s{S_H}, 10\nv_add_u32 v{V_PM}, s{S_T0}, v{V_L16}\nds_read_b128 {vr(V_F23,4)}, v{V_PM} offset:{L_MEM}")
        A(f"s_add_u32 s{S_T0}, s{S_T0}, s{S_KM}\ns_waitcnt lgkmcnt(0)")
        A(f"buffer_store_dwordx4 {vr(V_F23,4)}, v{V_L16}, {ws}, s{S_T0} offen sc1\ns_waitcnt vmcnt(0)")
        A(f"s_add_u32 s{S_T0}, s7, {nsteps}\nv_mov_b32 v{V_PM}, s{S_T0}\ns_mov_b64 exec, 1")
        A(f"buffer_store_dword v{V_PM}, v{V_ZERO}, {ws}, s{S_CFO} offen sc1\ns_mov_b64 exec, -1")
        A(f"s_branch {DONE}")
    if CUT:
        A.label(CUTL)
        A(f"s_mov_b64 exec, -1\ns_waitcnt vmcnt(0) lgkmcnt(0)\ns_nop 7\ns_sub_u32 s72, s72, s70\ns_add_u32 s54, s54, s72")
        for b in (V_AQ, V_AK):
            for i in range(4): A(f"v_mov_b64 {vr(b+2*i,2)}, 0")
        for c in range(4): A(f"buffer_load_dwordx4 {vr(KX(c),4)}, v{V_L16}, {ws}, s{S_KXO} offen offset:{c*1024}")
        for et in range(2): A(f"buffer_load_dwordx4 {vr([V_VX0,V_VX1][et],4)}, v{V_L16}, {ws}, s{S_VXO} offen offset:{et*1024}")
        A(f"s_waitcnt vmcnt(0)\ns_add_u32 s{S_STEP}x, 0, 0".replace(f"s_add_u32 s{S_STEP}x, 0, 0", "s_add_u32 s55, s55, 1"))
        A(f"s_cmp_lt_u32 s55, 63\ns_cbranch_scc1 {JOIN}\ns_branch {DONE}")
    A.label(FAIL)
    A(f"s_mov_b64 exec, -1\ns_mov_b32 s{S_FAIL}, 1")
    A.label(DONE)


def chain_init_mem(A, st):
    ws = f"s[{SRD_WS}:{SRD_WS+3}]"
    N0 = A.uid("IM"); N1 = A.uid("IM")
    A(f"""
    s_cmp_lt_u32 s{S_H}, 9
    s_cbranch_scc0 {N1}
    s_cmp_eq_u32 s{S_W}, 0
    s_cbranch_scc0 {N0}
    s_load_dwordx2 s[4:5], s[0:1], {KA['A_mem0']}
    s_waitcnt lgkmcnt(0)
    s_mov_b32 s{SRD_W}, s4
    s_mov_b32 s{SRD_W+1}, s5
    s_mov_b32 s{SRD_W+2}, {8*1152}
    s_mov_b32 s{SRD_W+3}, 0x00020000
    v_bfe_u32 v24, v{V_L16}, 4, 4            ; n
    v_lshrrev_b32 v25, 2, v24
    v_lshlrev_b32 v25, 1, v25
    v_and_b32 v26, 1, v24
    v_add_u32 v25, v25, v26                  ; irow
    v_mul_u32_u24 v25, 1152, v25
    v_bfe_u32 v26, v24, 1, 1                 ; hf
    v_lshl_add_u32 v25, v26, 4, v25
    v_lshrrev_b32 v26, 8, v{V_L16}           ; g
    v_lshl_add_u32 v25, v26, 5, v25
    s_lshl_b32 s{S_T0}, s{S_H}, 7            ; c*128 bytes
    buffer_load_dwordx4 v[28:31], v25, s[{SRD_W}:{SRD_W+3}], s{S_T0} offen
    s_lshl_b32 s{S_T0}, s{S_H}, 10
    s_add_u32 s{S_T0}, s{S_T0}, {WS_M}
    s_waitcnt vmcnt(0)
    buffer_store_dwordx4 v[28:31], v{V_L16}, {ws}, s{S_T0} offen {st}
    s_branch {N1}
    {N0}:
    v_mov_b32 v28, -1
    v_mov_b32 v29, -1
    v_mov_b32 v30, -1
    v_mov_b32 v31, -1
    s_mul_i32 s{S_T0}, s{S_W}, {M_SLOT}
    s_lshl_b32 s{S_T1}, s{S_H}, 10
    s_add_u32 s{S_T0}, s{S_T0}, s{S_T1}
    s_add_u32 s{S_T0}, s{S_T0}, {WS_M}
    s_cmp_eq_u32 s{S_W}, 3
    s_cbranch_scc1 {N0}s
    buffer_store_dwordx4 v[28:31], v{V_L16}, {ws}, s{S_T0} offen {st}
    s_branch {N1}
    {N0}s:
    v_bfe_u32 v24, v{V_L16}, 4, 3            ; j = n & 7
    v_and_b32 v25, 1, v24
    v_lshlrev_b32 v25, 4, v25
    v_mov_b32 v26, 0x3f80
    v_lshlrev_b32 v25, v25, v26              ; X
    v_lshrrev_b32 v24, 1, v24
    """)
    for r in range(4):
        A(f"v_cmp_eq_u32 vcc, {r}, v24\ns_nop 1\nv_cndmask_b32 v{28+r}, 0, v25, vcc")
    A(f"s_mov_b32 s{S_T0}, {WS_SEL}\nbuffer_store_dwordx4 v[28:31], v{V_L16}, {ws}, s{S_T0} offen {st}")
    A.label(N1)
    A("s_waitcnt vmcnt(0)")
```

```python
from asmlib import *
from layout import *
import struct
def f32bits(x): return struct.unpack("<I", struct.pack("<f", x))[0]

SRD_WS = 8
SRD_A = 12
S_H, S_W = 16, 17
S_NONCE = 7
V_L16 = 0

def srd_ws(A):
    A(f"""
    s_load_dwordx2 s[4:5], s[0:1], {KA['ws']}
    s_waitcnt lgkmcnt(0)
    s_mov_b32 s{SRD_WS}, s4
    s_mov_b32 s{SRD_WS+1}, s5
    s_mov_b32 s{SRD_WS+2}, {WS_SIZE}
    s_mov_b32 s{SRD_WS+3}, 0x00020000
    """)

def lane_setup(A):
    A(f"""
    v_lshrrev_b32 v1, 6, v0
    v_and_b32 v0, 63, v0
    s_nop 0
    v_readfirstlane_b32 s{S_W}, v1
    v_lshlrev_b32 v0, 4, v0
    """)

def make_srd(A, srd, kaoff, add_sgpr, nbytes_total, tmp=4):
    A(f"""
    s_load_dwordx2 s[{tmp}:{tmp+1}], s[0:1], {kaoff}
    s_waitcnt lgkmcnt(0)
    """)
    if add_sgpr is None:
        A(f"s_mov_b32 s{srd}, s{tmp}\ns_mov_b32 s{srd+1}, s{tmp+1}\ns_mov_b32 s{srd+2}, {nbytes_total}\ns_mov_b32 s{srd+3}, 0x00020000")
    else:
        A(f"s_add_u32 s{srd}, s{tmp}, s{add_sgpr}\ns_addc_u32 s{srd+1}, s{tmp+1}, 0\ns_sub_u32 s{srd+2}, {nbytes_total}, s{add_sgpr}\ns_mov_b32 s{srd+3}, 0x00020000")

def load_head_slice(A, kaoff, regmap, lds_base, t0=28, t1=29, t2=30):
    lw = A.uid("LW")
    A(f"s_lshl_b32 s{t0}, s{S_H}, 8")
    make_srd(A, SRD_A, kaoff, t0, 576*8192)
    A(f"""
    v_lshrrev_b32 v24, 8, v{V_L16}          ; l>>4
    v_and_b32 v25, 1, v24
    s_lshl_b32 s{t0}, s{S_W}, 1
    v_or_b32 v25, s{t0}, v25                ; f(row)
    v_bfe_u32 v26, v{V_L16}, 5, 3           ; (l&15)>>1
    v_xor_b32 v26, v26, v25
    v_lshlrev_b32 v26, 5, v26
    v_lshl_add_u32 v26, v24, 13, v26
    v_and_b32 v27, 16, v{V_L16}
    v_add_u32 v26, v26, v27
    s_lshl_b32 s{t0}, s{S_W}, 15
    s_lshl_b32 s{t1}, s{S_W}, 10
    s_add_u32 s{t1}, s{t1}, {lds_base}
    s_mov_b32 s{t2}, 0
    {lw}:
    s_mov_b32 m0, s{t1}
    s_nop 0
    buffer_load_dwordx4 v26, s[{SRD_A}:{SRD_A+3}], s{t0} offen lds
    s_add_u32 s{t0}, s{t0}, {4*32768}
    s_add_u32 s{t1}, s{t1}, 4096
    s_add_u32 s{t2}, s{t2}, 1
    s_cmp_lt_u32 s{t2}, 36
    s_cbranch_scc1 {lw}
    s_waitcnt vmcnt(0)
    s_barrier
    v_lshrrev_b32 v24, 8, v{V_L16}          ; g
    v_bfe_u32 v25, v{V_L16}, 6, 2           ; r
    v_bfe_u32 v26, v{V_L16}, 4, 2           ; cq
    v_lshl_add_u32 v27, v24, 3, v25         ; 8g + r
    v_lshlrev_b32 v27, 8, v27
    v_lshl_add_u32 v27, v26, 3, v27
    v_add_u32 v27, {lds_base}, v27
    v_and_b32 v28, 1, v25
    v_and_b32 v29, 1, v24
    v_lshl_add_u32 v28, v29, 2, v28
    v_or_b32 v29, 2, v28
    s_lshl_b32 s{t0}, s{S_W}, 1
    """)
    for et in range(2):
        A(f"""
        s_add_u32 s{t1}, s{t0}, {et}
        v_xor_b32 v30, s{t1}, v28
        v_lshl_add_u32 v30, v30, 5, v27
        v_xor_b32 v31, s{t1}, v29
        v_lshl_add_u32 v31, v31, 5, v27
        v_add_u32 v31, 1024, v31
        """)
        for cc in range(18):
            kind, base = regmap(et, cc)
            off = (cc % 8) * 8192
            A(f"ds_read_b64_tr_b16 {kind}[{base}:{base+1}], v30 offset:{off}")
            A(f"ds_read_b64_tr_b16 {kind}[{base+2}:{base+3}], v31 offset:{off}")
            if cc % 8 == 7:
                A("s_waitcnt lgkmcnt(0)\nv_add_u32 v30, 65536, v30\nv_add_u32 v31, 65536, v31")
        A("s_waitcnt lgkmcnt(0)")
    A("s_barrier")

def x_dma(A, srd_x, voff, s_row, lds_base_sgpr, t0=28, t1=29):
    A(f"s_mul_i32 s{t0}, s{S_W}, 9")
    for i in range(9):
        A(f"""
        s_add_u32 s{t1}, s{t0}, {i}
        s_cmp_ge_u32 s{t1}, 18
        s_cselect_b32 s31, {16*1152 - 18*64}, 0
        s_lshl_b32 s33, s{t1}, 6
        s_add_u32 s31, s31, s33
        s_add_u32 s31, s31, s{s_row}
        s_lshl_b32 s33, s{t1}, 10
        s_add_u32 s33, s33, s{lds_base_sgpr}
        s_mov_b32 m0, s33
        s_nop 0
        buffer_load_dwordx4 v{voff}, s[{srd_x}:{srd_x+3}], s31 offen lds
        """)


def load_head_slices_pipelined(A, mats, lds_base, trfun, t0=28, t1=29, t2=30):
    srds = [52, 56, 84]
    A(f"s_lshl_b32 s{t0}, s{S_H}, 8")
    for mi, ka in enumerate(mats): make_srd(A, srds[mi], ka, t0, 576*8192)
    A(f"""
    v_lshrrev_b32 v24, 8, v{V_L16}          ; l>>4
    v_and_b32 v25, 1, v24
    s_lshl_b32 s{t0}, s{S_W}, 1
    v_or_b32 v25, s{t0}, v25                ; f(row)
    v_bfe_u32 v26, v{V_L16}, 5, 3
    v_xor_b32 v26, v26, v25
    v_lshlrev_b32 v26, 5, v26
    v_lshl_add_u32 v26, v24, 13, v26
    v_and_b32 v27, 16, v{V_L16}
    v_add_u32 v23, v26, v27
    """)
    def dma(mi, half):
        n = 20 if half == 0 else 16
        a0 = 0 if half == 0 else 80
        lp = A.uid("DM")
        A(f"s_lshl_b32 s{t0}, s{S_W}, 15\ns_add_u32 s{t0}, s{t0}, {a0*32768}\ns_lshl_b32 s{t1}, s{S_W}, 10\ns_add_u32 s{t1}, s{t1}, {lds_base + a0*1024}\ns_mov_b32 s{t2}, 0")
        A.label(lp)
        A(f"s_mov_b32 m0, s{t1}\ns_add_u32 s{t1}, s{t1}, 4096\nbuffer_load_dwordx4 v23, s[{srds[mi]}:{srds[mi]+3}], s{t0} offen lds\ns_add_u32 s{t0}, s{t0}, {4*32768}\ns_add_u32 s{t2}, s{t2}, 1\ns_cmp_lt_u32 s{t2}, {n}\ns_cbranch_scc1 {lp}")
        return n
    seq = [(mi, h) for mi in range(len(mats)) for h in range(2)]
    cnt = {}
    cnt[0] = dma(*seq[0]); cnt[1] = dma(*seq[1])
    for i, (mi, h) in enumerate(seq):
        younger = cnt.get(i + 1, 0)
        A(f"s_waitcnt vmcnt({younger})\ns_barrier")
        trfun(mi, h)
        A("s_waitcnt lgkmcnt(0)\ns_barrier")
        if i + 2 < len(seq): cnt[i + 2] = dma(*seq[i + 2])

def natural_tr(A, regmaps, lds_base, t0=28, t1=29):
    def f(mi, half):
        A(f"""
        v_lshrrev_b32 v24, 8, v{V_L16}          ; g
        v_bfe_u32 v25, v{V_L16}, 6, 2           ; r
        v_bfe_u32 v26, v{V_L16}, 4, 2           ; cq
        v_lshl_add_u32 v27, v24, 3, v25         ; 8g + r
        v_lshlrev_b32 v27, 8, v27
        v_lshl_add_u32 v27, v26, 3, v27
        v_add_u32 v27, {lds_base + (0 if half == 0 else 81920)}, v27
        v_and_b32 v28, 1, v25
        v_and_b32 v29, 1, v24
        v_lshl_add_u32 v28, v29, 2, v28
        v_or_b32 v29, 2, v28
        s_lshl_b32 s{t0}, s{S_W}, 1
        """)
        ccs = range(0, 10) if half == 0 else range(10, 18)
        for et in range(2):
            A(f"""
            s_add_u32 s{t1}, s{t0}, {et}
            v_xor_b32 v30, s{t1}, v28
            v_lshl_add_u32 v30, v30, 5, v27
            v_xor_b32 v31, s{t1}, v29
            v_lshl_add_u32 v31, v31, 5, v27
            v_add_u32 v31, 1024, v31
            """)
            for k, cc in enumerate(ccs):
                kind, base = regmaps[mi](et, cc)
                if k == 8: A("s_waitcnt lgkmcnt(0)\nv_add_u32 v30, 65536, v30\nv_add_u32 v31, 65536, v31")
                off = (k % 8) * 8192
                A(f"ds_read_b64_tr_b16 {kind}[{base}:{base+1}], v30 offset:{off}")
                A(f"ds_read_b64_tr_b16 {kind}[{base+2}:{base+3}], v31 offset:{off}")
            A("s_waitcnt lgkmcnt(0)")
    return f
```

```python
from common import *

V_XO = 2
V_ACC = 8
V_XF = 40
V_T = 64
SRD_X = 20
S_SEG, S_ROW, S_LB, S_KVO, S_CNT = 24, 25, 26, 27, 34
L_X0, L_X1 = 0, 36864

def wmap(mat):
    def f(et, cc):
        idx = mat*36 + et*18 + cc
        return ("a", idx*4) if idx < 64 else ("v", 224 + (idx-64)*4)
    return f
def wreg(mat, et, cc):
    k, b = wmap(mat)(et, cc); return f"{k}[{b}:{b+3}]"

def p_station(A, s_rho, nrep=7, flag=True, get_nonce=None):
    ws = f"s[{SRD_WS}:{SRD_WS+3}]"
    load_head_slices_pipelined(A, [KA['A_Wk'], KA['A_Wv']], 0, natural_tr(A, [wmap(0), wmap(1)], 0))
    if get_nonce is not None: get_nonce()
    make_srd(A, SRD_X, KA['A_x'], None, 2048*1152)
    A(f"""
    v_bfe_u32 v{V_XO}, v{V_L16}, 4, 4        ; n
    v_mul_u32_u24 v{V_XO}, 1152, v{V_XO}
    v_lshrrev_b32 v3, 8, v{V_L16}            ; g
    v_lshl_add_u32 v{V_XO}, v3, 4, v{V_XO}
    s_mov_b32 s{S_SEG}, s{s_rho}
    s_mul_i32 s{S_ROW}, s{S_SEG}, {32*1152}
    s_mov_b32 s{S_LB}, {L_X0}
    """)
    x_dma(A, SRD_X, V_XO, S_ROW, S_LB)
    LOOP = A.uid("PL"); NODMA = A.uid("PN"); END = A.uid("PE")
    A(f"s_mov_b32 s{S_CNT}, 0\ns_waitcnt vmcnt(0)")
    A(f"""
    s_lshl_b32 s39, s{S_H}, 5
    s_lshl_b32 s41, s{s_rho}, 2
    s_add_u32 s39, s39, s41
    s_add_u32 s39, s39, {WS_FLAGS + F_P}      ; PF[h][rho]
    """)
    A.label(LOOP)
    W0 = A.uid("PW0")
    A(f"s_cmp_eq_u32 s{S_CNT}, 1\ns_cbranch_scc0 {W0}\ns_waitcnt vmcnt(0)")
    A.label(W0)
    A("s_waitcnt vmcnt(4)\ns_barrier")
    if flag:
        NFL = A.uid("PNF")
        A(f"""
        s_cmp_ge_u32 s{S_CNT}, 1
        s_cbranch_scc0 {NFL}
        s_cmp_eq_u32 s{S_W}, 0
        s_cbranch_scc0 {NFL}
        s_add_u32 s41, s{S_CNT}, s{S_NONCE}
        s_sub_u32 s41, s41, 1
        s_cmp_eq_u32 s{S_CNT}, 1
        s_cselect_b32 s40, 1, 0
        s_add_u32 s41, s41, s40
        v_mov_b32 v4, s41
        v_mov_b32 v5, 0
        s_mov_b64 exec, 1
        buffer_store_dword v4, v5, {ws}, s39 offen sc1
        s_mov_b64 exec, -1
        """)
        A.label(NFL)
    A(f"""
    s_add_u32 s35, s{S_SEG}, {nrep}
    s_cmp_lt_u32 s35, 64
    s_cbranch_scc0 {NODMA}
    s_mul_i32 s{S_ROW}, s35, {32*1152}
    s_xor_b32 s36, s{S_LB}, {L_X1}
    """)
    x_dma(A, SRD_X, V_XO, S_ROW, 36)
    A.label(NODMA)
    A(f"v_add_u32 v3, s{S_LB}, v{V_L16}")
    def xr(cc):
        st = cc % 3
        for tt in range(2):
            A(f"ds_read_b128 {vr(V_XF + (st*2+tt)*4, 4)}, v3 offset:{(tt*18+cc)*1024}")
    xr(0); xr(1)
    for cc in range(18):
        if cc + 2 < 18: xr(cc + 2)
        later = 2 * min(2, 17 - cc)
        A(f"s_waitcnt lgkmcnt({later})")
        st = cc % 3
        for et in range(2):
            for tt in range(2):
                d = V_ACC + (et*2+tt)*4
                A(f"v_mfma_f32_16x16x32_bf16 {vr(d,4)}, {wreg(0,et,cc)}, {vr(V_XF+(st*2+tt)*4,4)}, {'0' if cc==0 else vr(d,4)}")
        for tt in range(2):
            for et in range(2):
                d = V_ACC + 16 + (tt*2+et)*4
                A(f"v_mfma_f32_16x16x32_bf16 {vr(d,4)}, {vr(V_XF+(st*2+tt)*4,4)}, {wreg(1,et,cc)}, {'0' if cc==0 else vr(d,4)}")
    A(f"""
    s_lshl_b32 s35, s{S_SEG}, 5
    s_add_u32 s35, s35, s{S_H}
    s_lshl_b32 s35, s35, 14
    s_add_u32 s35, s35, {WS_KV}
    s_lshl_b32 s36, s{S_W}, 10
    s_add_u32 s36, s36, s35                 ; K: + tau*4096 + w*1024
    s_lshl_b32 s37, s{S_W}, 11
    s_add_u32 s37, s37, s35
    s_add_u32 s37, s37, 8192                ; V: + w*2048 + et*1024
    s_nop 4
    """)
    for tt in range(2):
        t = V_T + tt*4
        for et in range(2):
            d = V_ACC + (et*2+tt)*4
            A(f"v_cvt_pk_bf16_f32 v{t+2*et}, v{d}, v{d+1}\nv_cvt_pk_bf16_f32 v{t+2*et+1}, v{d+2}, v{d+3}")
        A(f"s_add_u32 s38, s36, {tt*4096}")
        A(f"buffer_store_dwordx4 {vr(t,4)}, v{V_L16}, {ws}, s38 offen sc1")
    for et in range(2):
        t = V_T + 8 + et*4
        for tt in range(2):
            d = V_ACC + 16 + (tt*2+et)*4
            A(f"v_cvt_pk_bf16_f32 v{t+2*tt}, v{d}, v{d+1}\nv_cvt_pk_bf16_f32 v{t+2*tt+1}, v{d+2}, v{d+3}")
        A(f"buffer_store_dwordx4 {vr(t,4)}, v{V_L16}, {ws}, s37 offen offset:{et*1024} sc1")
    A(f"""
    s_xor_b32 s{S_LB}, s{S_LB}, {L_X1}
    s_add_u32 s{S_CNT}, s{S_CNT}, 1
    s_add_u32 s{S_SEG}, s{S_SEG}, {nrep}
    s_cmp_lt_u32 s{S_SEG}, 64
    s_cbranch_scc1 {LOOP}
    s_waitcnt vmcnt(0)
    s_barrier
    """)
    if flag:
        A(f"""
        s_cmp_eq_u32 s{S_W}, 0
        s_cbranch_scc0 {END}
        s_add_u32 s41, s{S_NONCE}, 16
        v_mov_b32 v3, s41
        v_mov_b32 v4, 0
        s_mov_b64 exec, 1
        buffer_store_dword v3, v4, {ws}, s39 offen sc1
        s_mov_b64 exec, -1
        """)
        A.label(END)
```

```python
import sys
sys.path.insert(0, "gen")
from common import *
import chain3 as C, pstation as P, astation as AS, wstation as W, bstation as B

KNAME = "concat_heads__memory_aug_recurrent_mem_tr__grouped_kv_mqa__prompt_kernel"
SPIN = 4000000

def poll_flags(A, s_off, nflags, fail, tmp=(2, 3), spin=35, s_val=S_NONCE):
    ws = f"s[{SRD_WS}:{SRD_WS+3}]"
    Wl = A.uid("PW")
    a, b = tmp
    A(f"v_lshrrev_b32 v{a}, 2, v{V_L16}\nv_cmp_gt_u32 vcc, {4*nflags}, v{a}\ns_nop 1\nv_cndmask_b32 v{a}, 0, v{a}, vcc\ns_mov_b32 s{spin}, {SPIN}")
    A.label(Wl)
    A(f"""
    buffer_load_dword v{b}, v{a}, {ws}, s{s_off} offen sc1
    s_waitcnt vmcnt(0)
    v_cmp_ne_u32 vcc, s{s_val}, v{b}
    s_cbranch_vccz {Wl}k
    s_sub_u32 s{spin}, s{spin}, 1
    s_cbranch_scc1 {fail}
    s_sleep 4
    s_branch {Wl}
    {Wl}k:
    """)

def build(opt=()):
    A = Asm()
    def tl(i, vt=(60,61)):
        if "tl" not in opt: return
        ws = f"s[{SRD_WS}:{SRD_WS+3}]"
        L = A.uid("TL")
        A(f"""
        s_cmp_eq_u32 s{S_W}, 0
        s_cbranch_scc0 {L}
        s_memrealtime s[98:99]
        s_waitcnt lgkmcnt(0)
        v_mov_b32 v{vt[0]}, s98
        v_mov_b32 v{vt[1]}, 0
        s_lshl_b32 s98, s6, 6
        s_add_u32 s98, s98, {WS_FLAGS + 32768 + i*4}
        s_mov_b64 exec, 1
        buffer_store_dword v{vt[0]}, v{vt[1]}, {ws}, s98 offen sc1
        s_mov_b64 exec, -1
        {L}:
        """)
    END = "K_END"
    A(f"""
    s_cmp_lt_u32 s2, 256
    s_cbranch_scc1 K_GO
    s_endpgm
    K_GO:
    s_load_dwordx2 s[4:5], s[0:1], {KA['ws']}
    s_load_dwordx2 s[20:21], s[0:1], {KA['dbg']}
    s_getreg_b32 s3, hwreg(HW_REG_XCC_ID, 0, 4)
    s_waitcnt lgkmcnt(0)
    s_mov_b32 s{SRD_WS}, s4
    s_mov_b32 s{SRD_WS+1}, s5
    s_mov_b32 s{SRD_WS+2}, {WS_SIZE}
    s_mov_b32 s{SRD_WS+3}, 0x00020000
    s_mov_b32 s12, s20
    s_mov_b32 s13, s21
    s_mov_b32 s14, 256
    s_mov_b32 s15, 0x00020000
    """)
    lane_setup(A)
    A("s_mov_b32 s6, s2")
    tl(0, (6,7))
    A(f"""
    s_cmp_eq_u32 s{S_W}, 0
    s_cbranch_scc0 K_TK1
    s_mov_b64 exec, 1
    v_mov_b32 v2, 1
    v_mov_b32 v3, 0
    s_mov_b32 s22, -1
    s_cmp_eq_u32 s3, 0
    s_cbranch_scc0 K_TB
    buffer_atomic_add v2, v3, s[12:15], 0 offen sc0
    s_waitcnt vmcnt(0)
    v_readfirstlane_b32 s22, v2
    s_cmp_lt_u32 s22, 32
    s_cbranch_scc1 K_TW
    K_TB:
    v_mov_b32 v2, 1
    buffer_atomic_add v2, v3, s[12:15], 0 offen offset:64 sc0
    s_waitcnt vmcnt(0)
    v_readfirstlane_b32 s23, v2              ; ticket B
    s_mov_b32 s22, -1
    s_cmp_lt_u32 s23, 224
    s_cbranch_scc1 K_TB2
    s_sub_u32 s22, 255, s23
    K_TB2:
    s_cmp_eq_u32 s23, 0
    s_cbranch_scc0 K_TW2
    s_memrealtime s[24:25]
    s_waitcnt lgkmcnt(0)
    s_or_b32 s24, s24, 1
    v_mov_b32 v2, s24
    buffer_store_dword v2, v3, s[12:15], 0 offen offset:128 sc1
    s_branch K_TW2
    K_TW:
    s_mov_b32 s23, -1
    K_TW2:
    v_mov_b32 v4, s22
    v_mov_b32 v5, s23
    ds_write_b64 v3, v[4:5]
    s_waitcnt lgkmcnt(0)
    s_mov_b64 exec, -1
    K_TK1:
    s_barrier
    v_mov_b32 v3, 0
    ds_read_b64 v[4:5], v3
    s_waitcnt lgkmcnt(0)
    v_readfirstlane_b32 s22, v4
    v_readfirstlane_b32 s23, v5
    s_barrier
    s_cmp_eq_u32 s23, -1
    s_cbranch_scc1 K_ROK
    s_cmp_lt_u32 s23, 256
    s_cbranch_scc1 K_ROK
    s_endpgm
    K_ROK:
    s_cmp_eq_u32 s22, -1
    s_cbranch_scc1 K_BULK
    s_branch K_CHAIN
    K_BULK:
    """)
    def get_nonce(fail, srd=12):
        Wl = A.uid("NW")
        A(f"v_mov_b32 v3, 0\ns_mov_b32 s35, {SPIN}")
        A.label(Wl)
        A(f"""
        buffer_load_dword v2, v3, s[{srd}:{srd+3}], 0 offen offset:128 sc1
        s_waitcnt vmcnt(0)
        v_readfirstlane_b32 s{S_NONCE}, v2
        s_cmp_lg_u32 s{S_NONCE}, 0
        s_cbranch_scc1 {Wl}k
        s_sub_u32 s35, s35, 1
        s_cbranch_scc1 {fail}
        s_sleep 2
        s_branch {Wl}
        {Wl}k:
        """)
    A(f"s_and_b32 s{S_H}, s23, 31\ns_lshr_b32 s50, s23, 5\ns_mov_b32 s51, s23")
    A("s_mov_b32 s88, s12\ns_mov_b32 s89, s13\ns_mov_b32 s90, s14\ns_mov_b32 s91, s15")
    n0 = len(A.lines)
    tl(1, (6,7))
    A("s_lshl_b32 s6, s51, 0\ns_add_u32 s6, s6, 256")
    tl(0, (6,7))
    P.p_station(A, 50, nrep=7, flag=True, get_nonce=lambda: get_nonce(END, 88))
    tl(2, (6,7))
    hz = check_hazards(A.lines[n0:], "P")
    A(f"""
    s_cmp_lt_u32 s50, 2
    s_cbranch_scc1 K_A
    s_cmp_eq_u32 s50, 2
    s_cbranch_scc1 K_WB1
    s_branch K_B2
    K_A:
    s_lshl_b32 s28, s{S_H}, 5
    s_add_u32 s28, s28, {WS_FLAGS + F_P}
    s_add_u32 s29, s{S_NONCE}, 16
    """)
    poll_flags(A, 28, 7, END, s_val=29)
    n0 = len(A.lines)
    AS.a_station(A, s_par=50, nrep=2, wait_chain=True, flag=True)
    hz += check_hazards(A.lines[n0:], "A")
    tl(3, (6,7))
    A(f"s_branch {END}")
    A.label("K_WB1")
    A(f"""
    s_sub_u32 s52, s51, 64                   ; 0..31
    s_cmp_lt_u32 s52, 24
    s_cbranch_scc0 K_B1
    s_cmp_ge_u32 s52, 12
    s_cselect_b32 s54, 1, 0
    s_mul_i32 s53, s54, 12
    s_sub_u32 s53, s52, s53
    """)
    n0 = len(A.lines)
    W.w_station(A, 53, 54, 2, wait=True)
    hz += check_hazards(A.lines[n0:], "W")
    tl(3, (4,5))
    A(f"s_branch {END}")
    A.label("K_B1")
    A("s_sub_u32 s53, s52, 24")
    n0 = len(A.lines)
    B.b1_station(A, 53)
    hz += check_hazards(A.lines[n0:], "B1")
    tl(3, (6,7))
    A(f"s_branch {END}")
    A.label("K_B2")
    A("s_sub_u32 s53, s51, 96")
    n0 = len(A.lines)
    B.b2_station(A, 53, wait=True)
    hz += check_hazards(A.lines[n0:], "B2")
    tl(3, (6,7))
    A(f"s_endpgm")
    A.label("K_CHAIN")
    A(f"s_mov_b32 s{C.S_H}, s22\nv_lshrrev_b32 v0, 4, v0\ns_lshl_b32 s28, s{S_W}, 6\nv_add_u32 v0, s28, v0")
    A("s_mov_b32 s60, s12\ns_mov_b32 s61, s13\ns_mov_b32 s62, s14\ns_mov_b32 s63, s15")
    C.setup_regs(A)
    A(f"s_add_u32 s6, s{C.S_H}, 512")
    tl(0, (14,15))
    A(f"""
    v_mov_b32 v25, 0
    s_mov_b32 s65, {SPIN}
    K_MW:
    buffer_load_dword v24, v25, s[60:63], 0 offen sc1
    buffer_load_dword v26, v25, s[60:63], 0 offen offset:64 sc1
    buffer_load_dword v27, v25, s[60:63], 0 offen offset:128 sc1
    s_waitcnt vmcnt(0)
    v_readfirstlane_b32 s28, v24
    v_readfirstlane_b32 s29, v26
    v_readfirstlane_b32 s{S_NONCE}, v27
    s_cmp_eq_u32 s{S_NONCE}, 0
    s_cbranch_scc1 K_MW2
    s_mov_b32 s64, 0
    s_cmp_ge_u32 s28, 32
    s_cbranch_scc1 K_MK
    s_mov_b32 s64, 1
    s_cmp_gt_u32 s29, 224
    s_cbranch_scc1 K_MK
    K_MW2:
    s_sub_u32 s65, s65, 1
    s_cbranch_scc1 {END}
    s_sleep 2
    s_branch K_MW
    K_MK:
    """)
    if "forceslow" in opt: A("s_mov_b32 s64, 1")
    A("s_cmp_eq_u32 s64, 1\ns_cbranch_scc1 K_I1")
    C.chain_init_mem(A, "")
    A("s_branch K_I2")
    A.label("K_I1")
    C.chain_init_mem(A, "sc1")
    A.label("K_I2")
    A(f"""
    s_barrier
    s_cmp_eq_u32 s{S_W}, 0
    s_cbranch_scc0 K_RD
    s_mov_b64 exec, 1
    v_mov_b32 v24, 1
    v_mov_b32 v25, 0
    buffer_atomic_add v24, v25, s[60:63], 0 offen offset:192
    s_mov_b64 exec, -1
    K_RD:
    """)
    C.load_qkv(A, KA['A_Wq'], 0)
    C.load_qkv(A, KA['A_Wk'], 1)
    C.load_qkv(A, KA['A_Wv'], 2)
    C.load_wo(A)
    tl(1, (14,15))
    for mode, st in ((0, ""), (1, "sc1")):
        lab = f"K_M{mode}"
        if mode == 0: A(f"s_cmp_eq_u32 s64, 1\ns_cbranch_scc1 K_M1")
        else: A.label("K_M1")
        A(f"""
        v_mov_b32 v25, 0
        s_mov_b32 s65, {SPIN}
        {lab}w:
        buffer_load_dword v24, v25, s[60:63], 0 offen offset:192 sc1
        s_waitcnt vmcnt(0)
        v_readfirstlane_b32 s28, v24
        s_cmp_ge_u32 s28, 32
        s_cbranch_scc1 {lab}k
        s_sub_u32 s65, s65, 1
        s_cbranch_scc1 {END}
        s_sleep 2
        s_branch {lab}w
        {lab}k:
        s_lshl_b32 s{C.S_PFO}, s{C.S_H}, 5
        s_add_u32 s{C.S_PFO}, s{C.S_PFO}, {WS_FLAGS + F_P}
        v_lshrrev_b32 v24, 2, v0
        v_and_b32 v24, 4, v24
        s_mov_b32 s65, {SPIN}
        {lab}p:
        buffer_load_dword v25, v24, s[{SRD_WS}:{SRD_WS+3}], s{C.S_PFO} offen sc1
        s_waitcnt vmcnt(0)
        v_subrev_u32 v25, s{S_NONCE}, v25
        v_subrev_u32 v25, 1, v25
        v_cmp_lt_u32 vcc, 15, v25
        s_cbranch_vccz {lab}q
        s_sub_u32 s65, s65, 1
        s_cbranch_scc1 {END}
        s_sleep 4
        s_branch {lab}p
        {lab}q:
        s_mov_b32 s{C.S_PRHO}, 2
        s_mov_b32 s{C.S_PKK}, 0
        s_add_u32 s{C.S_PFA}, s{C.S_PFO}, 8
        """)
        A(f"""
        s_and_b32 s{C.S_TAG}, s{S_NONCE}, 0x3fff3f00
        s_add_u32 s{C.S_TAG}, s{C.S_TAG}, 1
        s_lshl_b32 s{C.S_TAG4}, s{C.S_TAG}, 2
        s_lshl_b32 s{C.S_CFO}, s{C.S_H}, 2
        s_add_u32 s{C.S_CFO}, s{C.S_CFO}, {WS_FLAGS + F_C}
        """)
        C.init_state(A)
        tl(2, (14,15))
        n0 = len(A.lines)
        if "cprof" in opt and mode == 0:
            for i in list(range(54,68))+[98,99,100,101]: A(f"s_mov_b32 s{i}, 0")
            A("s_memtime s[2:3]\ns_waitcnt lgkmcnt(0)\ns_mov_b32 s48, s2")
            for i in range(14): A(f"s_mov_b32 s{70+2*i}, s2")
        C.chain_step(A, st, prof=("cprof" in opt and mode == 0), nsteps=64, opt=("flags",) + tuple(o for o in opt if o in ("nopub","nopf","fixkv")))
        if "cprof" in opt and mode == 0:
            for i in range(14): A(f"v_mov_b32 v{28+i}, s{54+i}")
            A(f"""
            v_mov_b32 v44, s98
            v_mov_b32 v45, s99
            v_mov_b32 v46, s100
            v_mov_b32 v47, s101
            s_lshl_b32 s6, s{C.S_H}, 2
            s_add_u32 s6, s6, s{C.S_W}
            s_mul_i32 s6, s6, 96
            s_add_u32 s6, s6, {WS_FLAGS + 49152 + 32768}
            v_mov_b32 v48, s6
            s_mov_b64 exec, 1
            """)
            for j in range(1, 6): A(f"buffer_store_dwordx4 v[{24+4*j}:{27+4*j}], v48, s[8:11], 0 offen offset:{16*j}")
            A("s_mov_b64 exec, -1\ns_waitcnt vmcnt(0)")
        hz += check_hazards(A.lines[n0:], "chain")
        tl(3, (14,15))
        A("s_endpgm")
    A.label(END)
    return A, hz

HEADER = open("concat_heads__memory_aug_recurrent_mem_tr__grouped_kv_mqa__prompt.s.ref").read().split("; Override launch geometry")[0]

def full_text(opt=()):
    A, hz = build(opt)
    for m in hz: print("HAZARD", m)
    txt = HEADER + "; @launch grid=(256,1,1) block=(256,1,1) lds=163840\n"
    txt += f""".amdgcn_target "amdgcn-amd-amdhsa--gfx950"
.text
.globl {KNAME}
.p2align 8
.type {KNAME},@function
{KNAME}:
"""
    body = "\n".join(l.split(";")[0].rstrip().lstrip() if not l.lstrip().startswith(";") else "" for l in A.lines)
    body = "\n".join(l for l in body.split("\n") if l)
    txt += body + f"""
s_endpgm
.section .rodata,"a"
.p2align 6
.amdhsa_kernel {KNAME}
  .amdhsa_next_free_vgpr 512
  .amdhsa_next_free_sgpr 102
  .amdhsa_accum_offset 256
  .amdhsa_group_segment_fixed_size 0
  .amdhsa_kernarg_size 120
  .amdhsa_user_sgpr_count 2
  .amdhsa_user_sgpr_kernarg_segment_ptr 1
  .amdhsa_system_sgpr_workgroup_id_x 1
.end_amdhsa_kernel
"""
    return txt

if __name__ == "__main__":
    opt = tuple(a[2:] for a in sys.argv[1:] if a.startswith("--"))
    for a in sys.argv[1:]:
        if a.startswith("d="): C.DELAYS[:] = [int(x) for x in a[2:].split(",")]
        if a.startswith("g="): C.GSLEEP = int(a[2:])
        if a.startswith("g01="): C.G01 = int(a[4:])
        if a.startswith("pg="): C.PGAP = int(a[3:])
        if a.startswith("p0="): C.PUB0 = int(a[3:])
        if a.startswith("pgp="): C.PUBG = int(a[4:])
        if a.startswith("rg="): C.RGAP = int(a[3:])
    t = full_text(opt)
    out = "concat_heads__memory_aug_recurrent_mem_tr__grouped_kv_mqa__prompt.s"
    for a in sys.argv[1:]:
        if a.startswith("o="): out = a[2:]
    open(out, "w").write(t)
    print("written", len(t), "bytes")
```

```python
from asmlib import *
from layout import *
import struct

def f32bits(x): return struct.unpack("<I", struct.pack("<f", x))[0]

V_L16, V_IDX, V_QKW, V_TR, V_OW, V_P1, V_RD, V_MST, V_WO, V_SR = 0, 1, 2, 3, 4, 5, 6, 7, 8, 9
V_ONES = 52
V_SX = 14
V_PM = 18
V_ZERO = 19
V_OUT = 14
V_SEL = 48
V_PF = 6
NRING = 4
V_VX0, V_VX1 = 20, 10
S_ONES = 12
V_R = 24
V_AQ = 40
V_F23 = 48
V_AK = 56
V_KA = 64
V_KB = 72
def F(c): return [V_AQ, V_AQ + 4, V_F23, V_F23 + 4][c]
def KX(c): return [V_KA, V_KA + 4, V_KB, V_KB + 4][c]
V_AV = V_KA
V_VX = V_KB
V_AVX = V_AK
V_AK2 = V_KA
V_S0 = V_KB
V_SM = V_KB + 4
V_F2 = 24

S_H, S_W, S_STEP, S_FAIL = 16, 17, 18, 19
S_P1, S_MC, S_MN, S_MT = 20, 21, 22, 23
S_KV, S_KM, S_SPIN = 24, 25, 27
S_T0, S_T1, S_T2 = 28, 29, 30
S_GW = 31
S_VALID = 32
S_MMASK = 34
S_TAU512 = 36
S_T3, S_T4 = 37, 38
S_TAG, S_TAG4 = 39, 40
S_MC6 = 46
S_SELO = 50
S_KXO, S_VXO = 47, 49
SRD_WS = 8
SRD_W = 12
SPIN_MAX = 400000
STAMPS = ['0','3','5','7','8','11','12','13']
DELAYS = [0, 1, 2]
S_LHI = 44
S_CFO = 43
S_PFO, S_PRHO, S_PKK = 42, 68, 69
S_M3, S_MP, S_MP1 = 56, 58, 60
S_WV = 57
S_MCH, S_CFV, S_KMC = 62, 63, 64
S_PF0, S_PF1, S_PFA = 45, 26, 51
GSLEEP = 0
PGAP = 1
PUB0 = 2
PUBG = 1
RGAP = 2
G01 = 0
CUT = None
PROF0 = 86

def wfrag(mat, et, c):
    idx = mat * 18 + et * 9 + c
    if idx < 32: return ar(idx * 8, 8)
    return vr(80 + (idx - 32) * 8, 8)
def wfrag_regs(mat, et, c):
    idx = mat * 18 + et * 9 + c
    return ("a", idx * 8) if idx < 32 else ("v", 80 + (idx - 32) * 8)

def load_qkv(A, kaoff, mat):
    lw = A.uid("LW"); lr = A.uid("LR")
    A(f"""
    s_load_dwordx2 s[4:5], s[0:1], {kaoff}
    s_waitcnt lgkmcnt(0)
    s_lshl_b32 s{S_T0}, s{S_H}, 8
    s_add_u32 s{SRD_W}, s4, s{S_T0}
    s_addc_u32 s{SRD_W+1}, s5, 0
    s_sub_u32 s{SRD_W+2}, {576*8192}, s{S_T0}
    s_mov_b32 s{SRD_W+3}, 0x00020000
    v_lshrrev_b32 v24, 8, v{V_L16}          ; l>>4
    v_and_b32 v25, 1, v24
    s_lshl_b32 s{S_T0}, s{S_W}, 1           ; (w&1)<<1 | (w>>1)<<2 == w<<1
    v_or_b32 v25, s{S_T0}, v25              ; f
    v_bfe_u32 v26, v{V_L16}, 5, 3           ; (l&15)>>1
    v_xor_b32 v26, v26, v25
    v_lshlrev_b32 v26, 5, v26
    v_lshl_add_u32 v26, v24, 13, v26
    v_and_b32 v27, 16, v{V_L16}             ; (l&1)*16
    v_add_u32 v26, v26, v27
    s_lshl_b32 s{S_T0}, s{S_W}, 15          ; soffset = a*32768, a = 4i + w
    s_lshl_b32 s{S_T1}, s{S_W}, 10
    s_add_u32 s{S_T1}, s{S_T1}, {L_WO}      ; m0 = L_WO + a*1024
    s_mov_b32 s{S_T2}, 0
    {lw}:
    s_mov_b32 m0, s{S_T1}
    s_nop 0
    buffer_load_dwordx4 v26, s[{SRD_W}:{SRD_W+3}], s{S_T0} offen lds
    s_add_u32 s{S_T0}, s{S_T0}, {4*32768}
    s_add_u32 s{S_T1}, s{S_T1}, 4096
    s_add_u32 s{S_T2}, s{S_T2}, 1
    s_cmp_lt_u32 s{S_T2}, 36
    s_cbranch_scc1 {lw}
    s_waitcnt vmcnt(0)
    s_barrier
    v_lshrrev_b32 v24, 8, v{V_L16}          ; gB
    v_bfe_u32 v25, v{V_L16}, 6, 2           ; r = n>>2
    v_bfe_u32 v26, v{V_L16}, 4, 2           ; cq = n&3
    v_lshrrev_b32 v27, 1, v24               ; gB>>1
    v_lshlrev_b32 v27, 4, v27
    v_lshrrev_b32 v28, 1, v25               ; r>>1
    v_lshl_add_u32 v27, v28, 3, v27
    v_and_b32 v29, 1, v24                   ; gB&1
    v_lshl_add_u32 v27, v29, 2, v27
    v_and_b32 v30, 1, v25                   ; r&1
    v_add_u32 v27, v27, v30                 ; row
    v_lshlrev_b32 v27, 8, v27
    v_lshl_add_u32 v30, v29, 1, v30
    v_lshl_add_u32 v30, v28, 2, v30         ; f
    v_lshl_add_u32 v27, v26, 3, v27         ; + cq*8
    v_add_u32 v27, {L_WO}, v27
    s_lshl_b32 s{S_T0}, s{S_W}, 1
    """)
    for et in range(2):
        A(f"""
        s_add_u32 s{S_T1}, s{S_T0}, {et}
        v_xor_b32 v31, s{S_T1}, v30
        v_lshl_add_u32 v31, v31, 5, v27
        """)
        for c in range(9):
            kind, base = wfrag_regs(mat, et, c)
            for Hh in range(2):
                for rr in range(2):
                    reg = base + 4 * Hh + 2 * rr
                    A(f"ds_read_b64_tr_b16 {kind}[{reg}:{reg+1}], v31 offset:{Hh*8192 + rr*512}")
            A(f"s_waitcnt lgkmcnt(0)\nv_add_u32 v31, 16384, v31")
    A("s_barrier")

def load_wo(A):
    lw = A.uid("LW")
    A(f"""
    s_load_dwordx2 s[4:5], s[0:1], {KA['A_Wo']}
    s_waitcnt lgkmcnt(0)
    s_mul_i32 s{S_T0}, s{S_H}, {128*1152}
    s_add_u32 s{SRD_W}, s4, s{S_T0}
    s_addc_u32 s{SRD_W+1}, s5, 0
    s_mov_b32 s{SRD_W+2}, {128*1152}
    s_mov_b32 s{SRD_W+3}, 0x00020000
    v_lshrrev_b32 v24, 5, v{V_L16}          ; l>>1
    v_mul_u32_u24 v24, 1152, v24
    v_and_b32 v25, 16, v{V_L16}
    v_add_u32 v24, v24, v25
    """)
    for sg in range(3):
        for tau in range(3):
            for a in range(4):
                A(f"""
                s_mul_i32 s{S_T0}, s{S_W}, 96
                s_add_u32 s{S_T0}, s{S_T0}, {(12*sg + tau)*32 + a*32*1152}
                s_mul_i32 s{S_T1}, s{S_W}, 36864
                s_add_u32 s{S_T1}, s{S_T1}, {L_WO + (sg*3+tau)*4096 + a*1024}
                s_mov_b32 m0, s{S_T1}
                s_nop 0
                buffer_load_dwordx4 v24, s[{SRD_W}:{SRD_W+3}], s{S_T0} offen lds
                """)
    A("s_waitcnt vmcnt(0)")
    A(f"""
    v_lshrrev_b32 v24, 8, v{V_L16}          ; gB
    v_bfe_u32 v25, v{V_L16}, 6, 2           ; r
    v_bfe_u32 v26, v{V_L16}, 4, 2           ; cq
    v_and_b32 v27, 1, v24
    v_lshlrev_b32 v27, 5, v27
    v_lshrrev_b32 v28, 1, v25
    v_lshl_add_u32 v27, v28, 4, v27
    v_lshrrev_b32 v28, 1, v24
    v_lshl_add_u32 v27, v28, 2, v27
    v_and_b32 v28, 1, v25
    v_add_u32 v27, v27, v28
    v_lshlrev_b32 v27, 5, v27
    v_lshl_add_u32 v27, v26, 3, v27
    s_mul_i32 s{S_T1}, s{S_W}, 36864
    s_add_u32 s{S_T1}, s{S_T1}, {L_WO}
    v_add_u32 v27, s{S_T1}, v27
    """)
    for sl in range(9):
        for k in range(2):
            for Hh in range(2):
                for rr in range(2):
                    reg = 32 + k * 8 + Hh * 4 + rr * 2
                    A(f"ds_read_b64_tr_b16 v[{reg}:{reg+1}], v27 offset:{sl*4096 + (64*k + 8*Hh + 2*rr)*32}")
        A("s_waitcnt lgkmcnt(0)")
        for k in range(2):
            for Hh in range(2):
                reg = 32 + k * 8 + Hh * 4
                A(f"ds_write_b128 v{V_WO}, v[{reg}:{reg+3}] offset:{sl*4096 + k*2048 + Hh*1024}")
        A("s_waitcnt lgkmcnt(0)")
    A("s_barrier")

class Lg:
    def __init__(self, A): self.A = A; self.n = 0; self.done = 0
    def issue(self, txt):
        self.A(txt); self.n += 1; return self.n
    def wait(self, i):
        if i <= self.done: return
        cnt = self.n - i
        assert cnt <= 15, cnt
        self.A(f"s_waitcnt lgkmcnt({cnt})"); self.done = i
    def waitall(self):
        self.wait(self.n)

def smf(d, a, b): return f"v_smfmac_f32_16x16x64_bf16 {vr(d,4)}, {vr(a,4)}, {b}, v{V_IDX}"
def mf32(d, a, b, c): return f"v_mfma_f32_16x16x32_bf16 {vr(d,4)}, {vr(a,4)}, {vr(b,4)}, {c}"
def mf16(d, a, b, c): return f"v_mfma_f32_16x16x16_bf16 {vr(d,4)}, {vr(a,2)}, {vr(b,2)}, {c}"

def check4(A, r, tmp):
    A(f"v_max3_u32 v{tmp}, v{r}, v{r+1}, v{r+2}\nv_max_u32 v{tmp}, v{tmp}, v{r+3}\nv_cmp_eq_u32 vcc, -1, v{tmp}")


def setup_regs(A):
    A(f"""
    v_lshrrev_b32 v24, 6, v0
    v_and_b32 v25, 63, v0               ; lane
    s_nop 0
    v_readfirstlane_b32 s{S_W}, v24
    v_lshlrev_b32 v{V_L16}, 4, v25      ; l16
    v_and_b32 v26, 15, v25              ; n
    v_lshrrev_b32 v27, 4, v25           ; g
    v_bfe_u32 v28, v26, 1, 1            ; hf(n)
    v_mul_u32_u24 v29, 0xAAAA, v28
    v_add_u32 v{V_IDX}, 0x4444, v29
    s_lshl_b32 s{S_T0}, s{S_W}, 10
    s_add_u32 s{S_T0}, s{S_T0}, {L_QK}
    v_lshrrev_b32 v30, 2, v26               ; n>>2
    v_xor_b32 v30, v30, v27                 ; g ^ (n>>2)
    v_lshlrev_b32 v29, 5, v26
    v_lshl_add_u32 v29, v30, 3, v29
    v_add_u32 v{V_QKW}, s{S_T0}, v29
    v_lshrrev_b32 v29, 2, v26
    v_lshl_add_u32 v29, v27, 2, v29
    v_lshlrev_b32 v29, 5, v29
    v_and_b32 v30, 3, v26
    v_xor_b32 v30, v30, v27
    v_lshl_add_u32 v29, v30, 3, v29
    v_add_u32 v{V_TR}, {L_QK}, v29
    ; OW = L_O + (w>>1)*1024 + (g*16 + n - 2)*16 + (w&1)*8
    s_lshr_b32 s{S_T0}, s{S_W}, 1
    s_lshl_b32 s{S_T0}, s{S_T0}, 10
    s_and_b32 s{S_T1}, s{S_W}, 1
    s_lshl_b32 s{S_T1}, s{S_T1}, 3
    s_add_u32 s{S_T0}, s{S_T0}, s{S_T1}
    s_add_u32 s{S_T0}, s{S_T0}, {L_O - 32}
    v_add_u32 v{V_OW}, s{S_T0}, v{V_L16}
    s_lshl_b32 s{S_T0}, s{S_W}, 3
    v_lshrrev_b32 v29, 3, v26
    v_lshl_add_u32 v29, v27, 1, v29
    v_add_u32 v29, s{S_T0}, v29
    v_lshlrev_b32 v29, 12, v29
    v_and_b32 v30, 7, v26
    v_lshl_add_u32 v29, v30, 4, v29
    s_lshl_b32 s{S_T0}, s{S_H}, 7
    v_add_u32 v{V_P1}, s{S_T0}, v29
    s_lshl_b32 s51, s{S_W}, 5
    s_add_u32 s51, s51, s{S_H}
    s_lshl_b32 s{S_T1}, s51, 12
    v_lshl_add_u32 v29, v27, 1, v28
    v_lshlrev_b32 v29, 7, v29
    v_lshrrev_b32 v30, 2, v26
    v_lshlrev_b32 v30, 1, v30
    v_and_b32 v31, 1, v26
    v_add_u32 v30, v30, v31                 ; irow(n)
    v_lshl_add_u32 v29, v30, 4, v29
    v_add_u32 v{V_RD}, s{S_T1}, v29
    v_lshrrev_b32 v29, 1, v{V_L16}
    v_add_u32 v{V_SR}, {L_S}, v29
    s_lshr_b32 s{S_T1}, s51, 3
    s_mul_i32 s{S_T1}, s{S_T1}, 768
    s_and_b32 s{S_T2}, s51, 7
    s_lshl_b32 s{S_T2}, s{S_T2}, 5
    s_add_u32 s{S_T1}, s{S_T1}, s{S_T2}
    v_bfe_u32 v29, v26, 1, 2                ; tau
    v_lshlrev_b32 v29, 8, v29
    v_lshl_add_u32 v29, v31, 4, v29
    v_lshl_add_u32 v29, v27, 2, v29
    v_add_u32 v{V_MST}, s{S_T1}, v29
    s_mul_i32 s{S_T0}, s{S_W}, 36864
    s_add_u32 s{S_T0}, s{S_T0}, {L_WO}
    v_add_u32 v{V_WO}, s{S_T0}, v{V_L16}
    v_mov_b32 v{V_ZERO}, 0
    s_mov_b32 s{S_VALID}, 0xcccccccc
    s_mov_b32 s{S_VALID+1}, 0xcccccccc
    s_mov_b32 s{S_MMASK}, 0x003f003f
    s_mov_b32 s{S_MMASK+1}, 0x003f003f
    s_lshr_b32 s{S_TAU512}, s{S_W}, 1
    s_lshl_b32 s{S_TAU512}, s{S_TAU512}, 9
    s_lshl_b32 s{S_GW}, s{S_W}, 10
    v_mov_b32 v{V_PM}, 0
    s_mov_b32 s{S_FAIL}, 0
    s_mov_b32 s{S_T4}, 0x21800000       ; 2^-60
    s_mov_b32 s{S_LHI}, 0x5f800000      ; 2^64
    """)

def init_state(A, flags=False):
    L3 = A.uid("L3")
    A(f"""
    s_mov_b32 s{S_STEP}, 0
    s_mov_b32 s{S_P1}, {WS_P1}
    s_mov_b32 s{S_MC}, {WS_M}
    s_mov_b32 s{S_MN}, {WS_M + M_SLOT}
    s_mov_b32 s{S_MT}, {WS_M + 2*M_SLOT}
    s_lshl_b32 s{S_T0}, s{S_H}, 14
    s_add_u32 s{S_KV}, s{S_T0}, {WS_KV}
    s_mov_b32 s{S_KM}, {WS_MEMS}
    s_add_u32 s{S_PF0}, s{S_KV}, {32*16384}
    s_add_u32 s{S_PF1}, s{S_PF0}, 8192
    s_cmp_eq_u32 s{S_W}, 3
    s_cmp_eq_u32 s{S_W}, 2
    s_cselect_b32 s{S_T0}, 1, 0
    s_cmp_lt_u32 s{S_H}, 9
    s_cselect_b32 s{S_T1}, s{S_T0}, 0
    s_cselect_b32 s{S_MCH}, s{S_H}, 0
    s_and_b32 s{S_T1}, s{S_T1}, {1 if flags else 0}
    s_lshl_b32 s{S_MCH}, s{S_MCH}, 10
    s_mov_b32 s{S_MP1}, s{S_T1}
    s_mov_b32 s{S_MP1+1}, 0
    s_sub_u32 s{S_MP}, 0, s{S_T1}
    s_mov_b32 s{S_MP+1}, s{S_MP}
    s_cmp_eq_u32 s{S_W}, 3
    s_cselect_b32 s{S_WV}, 1, s{S_T1}
    s_add_u32 s{S_KMC}, s{S_KM}, s{S_MCH}
    s_mov_b32 s{S_CFV}, s7
    s_add_u32 s{S_MC6}, s{S_MC}, 6144
    s_lshl_b32 s{S_T0}, s{S_TAU512}, 3
    s_add_u32 s{S_KXO}, s{S_T0}, s{S_KV}
    s_lshl_b32 s{S_T0}, s{S_W}, 11
    s_add_u32 s{S_T0}, s{S_T0}, s{S_KV}
    s_add_u32 s{S_VXO}, s{S_T0}, 8192
    s_mov_b32 s{S_T3}, {f32bits(QSCALE):#x}
    s_mov_b32 s{S_SPIN}, {SPIN_MAX}
    s_mov_b32 s{S_ONES}, 0x3f803f80
    s_mov_b32 s{S_ONES+1}, 0x3f803f80
    s_mov_b32 s{S_SELO}, {WS_SEL}
    v_add_u32 v{V_PM}, s{S_GW}, v{V_L16}
    s_cmp_eq_u32 s{S_W}, 3
    s_cbranch_scc0 {L3}
    v_lshlrev_b32 v{V_PF}, 3, v{V_L16}
    {L3}:
    """)
    ws = f"s[{SRD_WS}:{SRD_WS+3}]"
    for c in range(4): A(f"buffer_load_dwordx4 {vr(KX(c),4)}, v{V_L16}, {ws}, s{S_KXO} offen offset:{c*1024}")
    for et in range(2): A(f"buffer_load_dwordx4 {vr([V_VX0,V_VX1][et],4)}, v{V_L16}, {ws}, s{S_VXO} offen offset:{et*1024}")
    A("s_waitcnt vmcnt(0)")
    for b in (V_AQ, V_AK):
        for i in range(4): A(f"v_mov_b64 {vr(b+2*i,2)}, 0")

def housekeeping():
    return [
      f"s_xor_b32 s{S_P1}, s{S_P1}, {P1_SLOT}",
      f"s_mov_b32 s{S_T0}, s{S_MC}", f"s_mov_b32 s{S_MC}, s{S_MN}", f"s_mov_b32 s{S_MN}, s{S_MT}", f"s_mov_b32 s{S_MT}, s{S_T0}",
      f"s_add_u32 s{S_KV}, s{S_KV}, {32*16384}", f"s_add_u32 s{S_KM}, s{S_KM}, 16384",
      f"s_add_u32 s{S_STEP}, s{S_STEP}, 1", f"s_add_u32 s{S_TAG}, s{S_TAG}, 1", f"s_add_u32 s{S_TAG4}, s{S_TAG4}, 4",
      f"s_add_u32 s{S_MC6}, s{S_MC}, 6144", f"s_add_u32 s{S_KMC}, s{S_KMC}, 16384", f"s_add_u32 s{S_CFV}, s{S_CFV}, 1",
      f"s_add_u32 s{S_KXO}, s{S_KXO}, {32*16384}", f"s_add_u32 s{S_VXO}, s{S_VXO}, {32*16384}",
    ]


def chain_step(A, st, prof=False, nsteps=64, opt=()):
    ws = f"s[{SRD_WS}:{SRD_WS+3}]"
    CUTL = A.uid("CUT")
    def stamp(name):
        name = str(name)
        if CUT == name: A(f"s_memtime s[72:73]\ns_branch {CUTL}")
        if not prof or name not in STAMPS: return
        i = STAMPS.index(name)
        if "abs" in opt: A(f"s_memrealtime s[{70+2*i}:{71+2*i}]")
        else: A(f"s_memtime s[{70+2*i}:{71+2*i}]")
    def stamp_acc():
        if not prof: return
        A("s_waitcnt lgkmcnt(0)")
        if "abs" in opt:
            A(f"s_cmp_eq_u32 s{S_STEP}, 31")
            for i in range(len(STAMPS)): A(f"s_cselect_b32 s{PROF0+i}, s{70+2*i}, s{PROF0+i}")
            return
        prev = 48
        for i in range(len(STAMPS)):
            A(f"s_sub_u32 s52, s{70+2*i}, s{prev}\ns_add_u32 s{PROF0+i}, s{PROF0+i}, s52")
            prev = 70+2*i
        A(f"s_mov_b32 s48, s{70+2*(len(STAMPS)-1)}")
    STEP = A.uid("STEP"); FAIL = A.uid("FAIL"); DONE = A.uid("DONE"); JOIN = A.uid("JOIN"); FINAL = A.uid("FINAL")
    GA, GB, GC, GC2 = 24, 28, 48, 52
    TMP = 14
    def spin(extra=""):
        A(f"s_sub_u32 s{S_SPIN}, s{S_SPIN}, 1\ns_cbranch_scc1 {FAIL}")
        if prof and extra: A(f"s_add_u32 {extra}, {extra}, 1")
    def chk(r, lab, neg=False):
        A(f"v_max3_u32 v{TMP}, v{r}, v{r+1}, v{r+2}\nv_max_u32 v{TMP}, v{TMP}, v{r+3}\nv_cmp_eq_u32 vcc, -1, v{TMP}\n{'s_cbranch_vccz' if neg else 's_cbranch_vccnz'} {lab}")
    def ld(r, which):
        so, off = [(S_MC, 0), (S_MC, 3072), (S_MC6, 0)][which]
        return f"buffer_load_dwordx4 {vr(r,4)}, v{V_PM}, {ws}, s{so} offen offset:{off} sc1"
    def wr(r, which): return f"ds_write_b128 v{V_PM}, {vr(r,4)} offset:{L_MEM + 3072*which}"

    P0, P1, GOK = A.uid("P0"), A.uid("P1"), A.uid("GOK")
    A.label(STEP)
    A(f"s_cmp_eq_u32 s{S_W}, 3\ns_cbranch_scc1 {JOIN}")
    S1 = (64, 68, 72); S2 = (48, 52, 76)
    def lds3(S): return "\n".join(ld(S[i], i) for i in range(3))
    def wrs3(S): return "\n".join(wr(S[i], i) for i in range(3))
    def chk3(S, lab, neg=False):
        regs = [S[i]+j for i in range(3) for j in range(4)]
        A(f"v_max3_u32 v{TMP}, v{regs[0]}, v{regs[1]}, v{regs[2]}")
        for j in range(3, 11, 2): A(f"v_max3_u32 v{TMP}, v{regs[j]}, v{regs[j+1]}, v{TMP}")
        A(f"v_max_u32 v{TMP}, v{regs[11]}, v{TMP}\nv_cmp_eq_u32 vcc, -1, v{TMP}\n{'s_cbranch_vccz' if neg else 's_cbranch_vccnz'} {lab}")
    A(lds3(S1))
    if PGAP: A(f"s_sleep {PGAP}")
    A.label(P0)
    A(lds3(S2))
    A("s_waitcnt vmcnt(3)")
    A(wrs3(S1))
    chk3(S1, GOK, neg=True)
    spin("s99")
    A(lds3(S1))
    A("s_waitcnt vmcnt(3)")
    A(wrs3(S2))
    chk3(S2, P0)
    A.label(GOK)
    A("s_waitcnt lgkmcnt(0)")
    A.label(JOIN)
    stamp(0)
    A("s_barrier")
    if CUT: A("s_memtime s[70:71]")
    L = Lg(A)
    Q, K, V = 0, 1, 2
    order = [(Q,c) for c in range(9)] + [(V,c) for c in range(9)] + [(K,c) for c in range(9)]
    rid = {}; nxt = [0]
    def rd():
        i = nxt[0]
        if i >= len(order): return False
        rid[i] = L.issue(f"ds_read_b128 {vr(V_R + 4*(i%NRING), 4)}, v{V_L16} offset:{L_MEM + order[i][1]*1024}")
        nxt[0] += 1
        return True
    ACCS = [V_AQ, V_AK2, V_AVX]
    def item(i, f1=(), f2=()):
        mat, c = order[i]
        L.wait(rid[i])
        skip = ("noV" in opt and mat == 2) or ("noQ" in opt and mat == 0) or ("noK" in opt and mat == 1)
        if not skip: A(smf(ACCS[mat], V_R + 4*(i%NRING), wfrag(mat,0,c)))
        for x in f1: A(x)
        if not skip: A(smf(ACCS[mat]+4, V_R + 4*(i%NRING), wfrag(mat,1,c)))
        while nxt[0] < i + 1 + NRING and rd(): pass
        for x in f2: A(x)
    if "flags" in opt:
        A(f"s_cmp_eq_u32 s{S_STEP}, {nsteps-1}\ns_cbranch_scc1 {FINAL}")
    for _ in range(NRING): rd()
    npf = 0 if "nopf" in opt else 1
    PF3, PF3b = A.uid("PF3"), A.uid("PF3b")
    kvl = [f"buffer_load_dwordx4 {vr(KX(c),4)}, v{V_L16}, {ws}, s{S_KXO} offen offset:{c*1024}" for c in range(4)] + \
          [f"buffer_load_dwordx4 {vr([V_VX0,V_VX1][et],4)}, v{V_L16}, {ws}, s{S_VXO} offen offset:{et*1024}" for et in range(2)]
    for i in range(0, 9): item(i, (), [kvl[i//2]] if i % 2 == 0 else ())
    stamp(1)
    qfold = []
    for t in range(2):
        b = V_AQ + 4*t
        qfold += [f"v_add_f32 v{b}, v{b}, v{b+2}", f"v_add_f32 v{b+1}, v{b+1}, v{b+3}",
                  f"v_mul_f32 v{b}, s{S_T3}, v{b}", f"v_mul_f32 v{b+1}, s{S_T3}, v{b+1}",
                  f"v_cvt_pk_bf16_f32 v{V_SX+t}, v{b}, v{b+1}"]
    M3 = f"s_mov_b64 exec, s[{S_M3}:{S_M3+1}]"; MALL = "s_mov_b64 exec, -1"
    pf = []; pub1 = []; pub2 = []
    if npf:
        pf = [M3, f"buffer_load_dword v{V_PF+1}, v{V_PF}, {ws}, s{S_PF0} offen", f"buffer_load_dword v{V_PF+1}, v{V_PF}, {ws}, s{S_PF1} offen"]
        if "flags" in opt: pf += [f"buffer_load_dword v{V_PF+1}, v{V_ZERO}, {ws}, s{S_PFA} offen sc1"]
        pf += [MALL]
    item(9); item(10, (), [kvl[5], qfold[0]])
    mrd = None
    if "flags" in opt:
        A(f"v_add_u32 v{V_PM}, s{S_MCH}, v{V_L16}")
        mrd = L.issue(f"ds_read_b128 {vr(V_F23,4)}, v{V_PM} offset:{L_MEM}")
    item(11, qfold[1:3], qfold[3:5]); item(12, qfold[5:7], qfold[7:9]); item(13, qfold[9:10])
    qw = L.issue(f"ds_write2_b32 v{V_QKW}, v{V_SX}, v{V_SX+1} offset0:1 offset1:129")
    PUBL, PUBb = A.uid("PUBL"), A.uid("PUBb")
    if "flags" in opt:
        L.wait(mrd)
        A(f"s_cmp_lg_u32 s{S_MP}, 0\ns_cbranch_scc1 {PUBL}")
        A.label(PUBb)
    item(14)
    if npf:
        A(f"s_cmp_eq_u32 s{S_W}, 3\ns_cbranch_scc1 {PF3}")
        A.label(PF3b)
    item(15)
    W2, W2b = A.uid("W2"), A.uid("W2b")
    A(f"s_cmp_lg_u32 s{S_WV}, 0\ns_cbranch_scc1 {W2}\ns_waitcnt vmcnt(0)")
    A.label(W2b)
    L.wait(qw)
    A("s_barrier")
    fr = {}
    f2k = [(cc,Hh) for cc in range(4) for Hh in range(2)]
    f1 = [f"ds_read_b64_tr_b16 {vr(F(cc)+2*Hh,2)}, v{V_TR} offset:{cc*1024 + Hh*512}" for cc, Hh in f2k]
    for j in range(8): fr[f2k[j]] = L.issue(f1[j])
    item(16); item(17)
    stamp(3)
    AV = V_AVX
    L.wait(fr[(1,1)])
    A(mf32(V_SX, KX(0), F(0), "0"))
    A(mf32(V_SX, KX(1), F(1), vr(V_SX,4)))
    L.wait(fr[(3,1)])
    A(mf32(V_SX, KX(2), F(2), vr(V_SX,4)))
    A(mf32(V_SX, KX(3), F(3), vr(V_SX,4)))
    for i in range(4): A(f"v_mov_b64 {vr(V_AK2+2*i,2)}, 0")
    A(f"v_add_u32 v{V_PM}, s{S_TAU512}, v{V_SR}")
    stamp("sx")
    vfold = []
    for b in (AV, AV+4):
        vfold += [f"v_add_f32 v{b}, v{b}, v{b+2}", f"v_add_f32 v{b+1}, v{b+1}, v{b+3}", f"v_cvt_pk_bf16_f32 v{b}, v{b}, v{b+1}", f"v_mov_b32 v{b+1}, 0"]
    exo = [f"v_exp_f32 v{V_SX+r}, v{V_SX+r}" for r in range(4)]
    item(18, (), exo[0:1]); item(19, exo[1:2], exo[2:3]); item(20, exo[3:4], vfold[0:1])
    A(f"v_cvt_pk_bf16_f32 v{V_SX}, v{V_SX}, v{V_SX+1}\nv_cvt_pk_bf16_f32 v{V_SX+1}, v{V_SX+2}, v{V_SX+3}")
    sw = L.issue(f"ds_write_b64 v{V_PM}, {vr(V_SX,2)}")
    ones = [f"v_mov_b64 {vr(V_ONES,2)}, s[{S_ONES}:{S_ONES+1}]", f"v_mov_b64 {vr(V_ONES+2,2)}, s[{S_ONES}:{S_ONES+1}]"]
    item(21, vfold[1:2], vfold[2:3]); item(22, vfold[3:4], vfold[4:5])
    L.wait(sw)
    A("s_barrier")
    s0 = L.issue(f"ds_read2_b64 {vr(V_S0,4)}, v{V_SR} offset0:0 offset1:64")
    stamp(4)
    item(23, vfold[5:6], vfold[6:7]); item(24, vfold[7:8], ones[0:1]); item(25, ones[1:2])
    L.wait(s0)
    item(26)
    NF = 18
    WB = [V_KA, V_R, V_R+8, V_KB, V_AK, V_AQ]
    NB = len(WB)
    wf = {}
    def wrd(f):
        if "noWrd" in opt:
            wf[f] = L.n; return
        if f < NF:
            sl, k = divmod(f, 2)
            L.issue(f"ds_read_b128 {vr(WB[f%NB],4)}, v{V_WO} offset:{sl*4096 + k*2048}")
            wf[f] = L.issue(f"ds_read_b128 {vr(WB[f%NB]+4,4)}, v{V_WO} offset:{sl*4096 + k*2048 + 1024}")
    A(mf32(F(2), V_ONES, V_S0, "0"))
    A(mf32(F(0), V_VX0, V_S0, "0"))
    A(mf32(F(1), V_VX1, V_S0, "0"))
    A("s_nop 3")
    stamp(5)
    for t in range(2):
        b = V_AK2 + 4*t
        A(f"v_add_f32 v{b}, v{b}, v{b+2}\nv_add_f32 v{b+1}, v{b+1}, v{b+3}\nv_cvt_pk_bf16_f32 v{V_SX+2+t}, v{b}, v{b+1}")
    kw = L.issue(f"ds_write2_b32 v{V_QKW}, v{V_SX+2}, v{V_SX+3} offset0:0 offset1:128")
    A(f"v_mov_b32 v{V_SX}, s{S_LHI}")
    L.wait(kw)
    A("s_barrier")
    fr2 = {}
    for cc, Hh in f2k: fr2[(cc,Hh)] = L.issue(f"ds_read_b64_tr_b16 {vr(V_F2+4*cc+2*Hh,2)}, v{V_TR} offset:{cc*1024 + Hh*512}")
    wrd(0)
    stamp("kb")
    sm = V_SM
    L.wait(fr2[(0,1)])
    A(mf32(sm, V_F2, V_F2, "0"))
    L.wait(fr2[(1,1)])
    A(mf32(sm, V_F2+4, V_F2+4, vr(sm,4)))
    L.wait(fr2[(2,1)])
    A(mf32(sm, V_F2+8, V_F2+8, vr(sm,4)))
    L.wait(fr2[(3,1)])
    A(mf32(sm, V_F2+12, V_F2+12, vr(sm,4)))
    wrd(1); wrd(2)
    A("s_nop 3")
    A(f"v_exp_f32 v{sm}, v{sm}\nv_exp_f32 v{sm+1}, v{sm+1}\ns_nop 0")
    A(f"v_cvt_pk_bf16_f32 v{V_PM}, v{sm}, v{sm+1}\ns_nop 1")
    A(mf16(F(2), V_ONES, V_PM, vr(F(2),4)))
    A(mf16(F(0), AV, V_PM, vr(F(0),4)))
    A(mf16(F(1), AV+4, V_PM, vr(F(1),4)))
    wrd(3)
    stamp("pvm0")
    A("s_nop 3")
    A(f"v_med3_f32 v{V_SX}, v{F(2)}, s{S_T4}, v{V_SX}")
    A(f"v_cmp_neq_f32 vcc, v{V_SX}, v{F(2)}")
    A(f"v_rcp_f32 v{V_SX}, v{F(2)}")
    A(f"s_and_b64 vcc, vcc, s[{S_VALID}:{S_VALID+1}]")
    SLOW = A.uid("SLOW"); BACK = A.uid("BACK"); LAST = A.uid("LAST")
    A(f"s_cbranch_vccnz {SLOW}")
    A.label(BACK)
    stamp("pvm")
    A(f"s_cmp_eq_u32 s{S_STEP}, {nsteps-1}\ns_cbranch_scc1 {LAST}")
    A("s_nop 0")
    stamp("n1")
    if "x32" in opt:
        for i in range(32): A(f"v_mov_b32 v{V_PM}, v{V_ZERO}")
    if "w64" in opt: A("s_nop 15")
    if "pkmul" in opt:
        for r in (0, 2): A(f"v_pk_mul_f32 {vr(F(0)+r,2)}, {vr(F(0)+r,2)}, {vr(V_SX,2)} op_sel_hi:[1,0]")
    for r in range(4):
        if "nomul" not in opt and "pkmul" not in opt: A(f"v_mul_f32 v{F(0)+r}, v{F(0)+r}, v{V_SX}")
    stamp("n2")
    A(f"v_cvt_pk_bf16_f32 v{F(0)}, v{F(0)}, v{F(0)+1}\nv_cvt_pk_bf16_f32 v{F(0)+1}, v{F(0)+2}, v{F(0)+3}")
    stamp("n3")
    if "pkmul" in opt:
        for r in (0, 2): A(f"v_pk_mul_f32 {vr(F(1)+r,2)}, {vr(F(1)+r,2)}, {vr(V_SX,2)} op_sel_hi:[1,0]")
    for r in range(4):
        if "nomul" not in opt and "pkmul" not in opt: A(f"v_mul_f32 v{F(1)+r}, v{F(1)+r}, v{V_SX}")
    stamp("n4")
    A(f"v_cvt_pk_bf16_f32 v{F(1)}, v{F(1)}, v{F(1)+1}\nv_cvt_pk_bf16_f32 v{F(1)+1}, v{F(1)+2}, v{F(1)+3}")
    stamp("n5")
    A(f"s_mov_b64 exec, s[{S_VALID}:{S_VALID+1}]")
    ow = L.issue(f"ds_write2_b64 v{V_OW}, {vr(F(0),2)}, {vr(F(1),2)} offset0:0 offset1:4")
    A("s_mov_b64 exec, -1")
    stamp(6)
    ACC = [V_VX0, V_VX1]
    for a in ACC:
        A(f"v_mov_b64 {vr(a,2)}, 0\nv_mov_b64 {vr(a+2,2)}, 0")
    A(f"v_mov_b32 v{V_OUT+3}, s{S_TAG}")
    stamp("o1")
    L.wait(ow)
    stamp("o2")
    A("s_barrier")
    stamp("o3")
    o0 = L.issue(f"ds_read_b128 {vr(V_F23,4)}, v{V_L16} offset:{L_O}")
    o1 = L.issue(f"ds_read_b128 {vr(V_F23+4,4)}, v{V_L16} offset:{L_O+1024}")
    wrd(4); wrd(5)
    stamp("o4")
    stamp("o5")
    stamp("o6")
    L.wait(o1)
    stamp(7)
    NT = 9
    NA = len(ACC)
    def epi(sl):
        a = ACC[sl % NA]; tau = sl % 3
        q = [f"v_add_f32 v{a}, v{a}, v{a+2}", f"v_add_f32 v{a+1}, v{a+1}, v{a+3}", f"v_cvt_pk_bf16_f32 v{V_OUT+tau}, v{a}, v{a+1}"]
        if sl < NT - NA: q += [f"v_mov_b64 {vr(a,2)}, 0", f"v_mov_b64 {vr(a+2,2)}, 0"]
        if tau == 2:
            sg = sl // 3
            q += [f"s_add_u32 s{S_T0}, s{S_P1}, {sg*131072}", f"buffer_store_dwordx4 {vr(V_OUT,4)}, v{V_P1}, {ws}, s{S_T0} offen {st}"]
        return q
    for sl in range(NT):
        if sl in (3, 6): stamp(f"wo{sl}")
        pend = epi(sl - 1) if sl >= 1 else []
        L.wait(wf[2*sl+1])
        nread = 0
        for k in range(2):
            f = 2*sl + k
            if "noWo" not in opt: A(smf(ACC[sl%NA], V_F23 + 4*k, vr(WB[f%NB], 8)))
            if f + NB < NF: wrd(f + NB); nread += 1
            elif k == 0 and pend: A("s_nop 1")
            if sl == 1 and k == 0: A("s_nop 2")
            if pend: A(pend.pop(0))
        for x in pend: A(x)
        if sl >= 1 and sl < NT - NA + 1: A("s_nop 0")
    A("s_nop 6")
    for x in epi(NT-1): A(x)
    stamp(8)
    hk = housekeeping()
    if "fixkv" in opt: hk = [x for x in hk if f"s{S_KXO}," not in x and f"s{S_VXO}," not in x]
    zero = [f"v_mov_b64 {vr(b+2*i,2)}, 0" for b in (V_AQ, V_AK) for i in range(4)]
    NR = A.uid("NR"); R0 = A.uid("R0"); R1 = A.uid("R1"); RB = A.uid("RB"); RW3 = A.uid("RW3")
    SEL = V_F23
    A(f"s_cmp_eq_u32 s{S_W}, 3\ns_cbranch_scc1 {RW3}")
    A(f"s_mov_b32 s{S_T1}, s{S_P1}\ns_mov_b32 s{S_T2}, s{S_MN}\ns_mov_b32 s53, s{S_MC}\ns_mov_b32 s41, s{S_TAG4}")
    A(f"buffer_load_dwordx4 {vr(SEL,4)}, v{V_L16}, {ws}, s{S_SELO} offen")
    zeroq = [f"v_mov_b64 {vr(V_AQ+2*i,2)}, 0" for i in range(4)]
    zerok = [f"v_mov_b64 {vr(V_AK+2*i,2)}, 0" for i in range(4)]
    for x in hk + zeroq: A(x)
    d0, d1, d2 = DELAYS
    if d0: A(f"s_sleep {d0}")
    A(f"s_cmp_eq_u32 s{S_W}, 0\ns_cbranch_scc1 {R0}")
    if d1: A(f"s_sleep {d1}")
    A(f"s_cmp_eq_u32 s{S_W}, 1\ns_cbranch_scc1 {R0}")
    if d2: A(f"s_sleep {d2}")
    A.label(R0)
    stamp(11)
    BX, BY = V_R, V_KA
    def rl(B): return [f"buffer_load_dwordx4 {vr(B+4*q,4)}, v{V_RD}, {ws}, s{S_T1} offen offset:{q*1024} sc1" for q in range(4)]
    def proc(B, young=4):
        for q in range(4):
            A(f"s_waitcnt vmcnt({young + 3 - q})")
            A(mf32(V_SX, B+4*q, SEL, "0" if q == 0 else vr(V_SX,4)))
        A(f"v_add3_u32 v{V_PM}, v{B+3}, v{B+7}, v{B+11}\nv_add_u32 v{V_PM}, v{V_PM}, v{B+15}\nv_cmp_ne_u32 vcc, s41, v{V_PM}")
    FIN = A.uid("FIN")
    for x in rl(BX): A(x)
    for x in zerok: A(x)
    if RGAP: A(f"s_sleep {RGAP}")
    for x in rl(BY): A(x)
    proc(BX, 4)
    A(f"s_cbranch_vccz {FIN}")
    A.label(RB)
    spin("s98")
    for x in rl(BX): A(x)
    proc(BY)
    A(f"s_cbranch_vccz {FIN}")
    spin("s98")
    for x in rl(BY): A(x)
    proc(BX)
    A(f"s_cbranch_vccnz {RB}")
    A("s_nop 0")
    A.label(FIN)
    stamp(12)
    A(f"v_mov_b32 v{V_PM}, -1\ns_mov_b64 exec, s[{S_MMASK}:{S_MMASK+1}]\ns_nop 1")
    A(f"v_add_f32 v{V_SX}, v{V_SX}, v{V_SX+2}\nv_add_f32 v{V_SX+1}, v{V_SX+1}, v{V_SX+3}\nv_cvt_pk_bf16_f32 v{V_SX}, v{V_SX}, v{V_SX+1}")
    A(f"buffer_store_dword v{V_SX}, v{V_MST}, {ws}, s{S_T2} offen {st}")
    A(f"buffer_store_dword v{V_PM}, v{V_MST}, {ws}, s53 offen {st}")
    A("s_mov_b64 exec, -1")
    if G01:
        NG01 = A.uid("NG")
        A(f"s_cmp_eq_u32 s{S_W}, 2\ns_cbranch_scc1 {NR}\ns_sleep {G01}")
    A.label(NR)
    A(f"v_add_u32 v{V_PM}, s{S_GW}, v{V_L16}")
    stamp(13)
    stamp_acc()
    A(f"s_mov_b32 s{S_SPIN}, {SPIN_MAX}")
    A(f"s_branch {STEP}")
    A.label(RW3)
    for x in hk + zeroq + zerok: A(x)
    if "flags" in opt:
        A(f"s_waitcnt vmcnt(3)")
        PW, PK = A.uid("PW"), A.uid("PK")
        A(f"s_cmp_lt_u32 s{S_STEP}, 62\ns_cbranch_scc0 {PK}")
        A.label(PW)
        A(f"v_readfirstlane_b32 s{S_T1}, v{V_PF+1}")
        A(f"s_sub_u32 s{S_T1}, s{S_T1}, s7\ns_sub_u32 s{S_T1}, s{S_T1}, 1\ns_cmp_lt_u32 s{S_T1}, 16\ns_cbranch_scc0 {PW}n\ns_cmp_ge_u32 s{S_T1}, s{S_PKK}\ns_cbranch_scc1 {PK}")
        A.label(PW + "n")
        spin()
        A(f"s_sleep 8\nbuffer_load_dword v{V_PF+1}, v{V_ZERO}, {ws}, s{S_PFA} offen sc1\ns_waitcnt vmcnt(0)\ns_branch {PW}")
        A.label(PK)
        A(f"s_add_u32 s{S_PRHO}, s{S_PRHO}, 1\ns_cmp_eq_u32 s{S_PRHO}, 7\ns_cselect_b32 s{S_T0}, 1, 0\ns_cselect_b32 s{S_PRHO}, 0, s{S_PRHO}\ns_add_u32 s{S_PKK}, s{S_PKK}, s{S_T0}")
        A(f"s_lshl_b32 s{S_PFA}, s{S_PRHO}, 2\ns_add_u32 s{S_PFA}, s{S_PFA}, s{S_PFO}")
    A(f"s_add_u32 s{S_PF0}, s{S_KV}, {32*16384}\ns_add_u32 s{S_PF1}, s{S_PF0}, 8192")
    stamp(11); stamp(12)
    A(f"s_branch {NR}")
    if "flags" in opt:
        A.label(PUBL)
        A(f"s_mov_b64 exec, 1\nv_mov_b32 v{V_PM}, s{S_CFV}\nbuffer_store_dword v{V_PM}, v{V_ZERO}, {ws}, s{S_CFO} offen sc1\ns_mov_b64 exec, -1")
        A(f"buffer_store_dwordx4 {vr(V_F23,4)}, v{V_L16}, {ws}, s{S_KMC} offen sc1\ns_branch {PUBb}")
    if npf:
        A.label(PF3)
        A(f"buffer_load_dword v{V_PF+1}, v{V_PF}, {ws}, s{S_PF0} offen\nbuffer_load_dword v{V_PF+1}, v{V_PF}, {ws}, s{S_PF1} offen")
        if "flags" in opt: A(f"buffer_load_dword v{V_PF+1}, v{V_ZERO}, {ws}, s{S_PFA} offen sc1")
        A(f"s_branch {PF3b}")
    A.label(W2)
    if "flags" in opt:
        A(f"s_cmp_eq_u32 s{S_W}, 3\ns_cbranch_scc0 {W2}m\ns_waitcnt vmcnt({2*npf + 1})\ns_branch {W2b}")
        A.label(W2 + "m"); A(f"s_waitcnt vmcnt(2)\ns_branch {W2b}")
    else:
        A(f"s_waitcnt vmcnt({2*npf})\ns_branch {W2b}")
    A.label(SLOW)
    L2 = Lg(A)
    A("s_nop 7")
    for cc in range(4):
        for Hh in range(2):
            L2.issue(f"ds_read_b64_tr_b16 {vr(F(cc)+2*Hh,2)}, v{V_TR} offset:{cc*1024 + Hh*512}")
    T0r, T1r = V_S0, V_SX
    for tau in range(2):
        A(f"s_add_u32 s{S_T0}, s{S_KV}, {tau*4096}")
        for c in range(4): A(f"buffer_load_dwordx4 {vr(V_R+4*c,4)}, v{V_L16}, {ws}, s{S_T0} offen offset:{c*1024}")
        A("s_waitcnt vmcnt(0) lgkmcnt(0)")
        d = [T0r, T1r][tau]
        for c in range(4): A(mf32(d, V_R+4*c, F(c), "0" if c == 0 else vr(d,4)))
        A("s_nop 7")
    for c in range(4):
        A(mf32(sm, F(c), F(c), "0" if c == 0 else vr(sm,4)))
    A("s_nop 7\ns_nop 1")
    a0, a1 = T0r, T1r
    A(f"v_max3_f32 v{V_PM}, v{a0}, v{a0+1}, v{a0+2}")
    A(f"v_max3_f32 v{V_PM}, v{a0+3}, v{a1}, v{V_PM}")
    A(f"v_max3_f32 v{V_PM}, v{a1+1}, v{a1+2}, v{V_PM}")
    A(f"v_max3_f32 v{V_PM}, v{a1+3}, v{sm}, v{V_PM}")
    A(f"v_max_f32 v{V_PM}, v{sm+1}, v{V_PM}")
    t = F(3)
    A(f"v_mov_b32 v{t}, v{V_PM}\ns_nop 1\nv_permlane32_swap_b32 v{t}, v{V_PM}\ns_nop 1\nv_max_f32 v{V_PM}, v{V_PM}, v{t}")
    A(f"v_mov_b32 v{t}, v{V_PM}\ns_nop 1\nv_permlane16_swap_b32 v{t}, v{V_PM}\ns_nop 1\nv_max_f32 v{V_PM}, v{V_PM}, v{t}")
    rs = list(range(a0, a0+4)) + list(range(a1, a1+4)) + [sm, sm+1]
    for r in rs: A(f"v_sub_f32 v{r}, v{r}, v{V_PM}")
    for r in rs: A(f"v_exp_f32 v{r}, v{r}")
    A("s_nop 0")
    A(f"v_cvt_pk_bf16_f32 v{a0}, v{a0}, v{a0+1}\nv_cvt_pk_bf16_f32 v{a0+1}, v{a0+2}, v{a0+3}")
    A(f"v_cvt_pk_bf16_f32 v{a0+2}, v{a1}, v{a1+1}\nv_cvt_pk_bf16_f32 v{a0+3}, v{a1+2}, v{a1+3}")
    A(f"v_cvt_pk_bf16_f32 v{V_PM}, v{sm}, v{sm+1}")
    A(f"v_mov_b64 {vr(V_ONES,2)}, s[{S_ONES}:{S_ONES+1}]\nv_mov_b64 {vr(V_ONES+2,2)}, s[{S_ONES}:{S_ONES+1}]\ns_nop 1")
    A(mf32(F(0), V_VX0, V_S0, "0"))
    A(mf32(F(1), V_VX1, V_S0, "0"))
    A(mf32(F(2), V_ONES, V_S0, "0"))
    A("s_nop 7")
    A(mf16(F(2), V_ONES, V_PM, vr(F(2),4)))
    A(mf16(F(0), AV, V_PM, vr(F(0),4)))
    A(mf16(F(1), AV+4, V_PM, vr(F(1),4)))
    for f in range(4):
        sl, k = divmod(f, 2)
        A(f"ds_read_b128 {vr(WB[f],4)}, v{V_WO} offset:{sl*4096 + k*2048}\nds_read_b128 {vr(WB[f]+4,4)}, v{V_WO} offset:{sl*4096 + k*2048 + 1024}")
    A("s_waitcnt lgkmcnt(0)\ns_nop 7")
    A(f"v_rcp_f32 v{V_SX}, v{F(2)}")
    A(f"s_branch {BACK}")
    A.label(LAST)
    A(f"s_branch {DONE}")
    if "flags" in opt:
        A.label(FINAL)
        A(f"s_cmp_lg_u32 s{S_MP}, 0\ns_cbranch_scc0 {DONE}")
        A(f"s_lshl_b32 s{S_T0}, s{S_H}, 10\nv_add_u32 v{V_PM}, s{S_T0}, v{V_L16}\nds_read_b128 {vr(V_F23,4)}, v{V_PM} offset:{L_MEM}")
        A(f"s_add_u32 s{S_T0}, s{S_T0}, s{S_KM}\ns_waitcnt lgkmcnt(0)")
        A(f"buffer_store_dwordx4 {vr(V_F23,4)}, v{V_L16}, {ws}, s{S_T0} offen sc1\ns_waitcnt vmcnt(0)")
        A(f"s_add_u32 s{S_T0}, s7, {nsteps}\nv_mov_b32 v{V_PM}, s{S_T0}\ns_mov_b64 exec, 1")
        A(f"buffer_store_dword v{V_PM}, v{V_ZERO}, {ws}, s{S_CFO} offen sc1\ns_mov_b64 exec, -1")
        A(f"s_branch {DONE}")
    if CUT:
        A.label(CUTL)
        A(f"s_mov_b64 exec, -1\ns_waitcnt vmcnt(0) lgkmcnt(0)\ns_nop 7\ns_sub_u32 s72, s72, s70\ns_add_u32 s86, s86, s72")
        for b in (V_AQ, V_AK):
            for i in range(4): A(f"v_mov_b64 {vr(b+2*i,2)}, 0")
        for c in range(4): A(f"buffer_load_dwordx4 {vr(KX(c),4)}, v{V_L16}, {ws}, s{S_KXO} offen offset:{c*1024}")
        for et in range(2): A(f"buffer_load_dwordx4 {vr([V_VX0,V_VX1][et],4)}, v{V_L16}, {ws}, s{S_VXO} offen offset:{et*1024}")
        A(f"s_waitcnt vmcnt(0)\ns_add_u32 s{S_STEP}x, 0, 0".replace(f"s_add_u32 s{S_STEP}x, 0, 0", "s_add_u32 s87, s87, 1"))
        A(f"s_cmp_lt_u32 s87, 63\ns_cbranch_scc1 {JOIN}\ns_branch {DONE}")
    A.label(FAIL)
    A(f"s_mov_b64 exec, -1\ns_mov_b32 s{S_FAIL}, 1")
    A.label(DONE)


def chain_init_mem(A, st):
    ws = f"s[{SRD_WS}:{SRD_WS+3}]"
    N0 = A.uid("IM"); N1 = A.uid("IM")
    A(f"""
    s_cmp_lt_u32 s{S_H}, 9
    s_cbranch_scc0 {N1}
    s_cmp_eq_u32 s{S_W}, 0
    s_cbranch_scc0 {N0}
    s_load_dwordx2 s[4:5], s[0:1], {KA['A_mem0']}
    s_waitcnt lgkmcnt(0)
    s_mov_b32 s{SRD_W}, s4
    s_mov_b32 s{SRD_W+1}, s5
    s_mov_b32 s{SRD_W+2}, {8*1152}
    s_mov_b32 s{SRD_W+3}, 0x00020000
    v_bfe_u32 v24, v{V_L16}, 4, 4            ; n
    v_lshrrev_b32 v25, 2, v24
    v_lshlrev_b32 v25, 1, v25
    v_and_b32 v26, 1, v24
    v_add_u32 v25, v25, v26                  ; irow
    v_mul_u32_u24 v25, 1152, v25
    v_bfe_u32 v26, v24, 1, 1                 ; hf
    v_lshl_add_u32 v25, v26, 4, v25
    v_lshrrev_b32 v26, 8, v{V_L16}           ; g
    v_lshl_add_u32 v25, v26, 5, v25
    s_lshl_b32 s{S_T0}, s{S_H}, 7            ; c*128 bytes
    buffer_load_dwordx4 v[28:31], v25, s[{SRD_W}:{SRD_W+3}], s{S_T0} offen
    s_lshl_b32 s{S_T0}, s{S_H}, 10
    s_add_u32 s{S_T0}, s{S_T0}, {WS_M}
    s_waitcnt vmcnt(0)
    buffer_store_dwordx4 v[28:31], v{V_L16}, {ws}, s{S_T0} offen {st}
    s_branch {N1}
    {N0}:
    v_mov_b32 v28, -1
    v_mov_b32 v29, -1
    v_mov_b32 v30, -1
    v_mov_b32 v31, -1
    s_mul_i32 s{S_T0}, s{S_W}, {M_SLOT}
    s_lshl_b32 s{S_T1}, s{S_H}, 10
    s_add_u32 s{S_T0}, s{S_T0}, s{S_T1}
    s_add_u32 s{S_T0}, s{S_T0}, {WS_M}
    s_cmp_eq_u32 s{S_W}, 3
    s_cbranch_scc1 {N0}s
    buffer_store_dwordx4 v[28:31], v{V_L16}, {ws}, s{S_T0} offen {st}
    s_branch {N1}
    {N0}s:
    v_bfe_u32 v24, v{V_L16}, 4, 3            ; j = n & 7
    v_and_b32 v25, 1, v24
    v_lshlrev_b32 v25, 4, v25
    v_mov_b32 v26, 0x3f80
    v_lshlrev_b32 v25, v25, v26              ; X
    v_lshrrev_b32 v24, 1, v24
    """)
    for r in range(4):
        A(f"v_cmp_eq_u32 vcc, {r}, v24\ns_nop 1\nv_cndmask_b32 v{28+r}, 0, v25, vcc")
    A(f"s_mov_b32 s{S_T0}, {WS_SEL}\nbuffer_store_dwordx4 v[28:31], v{V_L16}, {ws}, s{S_T0} offen {st}")
    A.label(N1)
    A("s_waitcnt vmcnt(0)")


def load_all_weights(A):
    import common as CM
    def trfun(mi, half):
        base = L_WO + (0 if half == 0 else 81920)
        A(f"""
        v_lshrrev_b32 v24, 8, v{V_L16}          ; gB
        v_bfe_u32 v25, v{V_L16}, 6, 2           ; r
        v_bfe_u32 v26, v{V_L16}, 4, 2           ; cq
        v_lshrrev_b32 v27, 1, v24
        v_lshlrev_b32 v27, 4, v27
        v_lshrrev_b32 v28, 1, v25
        v_lshl_add_u32 v27, v28, 3, v27
        v_and_b32 v29, 1, v24
        v_lshl_add_u32 v27, v29, 2, v27
        v_and_b32 v30, 1, v25
        v_add_u32 v27, v27, v30                 ; row
        v_lshlrev_b32 v27, 8, v27
        v_lshl_add_u32 v30, v29, 1, v30
        v_lshl_add_u32 v30, v28, 2, v30         ; f
        v_lshl_add_u32 v27, v26, 3, v27
        v_add_u32 v27, {base}, v27
        s_lshl_b32 s{S_T0}, s{S_W}, 1
        """)
        cs = range(0, 5) if half == 0 else range(5, 9)
        for et in range(2):
            A(f"""
            s_add_u32 s{S_T1}, s{S_T0}, {et}
            v_xor_b32 v31, s{S_T1}, v30
            v_lshl_add_u32 v31, v31, 5, v27
            """)
            for c in cs:
                kind, b = wfrag_regs(mi, et, c)
                for Hh in range(2):
                    for rr in range(2):
                        reg = b + 4 * Hh + 2 * rr
                        A(f"ds_read_b64_tr_b16 {kind}[{reg}:{reg+1}], v31 offset:{Hh*8192 + rr*512}")
                A(f"s_waitcnt lgkmcnt(0)\nv_add_u32 v31, 16384, v31")
    CM.load_head_slices_pipelined(A, [KA['A_Wq'], KA['A_Wk'], KA['A_Wv']], L_WO, trfun)
    load_wo(A)
```

```python
import sys
sys.path.insert(0, "gen")
from common import *
import chain4 as C, pstation as P, astation as AS, wstation as W, bstation as B

KNAME = "concat_heads__memory_aug_recurrent_mem_tr__grouped_kv_mqa__prompt_kernel"
SPIN = 4000000
GRAN = 32

def poll_flags(A, s_off, nflags, fail, tmp=(2, 3), spin=35, s_val=S_NONCE):
    ws = f"s[{SRD_WS}:{SRD_WS+3}]"
    Wl = A.uid("PW")
    a, b = tmp
    A(f"v_lshrrev_b32 v{a}, 2, v{V_L16}\nv_cmp_gt_u32 vcc, {4*nflags}, v{a}\ns_nop 1\nv_cndmask_b32 v{a}, 0, v{a}, vcc\ns_mov_b32 s{spin}, {SPIN}")
    A.label(Wl)
    A(f"""
    buffer_load_dword v{b}, v{a}, {ws}, s{s_off} offen sc1
    s_waitcnt vmcnt(0)
    v_cmp_ne_u32 vcc, s{s_val}, v{b}
    s_cbranch_vccz {Wl}k
    s_sub_u32 s{spin}, s{spin}, 1
    s_cbranch_scc1 {fail}
    s_sleep 4
    s_branch {Wl}
    {Wl}k:
    """)

def build(opt=()):
    A = Asm()
    def tl(i, vt=(60,61)):
        if "tl" not in opt: return
        ws = f"s[{SRD_WS}:{SRD_WS+3}]"
        L = A.uid("TL")
        A(f"""
        s_cmp_eq_u32 s{S_W}, 0
        s_cbranch_scc0 {L}
        s_memrealtime s[98:99]
        s_waitcnt lgkmcnt(0)
        v_mov_b32 v{vt[0]}, s98
        v_mov_b32 v{vt[1]}, 0
        s_lshl_b32 s98, s6, 6
        s_add_u32 s98, s98, {WS_FLAGS + 32768 + i*4}
        s_mov_b64 exec, 1
        buffer_store_dword v{vt[0]}, v{vt[1]}, {ws}, s98 offen sc1
        s_mov_b64 exec, -1
        {L}:
        """)
    END = "K_END"
    A(f"""
    s_cmp_lt_u32 s2, 256
    s_cbranch_scc1 K_GO
    s_endpgm
    K_GO:
    s_load_dwordx2 s[4:5], s[0:1], {KA['ws']}
    s_load_dwordx2 s[20:21], s[0:1], {KA['dbg']}
    s_getreg_b32 s3, hwreg(HW_REG_XCC_ID, 0, 4)
    s_waitcnt lgkmcnt(0)
    s_mov_b32 s{SRD_WS}, s4
    s_mov_b32 s{SRD_WS+1}, s5
    s_mov_b32 s{SRD_WS+2}, {WS_SIZE}
    s_mov_b32 s{SRD_WS+3}, 0x00020000
    s_mov_b32 s12, s20
    s_mov_b32 s13, s21
    s_mov_b32 s14, 256
    s_mov_b32 s15, 0x00020000
    """)
    lane_setup(A)
    A("s_mov_b32 s6, s2")
    tl(0, (6,7))
    A(f"""
    s_cmp_eq_u32 s{S_W}, 0
    s_cbranch_scc0 K_TK1
    s_mov_b64 exec, 1
    v_mov_b32 v2, 1
    v_mov_b32 v3, 0
    s_mov_b32 s22, -1
    s_cmp_eq_u32 s3, 0
    s_cbranch_scc0 K_TB
    buffer_atomic_add v2, v3, s[12:15], 0 offen sc0
    s_waitcnt vmcnt(0)
    v_readfirstlane_b32 s22, v2
    s_cmp_lt_u32 s22, 32
    s_cbranch_scc1 K_TW
    K_TB:
    v_mov_b32 v2, 1
    buffer_atomic_add v2, v3, s[12:15], 0 offen offset:64 sc0
    s_waitcnt vmcnt(0)
    v_readfirstlane_b32 s23, v2              ; ticket B
    s_mov_b32 s22, -1
    s_cmp_lt_u32 s23, 224
    s_cbranch_scc1 K_TB2
    s_sub_u32 s22, 255, s23
    K_TB2:
    s_cmp_eq_u32 s23, 0
    s_cbranch_scc0 K_TW2
    s_memrealtime s[24:25]
    s_waitcnt lgkmcnt(0)
    s_or_b32 s24, s24, 1
    v_mov_b32 v2, s24
    buffer_store_dword v2, v3, s[12:15], 0 offen offset:128 sc1
    s_branch K_TW2
    K_TW:
    s_mov_b32 s23, -1
    K_TW2:
    v_mov_b32 v4, s22
    v_mov_b32 v5, s23
    ds_write_b64 v3, v[4:5]
    s_waitcnt lgkmcnt(0)
    s_mov_b64 exec, -1
    K_TK1:
    s_barrier
    v_mov_b32 v3, 0
    ds_read_b64 v[4:5], v3
    s_waitcnt lgkmcnt(0)
    v_readfirstlane_b32 s22, v4
    v_readfirstlane_b32 s23, v5
    s_barrier
    s_cmp_eq_u32 s23, -1
    s_cbranch_scc1 K_ROK
    s_cmp_lt_u32 s23, 256
    s_cbranch_scc1 K_ROK
    s_endpgm
    K_ROK:
    s_cmp_eq_u32 s22, -1
    s_cbranch_scc1 K_BULK
    s_branch K_CHAIN
    K_BULK:
    """)
    def get_nonce(fail, srd=12):
        Wl = A.uid("NW")
        A(f"v_mov_b32 v3, 0\ns_mov_b32 s35, {SPIN}")
        A.label(Wl)
        A(f"""
        buffer_load_dword v2, v3, s[{srd}:{srd+3}], 0 offen offset:128 sc1
        s_waitcnt vmcnt(0)
        v_readfirstlane_b32 s{S_NONCE}, v2
        s_cmp_lg_u32 s{S_NONCE}, 0
        s_cbranch_scc1 {Wl}k
        s_sub_u32 s35, s35, 1
        s_cbranch_scc1 {fail}
        s_sleep 2
        s_branch {Wl}
        {Wl}k:
        """)
    A(f"s_and_b32 s{S_H}, s23, 31\ns_lshr_b32 s50, s23, 5\ns_mov_b32 s51, s23")
    A("s_mov_b32 s88, s12\ns_mov_b32 s89, s13\ns_mov_b32 s90, s14\ns_mov_b32 s91, s15")
    n0 = len(A.lines)
    tl(1, (6,7))
    A("s_lshl_b32 s6, s51, 0\ns_add_u32 s6, s6, 256")
    tl(0, (6,7))
    P.p_station(A, 50, nrep=7, flag=True, get_nonce=lambda: get_nonce(END, 88))
    tl(2, (6,7))
    hz = check_hazards(A.lines[n0:], "P")
    A(f"""
    s_cmp_lt_u32 s50, 2
    s_cbranch_scc1 K_A
    s_cmp_eq_u32 s50, 2
    s_cbranch_scc1 K_WB1
    s_branch K_B2
    K_A:
    s_lshl_b32 s28, s{S_H}, 5
    s_add_u32 s28, s28, {WS_FLAGS + F_P}
    s_add_u32 s29, s{S_NONCE}, 16
    """)
    poll_flags(A, 28, 7, END, s_val=29)
    n0 = len(A.lines)
    AS.a_station(A, s_par=50, nrep=2, wait_chain=True, flag=True)
    hz += check_hazards(A.lines[n0:], "A")
    tl(3, (6,7))
    A(f"s_branch {END}")
    A.label("K_WB1")
    A(f"""
    s_sub_u32 s52, s51, 64                   ; 0..31
    s_cmp_lt_u32 s52, 24
    s_cbranch_scc0 K_B1
    s_cmp_ge_u32 s52, 12
    s_cselect_b32 s54, 1, 0
    s_mul_i32 s53, s54, 12
    s_sub_u32 s53, s52, s53
    """)
    n0 = len(A.lines)
    W.w_station(A, 53, 54, 2, wait=True)
    hz += check_hazards(A.lines[n0:], "W")
    tl(3, (4,5))
    A(f"s_branch {END}")
    A.label("K_B1")
    A("s_sub_u32 s53, s52, 24")
    n0 = len(A.lines)
    B.b1_station(A, 53)
    hz += check_hazards(A.lines[n0:], "B1")
    tl(3, (6,7))
    A(f"s_branch {END}")
    A.label("K_B2")
    A("s_sub_u32 s53, s51, 96")
    n0 = len(A.lines)
    B.b2_station(A, 53, wait=True)
    hz += check_hazards(A.lines[n0:], "B2")
    tl(3, (6,7))
    A(f"s_endpgm")
    A.label("K_CHAIN")
    A(f"s_mov_b32 s{C.S_H}, s22\nv_lshrrev_b32 v0, 4, v0\ns_lshl_b32 s28, s{S_W}, 6\nv_add_u32 v0, s28, v0")
    A("s_mov_b32 s60, s12\ns_mov_b32 s61, s13\ns_mov_b32 s62, s14\ns_mov_b32 s63, s15")
    C.setup_regs(A)
    A(f"s_add_u32 s6, s{C.S_H}, 512")
    tl(0, (14,15))
    A(f"""
    v_mov_b32 v25, 0
    s_mov_b32 s65, {SPIN}
    K_MW:
    buffer_load_dword v24, v25, s[60:63], 0 offen sc1
    buffer_load_dword v26, v25, s[60:63], 0 offen offset:64 sc1
    buffer_load_dword v27, v25, s[60:63], 0 offen offset:128 sc1
    s_waitcnt vmcnt(0)
    v_readfirstlane_b32 s28, v24
    v_readfirstlane_b32 s29, v26
    v_readfirstlane_b32 s{S_NONCE}, v27
    s_cmp_eq_u32 s{S_NONCE}, 0
    s_cbranch_scc1 K_MW2
    s_mov_b32 s64, 0
    s_cmp_ge_u32 s28, 32
    s_cbranch_scc1 K_MK
    s_mov_b32 s64, 1
    s_cmp_gt_u32 s29, 224
    s_cbranch_scc1 K_MK
    K_MW2:
    s_sub_u32 s65, s65, 1
    s_cbranch_scc1 {END}
    s_sleep 2
    s_branch K_MW
    K_MK:
    """)
    if "forceslow" in opt: A("s_mov_b32 s64, 1")
    A("s_cmp_eq_u32 s64, 1\ns_cbranch_scc1 K_I1")
    C.chain_init_mem(A, "")
    A("s_branch K_I2")
    A.label("K_I1")
    C.chain_init_mem(A, "sc1")
    A.label("K_I2")
    A(f"""
    s_barrier
    s_cmp_eq_u32 s{S_W}, 0
    s_cbranch_scc0 K_RD
    s_mov_b64 exec, 1
    v_mov_b32 v24, 1
    v_mov_b32 v25, 0
    buffer_atomic_add v24, v25, s[60:63], 0 offen offset:192
    s_mov_b64 exec, -1
    K_RD:
    """)
    C.load_all_weights(A)
    tl(1, (14,15))
    for mode, st in ((0, ""), (1, "sc1")):
        lab = f"K_M{mode}"
        if mode == 0: A(f"s_cmp_eq_u32 s64, 1\ns_cbranch_scc1 K_M1")
        else: A.label("K_M1")
        A(f"""
        v_mov_b32 v25, 0
        s_mov_b32 s65, {SPIN}
        {lab}w:
        buffer_load_dword v24, v25, s[60:63], 0 offen offset:192 sc1
        s_waitcnt vmcnt(0)
        v_readfirstlane_b32 s28, v24
        s_cmp_ge_u32 s28, 32
        s_cbranch_scc1 {lab}k
        s_sub_u32 s65, s65, 1
        s_cbranch_scc1 {END}
        s_sleep 2
        s_branch {lab}w
        {lab}k:
        s_lshl_b32 s{C.S_PFO}, s{C.S_H}, 5
        s_add_u32 s{C.S_PFO}, s{C.S_PFO}, {WS_FLAGS + F_P}
        v_lshrrev_b32 v24, 2, v0
        v_and_b32 v24, 4, v24
        s_mov_b32 s65, {SPIN}
        {lab}p:
        buffer_load_dword v25, v24, s[{SRD_WS}:{SRD_WS+3}], s{C.S_PFO} offen sc1
        s_waitcnt vmcnt(0)
        v_subrev_u32 v25, s{S_NONCE}, v25
        v_subrev_u32 v25, 1, v25
        v_cmp_lt_u32 vcc, 15, v25
        s_cbranch_vccz {lab}q
        s_sub_u32 s65, s65, 1
        s_cbranch_scc1 {END}
        s_sleep 4
        s_branch {lab}p
        {lab}q:
        s_mov_b32 s{C.S_PRHO}, 2
        s_mov_b32 s{C.S_PKK}, 0
        s_add_u32 s{C.S_PFA}, s{C.S_PFO}, 8
        """)
        A(f"""
        s_and_b32 s{C.S_TAG}, s{S_NONCE}, 0x3fff3f00
        s_add_u32 s{C.S_TAG}, s{C.S_TAG}, 1
        s_lshl_b32 s{C.S_TAG4}, s{C.S_TAG}, 2
        s_lshl_b32 s{C.S_CFO}, s{C.S_H}, 2
        s_add_u32 s{C.S_CFO}, s{C.S_CFO}, {WS_FLAGS + F_C}
        """)
        C.init_state(A, flags=True)
        tl(2, (14,15))
        n0 = len(A.lines)
        if "cprof" in opt and mode == 0:
            for i in list(range(86,94))+[98,99,100,101]: A(f"s_mov_b32 s{i}, 0")
            A("s_memtime s[2:3]\ns_waitcnt lgkmcnt(0)\ns_mov_b32 s48, s2")
            for i in range(8): A(f"s_mov_b32 s{70+2*i}, s2")
        C.chain_step(A, st, prof=("cprof" in opt and mode == 0), nsteps=64, opt=("flags",) + tuple(o for o in opt if o in ("nopub","nopf","fixkv")))
        if "cprof" in opt and mode == 0:
            for i in range(8): A(f"v_mov_b32 v{28+i}, s{86+i}")
            A(f"""
            v_mov_b32 v44, s98
            v_mov_b32 v45, s99
            v_mov_b32 v46, s100
            v_mov_b32 v47, s101
            s_lshl_b32 s6, s{C.S_H}, 2
            s_add_u32 s6, s6, s{C.S_W}
            s_mul_i32 s6, s6, 96
            s_add_u32 s6, s6, {WS_FLAGS + 49152 + 32768}
            v_mov_b32 v48, s6
            s_mov_b64 exec, 1
            """)
            for j in range(1, 6): A(f"buffer_store_dwordx4 v[{24+4*j}:{27+4*j}], v48, s[8:11], 0 offen offset:{16*j}")
            A("s_mov_b64 exec, -1\ns_waitcnt vmcnt(0)")
        hz += check_hazards(A.lines[n0:], "chain")
        tl(3, (14,15))
        A("s_endpgm")
    A.label(END)
    return A, hz

HEADER = open("concat_heads__memory_aug_recurrent_mem_tr__grouped_kv_mqa__prompt.s.ref").read().split("; Override launch geometry")[0]

def full_text(opt=()):
    A, hz = build(opt)
    for m in hz: print("HAZARD", m)
    txt = HEADER + "; @launch grid=(256,1,1) block=(256,1,1) lds=163840\n"
    txt += f""".amdgcn_target "amdgcn-amd-amdhsa--gfx950"
.text
.globl {KNAME}
.p2align 8
.type {KNAME},@function
{KNAME}:
"""
    body = "\n".join(l.split(";")[0].rstrip().lstrip() if not l.lstrip().startswith(";") else "" for l in A.lines)
    body = "\n".join(l for l in body.split("\n") if l)
    if "noalign" not in opt:
        import alignpass
        body = "\n".join(alignpass.align(body.split("\n"), GRAN))
    txt += body + f"""
s_endpgm
.section .rodata,"a"
.p2align 6
.amdhsa_kernel {KNAME}
  .amdhsa_next_free_vgpr 512
  .amdhsa_next_free_sgpr 102
  .amdhsa_accum_offset 256
  .amdhsa_group_segment_fixed_size 0
  .amdhsa_kernarg_size 120
  .amdhsa_user_sgpr_count 2
  .amdhsa_user_sgpr_kernarg_segment_ptr 1
  .amdhsa_system_sgpr_workgroup_id_x 1
.end_amdhsa_kernel
"""
    return txt

if __name__ == "__main__":
    opt = tuple(a[2:] for a in sys.argv[1:] if a.startswith("--"))
    for a in sys.argv[1:]:
        if a.startswith("d="): C.DELAYS[:] = [int(x) for x in a[2:].split(",")]
        if a.startswith("g="): C.GSLEEP = int(a[2:])
        if a.startswith("gran="): GRAN = int(a[5:])
        if a.startswith("g01="): C.G01 = int(a[4:])
        if a.startswith("pg="): C.PGAP = int(a[3:])
        if a.startswith("p0="): C.PUB0 = int(a[3:])
        if a.startswith("pgp="): C.PUBG = int(a[4:])
        if a.startswith("rg="): C.RGAP = int(a[3:])
    t = full_text(opt)
    out = "concat_heads__memory_aug_recurrent_mem_tr__grouped_kv_mqa__prompt.s"
    for a in sys.argv[1:]:
        if a.startswith("o="): out = a[2:]
    open(out, "w").write(t)
    print("written", len(t), "bytes")
```

```python
from asmlib import *
from layout import *
import struct

def f32bits(x): return struct.unpack("<I", struct.pack("<f", x))[0]

V_L16, V_IDX, V_QKW, V_TR, V_OW, V_P1, V_RD, V_MST, V_WO, V_SR = 0, 1, 2, 3, 4, 5, 6, 7, 8, 9
V_ONES = 52
V_SX = 14
V_PM = 18
V_ZERO = 19
V_OUT = 14
V_SEL = 48
V_PF = 6
NRING = 4
V_VX0, V_VX1 = 20, 10
S_ONES = 12
V_R = 24
V_AQ = 40
V_F23 = 48
V_AK = 56
V_KA = 64
V_KB = 72
def F(c): return [V_AQ, V_AQ + 4, V_F23, V_F23 + 4][c]
def KX(c): return [V_KA, V_KA + 4, V_KB, V_KB + 4][c]
V_AV = V_KA
V_VX = V_KB
V_AVX = V_AK
V_AK2 = V_KA
V_S0 = V_KB
V_SM = V_KB + 4
V_F2 = 24

S_H, S_W, S_STEP, S_FAIL = 16, 17, 18, 19
S_P1, S_MC, S_MN, S_MT = 20, 21, 22, 23
S_KV, S_KM, S_SPIN = 24, 25, 27
S_T0, S_T1, S_T2 = 28, 29, 30
S_GW = 31
S_VALID = 32
S_MMASK = 34
S_TAU512 = 36
S_T3, S_T4 = 37, 38
S_TAG, S_TAG4 = 39, 40
S_MC6 = 46
S_SELO = 50
S_KXO, S_VXO = 47, 49
SRD_WS = 8
SRD_W = 12
SPIN_MAX = 400000
STAMPS = ['0','3','5','7','8','11','12','13']
DELAYS = [0, 1, 2]
S_LHI = 44
S_CFO = 43
S_PFO, S_PRHO, S_PKK = 42, 68, 69
S_M3, S_MP, S_MP1 = 56, 58, 60
S_WV = 57
S_MCH, S_CFV, S_KMC = 62, 63, 64
S_PF0, S_PF1, S_PFA = 45, 26, 51
GSLEEP = 0
PGAP = 1
WOP = [4,4,3,3,3,3,3,3,3]
GMODE = 0
PUB0 = 2
PUBG = 1
RGAP = 2
G01 = 0
CUT = None
PROF0 = 86

def wfrag(mat, et, c):
    idx = mat * 18 + et * 9 + c
    if idx < 32: return ar(idx * 8, 8)
    return vr(80 + (idx - 32) * 8, 8)
def wfrag_regs(mat, et, c):
    idx = mat * 18 + et * 9 + c
    return ("a", idx * 8) if idx < 32 else ("v", 80 + (idx - 32) * 8)

def load_qkv(A, kaoff, mat):
    lw = A.uid("LW"); lr = A.uid("LR")
    A(f"""
    s_load_dwordx2 s[4:5], s[0:1], {kaoff}
    s_waitcnt lgkmcnt(0)
    s_lshl_b32 s{S_T0}, s{S_H}, 8
    s_add_u32 s{SRD_W}, s4, s{S_T0}
    s_addc_u32 s{SRD_W+1}, s5, 0
    s_sub_u32 s{SRD_W+2}, {576*8192}, s{S_T0}
    s_mov_b32 s{SRD_W+3}, 0x00020000
    v_lshrrev_b32 v24, 8, v{V_L16}          ; l>>4
    v_and_b32 v25, 1, v24
    s_lshl_b32 s{S_T0}, s{S_W}, 1           ; (w&1)<<1 | (w>>1)<<2 == w<<1
    v_or_b32 v25, s{S_T0}, v25              ; f
    v_bfe_u32 v26, v{V_L16}, 5, 3           ; (l&15)>>1
    v_xor_b32 v26, v26, v25
    v_lshlrev_b32 v26, 5, v26
    v_lshl_add_u32 v26, v24, 13, v26
    v_and_b32 v27, 16, v{V_L16}             ; (l&1)*16
    v_add_u32 v26, v26, v27
    s_lshl_b32 s{S_T0}, s{S_W}, 15          ; soffset = a*32768, a = 4i + w
    s_lshl_b32 s{S_T1}, s{S_W}, 10
    s_add_u32 s{S_T1}, s{S_T1}, {L_WO}      ; m0 = L_WO + a*1024
    s_mov_b32 s{S_T2}, 0
    {lw}:
    s_mov_b32 m0, s{S_T1}
    s_nop 0
    buffer_load_dwordx4 v26, s[{SRD_W}:{SRD_W+3}], s{S_T0} offen lds
    s_add_u32 s{S_T0}, s{S_T0}, {4*32768}
    s_add_u32 s{S_T1}, s{S_T1}, 4096
    s_add_u32 s{S_T2}, s{S_T2}, 1
    s_cmp_lt_u32 s{S_T2}, 36
    s_cbranch_scc1 {lw}
    s_waitcnt vmcnt(0)
    s_barrier
    v_lshrrev_b32 v24, 8, v{V_L16}          ; gB
    v_bfe_u32 v25, v{V_L16}, 6, 2           ; r = n>>2
    v_bfe_u32 v26, v{V_L16}, 4, 2           ; cq = n&3
    v_lshrrev_b32 v27, 1, v24               ; gB>>1
    v_lshlrev_b32 v27, 4, v27
    v_lshrrev_b32 v28, 1, v25               ; r>>1
    v_lshl_add_u32 v27, v28, 3, v27
    v_and_b32 v29, 1, v24                   ; gB&1
    v_lshl_add_u32 v27, v29, 2, v27
    v_and_b32 v30, 1, v25                   ; r&1
    v_add_u32 v27, v27, v30                 ; row
    v_lshlrev_b32 v27, 8, v27
    v_lshl_add_u32 v30, v29, 1, v30
    v_lshl_add_u32 v30, v28, 2, v30         ; f
    v_lshl_add_u32 v27, v26, 3, v27         ; + cq*8
    v_add_u32 v27, {L_WO}, v27
    s_lshl_b32 s{S_T0}, s{S_W}, 1
    """)
    for et in range(2):
        A(f"""
        s_add_u32 s{S_T1}, s{S_T0}, {et}
        v_xor_b32 v31, s{S_T1}, v30
        v_lshl_add_u32 v31, v31, 5, v27
        """)
        for c in range(9):
            kind, base = wfrag_regs(mat, et, c)
            for Hh in range(2):
                for rr in range(2):
                    reg = base + 4 * Hh + 2 * rr
                    A(f"ds_read_b64_tr_b16 {kind}[{reg}:{reg+1}], v31 offset:{Hh*8192 + rr*512}")
            A(f"s_waitcnt lgkmcnt(0)\nv_add_u32 v31, 16384, v31")
    A("s_barrier")

def load_wo(A):
    lw = A.uid("LW")
    A(f"""
    s_load_dwordx2 s[4:5], s[0:1], {KA['A_Wo']}
    s_waitcnt lgkmcnt(0)
    s_mul_i32 s{S_T0}, s{S_H}, {128*1152}
    s_add_u32 s{SRD_W}, s4, s{S_T0}
    s_addc_u32 s{SRD_W+1}, s5, 0
    s_mov_b32 s{SRD_W+2}, {128*1152}
    s_mov_b32 s{SRD_W+3}, 0x00020000
    v_lshrrev_b32 v24, 5, v{V_L16}          ; l>>1
    v_mul_u32_u24 v24, 1152, v24
    v_and_b32 v25, 16, v{V_L16}
    v_add_u32 v24, v24, v25
    """)
    for sg in range(3):
        for tau in range(3):
            for a in range(4):
                A(f"""
                s_mul_i32 s{S_T0}, s{S_W}, 96
                s_add_u32 s{S_T0}, s{S_T0}, {(12*sg + tau)*32 + a*32*1152}
                s_mul_i32 s{S_T1}, s{S_W}, 36864
                s_add_u32 s{S_T1}, s{S_T1}, {L_WO + (sg*3+tau)*4096 + a*1024}
                s_mov_b32 m0, s{S_T1}
                s_nop 0
                buffer_load_dwordx4 v24, s[{SRD_W}:{SRD_W+3}], s{S_T0} offen lds
                """)
    A("s_waitcnt vmcnt(0)")
    A(f"""
    v_lshrrev_b32 v24, 8, v{V_L16}          ; gB
    v_bfe_u32 v25, v{V_L16}, 6, 2           ; r
    v_bfe_u32 v26, v{V_L16}, 4, 2           ; cq
    v_and_b32 v27, 1, v24
    v_lshlrev_b32 v27, 5, v27
    v_lshrrev_b32 v28, 1, v25
    v_lshl_add_u32 v27, v28, 4, v27
    v_lshrrev_b32 v28, 1, v24
    v_lshl_add_u32 v27, v28, 2, v27
    v_and_b32 v28, 1, v25
    v_add_u32 v27, v27, v28
    v_lshlrev_b32 v27, 5, v27
    v_lshl_add_u32 v27, v26, 3, v27
    s_mul_i32 s{S_T1}, s{S_W}, 36864
    s_add_u32 s{S_T1}, s{S_T1}, {L_WO}
    v_add_u32 v27, s{S_T1}, v27
    """)
    for sl in range(9):
        for k in range(2):
            for Hh in range(2):
                for rr in range(2):
                    reg = 32 + k * 8 + Hh * 4 + rr * 2
                    A(f"ds_read_b64_tr_b16 v[{reg}:{reg+1}], v27 offset:{sl*4096 + (64*k + 8*Hh + 2*rr)*32}")
        A("s_waitcnt lgkmcnt(0)")
        for k in range(2):
            for Hh in range(2):
                reg = 32 + k * 8 + Hh * 4
                A(f"ds_write_b128 v{V_WO}, v[{reg}:{reg+3}] offset:{sl*4096 + k*2048 + Hh*1024}")
        A("s_waitcnt lgkmcnt(0)")
    A("s_barrier")

class Lg:
    def __init__(self, A): self.A = A; self.n = 0; self.done = 0
    def issue(self, txt):
        self.A(txt); self.n += 1; return self.n
    def wait(self, i):
        if i <= self.done: return
        cnt = self.n - i
        assert cnt <= 15, cnt
        self.A(f"s_waitcnt lgkmcnt({cnt})"); self.done = i
    def waitall(self):
        self.wait(self.n)

def smf(d, a, b): return f"v_smfmac_f32_16x16x64_bf16 {vr(d,4)}, {vr(a,4)}, {b}, v{V_IDX}"
def mf32(d, a, b, c): return f"v_mfma_f32_16x16x32_bf16 {vr(d,4)}, {vr(a,4)}, {vr(b,4)}, {c}"
def mf16(d, a, b, c): return f"v_mfma_f32_16x16x16_bf16 {vr(d,4)}, {vr(a,2)}, {vr(b,2)}, {c}"

def check4(A, r, tmp):
    A(f"v_max3_u32 v{tmp}, v{r}, v{r+1}, v{r+2}\nv_max_u32 v{tmp}, v{tmp}, v{r+3}\nv_cmp_eq_u32 vcc, -1, v{tmp}")


def setup_regs(A):
    A(f"""
    v_lshrrev_b32 v24, 6, v0
    v_and_b32 v25, 63, v0               ; lane
    s_nop 0
    v_readfirstlane_b32 s{S_W}, v24
    v_lshlrev_b32 v{V_L16}, 4, v25      ; l16
    v_and_b32 v26, 15, v25              ; n
    v_lshrrev_b32 v27, 4, v25           ; g
    v_bfe_u32 v28, v26, 1, 1            ; hf(n)
    v_mul_u32_u24 v29, 0xAAAA, v28
    v_add_u32 v{V_IDX}, 0x4444, v29
    s_lshl_b32 s{S_T0}, s{S_W}, 10
    s_add_u32 s{S_T0}, s{S_T0}, {L_QK}
    v_lshrrev_b32 v30, 2, v26               ; n>>2
    v_xor_b32 v30, v30, v27                 ; g ^ (n>>2)
    v_lshlrev_b32 v29, 5, v26
    v_lshl_add_u32 v29, v30, 3, v29
    v_add_u32 v{V_QKW}, s{S_T0}, v29
    v_lshrrev_b32 v29, 2, v26
    v_lshl_add_u32 v29, v27, 2, v29
    v_lshlrev_b32 v29, 5, v29
    v_and_b32 v30, 3, v26
    v_xor_b32 v30, v30, v27
    v_lshl_add_u32 v29, v30, 3, v29
    v_add_u32 v{V_TR}, {L_QK}, v29
    ; OW = L_O + (w>>1)*1024 + (g*16 + n - 2)*16 + (w&1)*8
    s_lshr_b32 s{S_T0}, s{S_W}, 1
    s_lshl_b32 s{S_T0}, s{S_T0}, 10
    s_and_b32 s{S_T1}, s{S_W}, 1
    s_lshl_b32 s{S_T1}, s{S_T1}, 3
    s_add_u32 s{S_T0}, s{S_T0}, s{S_T1}
    s_add_u32 s{S_T0}, s{S_T0}, {L_O - 32}
    v_add_u32 v{V_OW}, s{S_T0}, v{V_L16}
    s_lshl_b32 s{S_T0}, s{S_W}, 3
    v_lshrrev_b32 v29, 3, v26
    v_lshl_add_u32 v29, v27, 1, v29
    v_add_u32 v29, s{S_T0}, v29
    v_lshlrev_b32 v29, 12, v29
    v_and_b32 v30, 7, v26
    v_lshl_add_u32 v29, v30, 4, v29
    s_lshl_b32 s{S_T0}, s{S_H}, 7
    v_add_u32 v{V_P1}, s{S_T0}, v29
    s_lshl_b32 s51, s{S_W}, 5
    s_add_u32 s51, s51, s{S_H}
    s_lshl_b32 s{S_T1}, s51, 12
    v_lshl_add_u32 v29, v27, 1, v28
    v_lshlrev_b32 v29, 7, v29
    v_lshrrev_b32 v30, 2, v26
    v_lshlrev_b32 v30, 1, v30
    v_and_b32 v31, 1, v26
    v_add_u32 v30, v30, v31                 ; irow(n)
    v_lshl_add_u32 v29, v30, 4, v29
    v_add_u32 v{V_RD}, s{S_T1}, v29
    v_lshrrev_b32 v29, 1, v{V_L16}
    v_add_u32 v{V_SR}, {L_S}, v29
    s_lshr_b32 s{S_T1}, s51, 3
    s_mul_i32 s{S_T1}, s{S_T1}, 768
    s_and_b32 s{S_T2}, s51, 7
    s_lshl_b32 s{S_T2}, s{S_T2}, 5
    s_add_u32 s{S_T1}, s{S_T1}, s{S_T2}
    v_bfe_u32 v29, v26, 1, 2                ; tau
    v_lshlrev_b32 v29, 8, v29
    v_lshl_add_u32 v29, v31, 4, v29
    v_lshl_add_u32 v29, v27, 2, v29
    v_add_u32 v{V_MST}, s{S_T1}, v29
    s_mul_i32 s{S_T0}, s{S_W}, 36864
    s_add_u32 s{S_T0}, s{S_T0}, {L_WO}
    v_add_u32 v{V_WO}, s{S_T0}, v{V_L16}
    v_mov_b32 v{V_ZERO}, 0
    s_mov_b32 s{S_VALID}, 0xcccccccc
    s_mov_b32 s{S_VALID+1}, 0xcccccccc
    s_mov_b32 s{S_MMASK}, 0x003f003f
    s_mov_b32 s{S_MMASK+1}, 0x003f003f
    s_lshr_b32 s{S_TAU512}, s{S_W}, 1
    s_lshl_b32 s{S_TAU512}, s{S_TAU512}, 9
    s_lshl_b32 s{S_GW}, s{S_W}, 10
    v_mov_b32 v{V_PM}, 0
    s_mov_b32 s{S_FAIL}, 0
    s_mov_b32 s{S_T4}, 0x21800000       ; 2^-60
    s_mov_b32 s{S_LHI}, 0x5f800000      ; 2^64
    """)

def init_state(A, flags=False):
    L3 = A.uid("L3")
    A(f"""
    s_mov_b32 s{S_STEP}, 0
    s_mov_b32 s{S_P1}, {WS_P1}
    s_mov_b32 s{S_MC}, {WS_M}
    s_mov_b32 s{S_MN}, {WS_M + M_SLOT}
    s_mov_b32 s{S_MT}, {WS_M + 2*M_SLOT}
    s_lshl_b32 s{S_T0}, s{S_H}, 14
    s_add_u32 s{S_KV}, s{S_T0}, {WS_KV}
    s_mov_b32 s{S_KM}, {WS_MEMS}
    s_add_u32 s{S_PF0}, s{S_KV}, {32*16384}
    s_add_u32 s{S_PF1}, s{S_PF0}, 8192
    s_cmp_eq_u32 s{S_W}, 3
    s_cmp_eq_u32 s{S_W}, 2
    s_cselect_b32 s{S_T0}, 1, 0
    s_cmp_lt_u32 s{S_H}, 9
    s_cselect_b32 s{S_T1}, s{S_T0}, 0
    s_cselect_b32 s{S_MCH}, s{S_H}, 0
    s_and_b32 s{S_T1}, s{S_T1}, {1 if flags else 0}
    s_lshl_b32 s{S_MCH}, s{S_MCH}, 10
    s_mov_b32 s{S_MP1}, s{S_T1}
    s_mov_b32 s{S_MP1+1}, 0
    s_sub_u32 s{S_MP}, 0, s{S_T1}
    s_mov_b32 s{S_MP+1}, s{S_MP}
    s_cmp_eq_u32 s{S_W}, 3
    s_cselect_b32 s{S_WV}, 1, s{S_T1}
    s_add_u32 s{S_KMC}, s{S_KM}, s{S_MCH}
    s_mov_b32 s{S_CFV}, s7
    s_add_u32 s{S_MC6}, s{S_MC}, 6144
    s_lshl_b32 s{S_T0}, s{S_TAU512}, 3
    s_add_u32 s{S_KXO}, s{S_T0}, s{S_KV}
    s_lshl_b32 s{S_T0}, s{S_W}, 11
    s_add_u32 s{S_T0}, s{S_T0}, s{S_KV}
    s_add_u32 s{S_VXO}, s{S_T0}, 8192
    s_mov_b32 s{S_T3}, {f32bits(QSCALE):#x}
    s_mov_b32 s{S_SPIN}, {SPIN_MAX}
    s_mov_b32 s{S_ONES}, 0x3f803f80
    s_mov_b32 s{S_ONES+1}, 0x3f803f80
    s_mov_b32 s{S_SELO}, {WS_SEL}
    v_add_u32 v{V_PM}, s{S_GW}, v{V_L16}
    s_cmp_eq_u32 s{S_W}, 3
    s_cbranch_scc0 {L3}
    v_lshlrev_b32 v{V_PF}, 3, v{V_L16}
    {L3}:
    """)
    ws = f"s[{SRD_WS}:{SRD_WS+3}]"
    for c in range(4): A(f"buffer_load_dwordx4 {vr(KX(c),4)}, v{V_L16}, {ws}, s{S_KXO} offen offset:{c*1024}")
    for et in range(2): A(f"buffer_load_dwordx4 {vr([V_VX0,V_VX1][et],4)}, v{V_L16}, {ws}, s{S_VXO} offen offset:{et*1024}")
    A("s_waitcnt vmcnt(0)")
    for b in (V_AQ, V_AK):
        for i in range(4): A(f"v_mov_b64 {vr(b+2*i,2)}, 0")

def housekeeping():
    return [
      f"s_xor_b32 s{S_P1}, s{S_P1}, {P1_SLOT}",
      f"s_mov_b32 s{S_T0}, s{S_MC}", f"s_mov_b32 s{S_MC}, s{S_MN}", f"s_mov_b32 s{S_MN}, s{S_MT}", f"s_mov_b32 s{S_MT}, s{S_T0}",
      f"s_add_u32 s{S_KV}, s{S_KV}, {32*16384}", f"s_add_u32 s{S_KM}, s{S_KM}, 16384",
      f"s_add_u32 s{S_STEP}, s{S_STEP}, 1", f"s_add_u32 s{S_TAG}, s{S_TAG}, 1", f"s_add_u32 s{S_TAG4}, s{S_TAG4}, 4",
      f"s_add_u32 s{S_MC6}, s{S_MC}, 6144", f"s_add_u32 s{S_KMC}, s{S_KMC}, 16384", f"s_add_u32 s{S_CFV}, s{S_CFV}, 1",
      f"s_add_u32 s{S_KXO}, s{S_KXO}, {32*16384}", f"s_add_u32 s{S_VXO}, s{S_VXO}, {32*16384}",
    ]


def chain_step(A, st, prof=False, nsteps=64, opt=()):
    ws = f"s[{SRD_WS}:{SRD_WS+3}]"
    CUTL = A.uid("CUT")
    def stamp(name):
        name = str(name)
        if CUT == name: A(f"s_memtime s[72:73]\ns_branch {CUTL}")
        if not prof or name not in STAMPS: return
        i = STAMPS.index(name)
        if "abs" in opt: A(f"s_memrealtime s[{70+2*i}:{71+2*i}]")
        else: A(f"s_memtime s[{70+2*i}:{71+2*i}]")
    def stamp_acc():
        if not prof: return
        A("s_waitcnt lgkmcnt(0)")
        if "abs" in opt:
            A(f"s_cmp_eq_u32 s{S_STEP}, 31")
            for i in range(len(STAMPS)): A(f"s_cselect_b32 s{PROF0+i}, s{70+2*i}, s{PROF0+i}")
            return
        prev = 48
        for i in range(len(STAMPS)):
            A(f"s_sub_u32 s52, s{70+2*i}, s{prev}\ns_add_u32 s{PROF0+i}, s{PROF0+i}, s52")
            prev = 70+2*i
        A(f"s_mov_b32 s48, s{70+2*(len(STAMPS)-1)}")
    STEP = A.uid("STEP"); FAIL = A.uid("FAIL"); DONE = A.uid("DONE"); JOIN = A.uid("JOIN"); FINAL = A.uid("FINAL")
    GA, GB, GC, GC2 = 24, 28, 48, 52
    TMP = 14
    def spin(extra=""):
        A(f"s_sub_u32 s{S_SPIN}, s{S_SPIN}, 1\ns_cbranch_scc1 {FAIL}")
        if prof and extra: A(f"s_add_u32 {extra}, {extra}, 1")
    def chk(r, lab, neg=False):
        A(f"v_max3_u32 v{TMP}, v{r}, v{r+1}, v{r+2}\nv_max_u32 v{TMP}, v{TMP}, v{r+3}\nv_cmp_eq_u32 vcc, -1, v{TMP}\n{'s_cbranch_vccz' if neg else 's_cbranch_vccnz'} {lab}")
    def ld(r, which):
        so, off = [(S_MC, 0), (S_MC, 3072), (S_MC6, 0)][which]
        return f"buffer_load_dwordx4 {vr(r,4)}, v{V_PM}, {ws}, s{so} offen offset:{off} sc1"
    def wr(r, which): return f"ds_write_b128 v{V_PM}, {vr(r,4)} offset:{L_MEM + 3072*which}"

    P0, P1, GOK = A.uid("P0"), A.uid("P1"), A.uid("GOK")
    A.label(STEP)
    A(f"s_cmp_eq_u32 s{S_W}, 3\ns_cbranch_scc1 {JOIN}")
    S1 = (64, 68, 72); S2 = (48, 52, 76)
    def lds3(S): return "\n".join(ld(S[i], i) for i in range(3))
    def wrs3(S): return "\n".join(wr(S[i], i) for i in range(3))
    def chk3(S, lab, neg=False):
        regs = [S[i]+j for i in range(3) for j in range(4)]
        A(f"v_max3_u32 v{TMP}, v{regs[0]}, v{regs[1]}, v{regs[2]}")
        for j in range(3, 11, 2): A(f"v_max3_u32 v{TMP}, v{regs[j]}, v{regs[j+1]}, v{TMP}")
        A(f"v_max_u32 v{TMP}, v{regs[11]}, v{TMP}\nv_cmp_eq_u32 vcc, -1, v{TMP}\n{'s_cbranch_vccz' if neg else 's_cbranch_vccnz'} {lab}")
    if GMODE == 0:
        A(lds3(S1))
        if PGAP: A(f"s_sleep {PGAP}")
        A.label(P0)
        A(lds3(S2))
        A("s_waitcnt vmcnt(3)")
        A(wrs3(S1))
        chk3(S1, GOK, neg=True)
        spin("s99")
        A(lds3(S1))
        A("s_waitcnt vmcnt(3)")
        A(wrs3(S2))
        chk3(S2, P0)
    else:
        GA, GB, GC, GC2 = 64, 68, 72, 76
        CK, AB = A.uid("CK"), A.uid("AB")
        A(ld(GA,0)); A(ld(GB,1)); A(ld(GC,2))
        A.label(P0)
        A(ld(GC2,2))
        A("s_waitcnt vmcnt(1)")
        A(wr(GC,2))
        chk(GC, CK, neg=True)
        spin("s99")
        A(ld(GC,2))
        A("s_waitcnt vmcnt(1)")
        A(wr(GC2,2))
        chk(GC2, P0)
        A.label(CK)
        A(wr(GA,0)); A(wr(GB,1))
        A(f"v_max3_u32 v{TMP}, v{GA}, v{GA+1}, v{GA+2}\nv_max3_u32 v{TMP}, v{GA+3}, v{GB}, v{TMP}\nv_max3_u32 v{TMP}, v{GB+1}, v{GB+2}, v{TMP}\nv_max_u32 v{TMP}, v{TMP}, v{GB+3}\nv_cmp_eq_u32 vcc, -1, v{TMP}")
        A(f"s_cbranch_vccz {GOK}")
        spin("s100")
        A(ld(GA,0)); A(ld(GB,1)); A(f"s_waitcnt vmcnt(0)\ns_branch {CK}")
    A.label(GOK)
    A("s_waitcnt lgkmcnt(0)")
    A.label(JOIN)
    stamp(0)
    A("s_barrier")
    if CUT: A("s_memtime s[70:71]")
    L = Lg(A)
    Q, K, V = 0, 1, 2
    order = [(Q,c) for c in range(9)] + [(V,c) for c in range(9)] + [(K,c) for c in range(9)]
    rid = {}; nxt = [0]
    def rd():
        i = nxt[0]
        if i >= len(order): return False
        rid[i] = L.issue(f"ds_read_b128 {vr(V_R + 4*(i%NRING), 4)}, v{V_L16} offset:{L_MEM + order[i][1]*1024}")
        nxt[0] += 1
        return True
    ACCS = [V_AQ, V_AK2, V_AVX]
    def item(i, f1=(), f2=()):
        mat, c = order[i]
        L.wait(rid[i])
        skip = ("noV" in opt and mat == 2) or ("noQ" in opt and mat == 0) or ("noK" in opt and mat == 1)
        if not skip: A(smf(ACCS[mat], V_R + 4*(i%NRING), wfrag(mat,0,c)))
        for x in f1: A(x)
        if not skip: A(smf(ACCS[mat]+4, V_R + 4*(i%NRING), wfrag(mat,1,c)))
        while nxt[0] < i + 1 + NRING and rd(): pass
        for x in f2: A(x)
    if "flags" in opt:
        A(f"s_cmp_eq_u32 s{S_STEP}, {nsteps-1}\ns_cbranch_scc1 {FINAL}")
    for _ in range(NRING): rd()
    npf = 0 if "nopf" in opt else 1
    PF3, PF3b = A.uid("PF3"), A.uid("PF3b")
    kvl = [f"buffer_load_dwordx4 {vr(KX(c),4)}, v{V_L16}, {ws}, s{S_KXO} offen offset:{c*1024}" for c in range(4)] + \
          [f"buffer_load_dwordx4 {vr([V_VX0,V_VX1][et],4)}, v{V_L16}, {ws}, s{S_VXO} offen offset:{et*1024}" for et in range(2)]
    for i in range(0, 9): item(i, (), [kvl[i//2]] if i % 2 == 0 else ())
    stamp(1)
    qfold = []
    for t in range(2):
        b = V_AQ + 4*t
        qfold += [f"v_add_f32 v{b}, v{b}, v{b+2}", f"v_add_f32 v{b+1}, v{b+1}, v{b+3}",
                  f"v_mul_f32 v{b}, s{S_T3}, v{b}", f"v_mul_f32 v{b+1}, s{S_T3}, v{b+1}",
                  f"v_cvt_pk_bf16_f32 v{V_SX+t}, v{b}, v{b+1}"]
    M3 = f"s_mov_b64 exec, s[{S_M3}:{S_M3+1}]"; MALL = "s_mov_b64 exec, -1"
    pf = []; pub1 = []; pub2 = []
    if npf:
        pf = [M3, f"buffer_load_dword v{V_PF+1}, v{V_PF}, {ws}, s{S_PF0} offen", f"buffer_load_dword v{V_PF+1}, v{V_PF}, {ws}, s{S_PF1} offen"]
        if "flags" in opt: pf += [f"buffer_load_dword v{V_PF+1}, v{V_ZERO}, {ws}, s{S_PFA} offen sc1"]
        pf += [MALL]
    item(9); item(10, (), [kvl[5], qfold[0]])
    mrd = None
    if "flags" in opt:
        A(f"s_waitcnt vmcnt(6)\nv_add_u32 v{V_PM}, s{S_MCH}, v{V_L16}")
        mrd = L.issue(f"ds_read_b128 {vr(V_F23,4)}, v{V_PM} offset:{L_MEM}")
    item(11, qfold[1:3], qfold[3:5]); item(12, qfold[5:7], qfold[7:9]); item(13, qfold[9:10])
    qw = L.issue(f"ds_write2_b32 v{V_QKW}, v{V_SX}, v{V_SX+1} offset0:1 offset1:129")
    PUBL, PUBb = A.uid("PUBL"), A.uid("PUBb")
    if "flags" in opt:
        L.wait(mrd)
        A(f"s_cmp_lg_u32 s{S_MP}, 0\ns_cbranch_scc1 {PUBL}")
        A.label(PUBb)
    item(14)
    if npf:
        A(f"s_cmp_eq_u32 s{S_W}, 3\ns_cbranch_scc1 {PF3}")
        A.label(PF3b)
    item(15)
    W2, W2b = A.uid("W2"), A.uid("W2b")
    A(f"s_cmp_lg_u32 s{S_WV}, 0\ns_cbranch_scc1 {W2}\ns_waitcnt vmcnt(0)")
    A.label(W2b)
    L.wait(qw)
    A("s_barrier")
    fr = {}
    f2k = [(cc,Hh) for cc in range(4) for Hh in range(2)]
    f1 = [f"ds_read_b64_tr_b16 {vr(F(cc)+2*Hh,2)}, v{V_TR} offset:{cc*1024 + Hh*512}" for cc, Hh in f2k]
    for j in range(8): fr[f2k[j]] = L.issue(f1[j])
    item(16); item(17)
    stamp(3)
    AV = V_AVX
    L.wait(fr[(1,1)])
    A(mf32(V_SX, KX(0), F(0), "0"))
    A(mf32(V_SX, KX(1), F(1), vr(V_SX,4)))
    L.wait(fr[(3,1)])
    A(mf32(V_SX, KX(2), F(2), vr(V_SX,4)))
    A(mf32(V_SX, KX(3), F(3), vr(V_SX,4)))
    for i in range(4): A(f"v_mov_b64 {vr(V_AK2+2*i,2)}, 0")
    A(f"v_add_u32 v{V_PM}, s{S_TAU512}, v{V_SR}")
    stamp("sx")
    vfold = []
    for b in (AV, AV+4):
        vfold += [f"v_add_f32 v{b}, v{b}, v{b+2}", f"v_add_f32 v{b+1}, v{b+1}, v{b+3}", f"v_cvt_pk_bf16_f32 v{b}, v{b}, v{b+1}", f"v_mov_b32 v{b+1}, 0"]
    exo = [f"v_exp_f32 v{V_SX+r}, v{V_SX+r}" for r in range(4)]
    item(18, (), exo[0:1]); item(19, exo[1:2], exo[2:3]); item(20, exo[3:4], vfold[0:1])
    A(f"v_cvt_pk_bf16_f32 v{V_SX}, v{V_SX}, v{V_SX+1}\nv_cvt_pk_bf16_f32 v{V_SX+1}, v{V_SX+2}, v{V_SX+3}")
    sw = L.issue(f"ds_write_b64 v{V_PM}, {vr(V_SX,2)}")
    ones = [f"v_mov_b64 {vr(V_ONES,2)}, s[{S_ONES}:{S_ONES+1}]", f"v_mov_b64 {vr(V_ONES+2,2)}, s[{S_ONES}:{S_ONES+1}]"]
    item(21, vfold[1:2], vfold[2:3]); item(22, vfold[3:4], vfold[4:5])
    L.wait(sw)
    A("s_barrier")
    s0 = L.issue(f"ds_read2_b64 {vr(V_S0,4)}, v{V_SR} offset0:0 offset1:64")
    stamp(4)
    item(23, vfold[5:6], vfold[6:7]); item(24, vfold[7:8], ones[0:1]); item(25, ones[1:2])
    L.wait(s0)
    item(26)
    NF = 18
    WB = [V_KA, V_R, V_R+8, V_KB, V_AK, V_AQ]
    NB = len(WB)
    wf = {}
    def wrd(f):
        if "noWrd" in opt:
            wf[f] = L.n; return
        if f < NF:
            sl, k = divmod(f, 2)
            L.issue(f"ds_read_b128 {vr(WB[f%NB],4)}, v{V_WO} offset:{sl*4096 + k*2048}")
            wf[f] = L.issue(f"ds_read_b128 {vr(WB[f%NB]+4,4)}, v{V_WO} offset:{sl*4096 + k*2048 + 1024}")
    A(mf32(F(2), V_ONES, V_S0, "0"))
    A(mf32(F(0), V_VX0, V_S0, "0"))
    A(mf32(F(1), V_VX1, V_S0, "0"))
    A("s_nop 3")
    stamp(5)
    for t in range(2):
        b = V_AK2 + 4*t
        A(f"v_pk_add_f32 {vr(b,2)}, {vr(b,2)}, {vr(b+2,2)}")
    for t in range(2):
        b = V_AK2 + 4*t
        A(f"v_cvt_pk_bf16_f32 v{V_SX+2+t}, v{b}, v{b+1}")
    kw = L.issue(f"ds_write2_b32 v{V_QKW}, v{V_SX+2}, v{V_SX+3} offset0:0 offset1:128")
    A(f"v_mov_b32 v{V_SX}, s{S_LHI}")
    L.wait(kw)
    A("s_barrier")
    fr2 = {}
    for cc, Hh in f2k: fr2[(cc,Hh)] = L.issue(f"ds_read_b64_tr_b16 {vr(V_F2+4*cc+2*Hh,2)}, v{V_TR} offset:{cc*1024 + Hh*512}")
    wrd(0)
    stamp("kb")
    sm = V_SM
    L.wait(fr2[(0,1)])
    A(mf32(sm, V_F2, V_F2, "0"))
    L.wait(fr2[(1,1)])
    A(mf32(sm, V_F2+4, V_F2+4, vr(sm,4)))
    L.wait(fr2[(2,1)])
    A(mf32(sm, V_F2+8, V_F2+8, vr(sm,4)))
    L.wait(fr2[(3,1)])
    A(mf32(sm, V_F2+12, V_F2+12, vr(sm,4)))
    wrd(1); wrd(2)
    A("s_nop 3")
    A(f"v_exp_f32 v{sm}, v{sm}\nv_exp_f32 v{sm+1}, v{sm+1}\ns_nop 0")
    A(f"v_cvt_pk_bf16_f32 v{V_PM}, v{sm}, v{sm+1}\ns_nop 1")
    A(mf16(F(2), V_ONES, V_PM, vr(F(2),4)))
    A(mf16(F(0), AV, V_PM, vr(F(0),4)))
    A(mf16(F(1), AV+4, V_PM, vr(F(1),4)))
    wrd(3)
    stamp("pvm0")
    A("s_nop 3")
    A(f"v_med3_f32 v{V_SX}, v{F(2)}, s{S_T4}, v{V_SX}")
    A(f"v_cmp_neq_f32 vcc, v{V_SX}, v{F(2)}")
    A(f"v_rcp_f32 v{V_SX}, v{F(2)}")
    A(f"s_and_b64 vcc, vcc, s[{S_VALID}:{S_VALID+1}]")
    SLOW = A.uid("SLOW"); BACK = A.uid("BACK"); LAST = A.uid("LAST")
    A(f"s_cbranch_vccnz {SLOW}")
    A.label(BACK)
    stamp("pvm")
    A(f"s_cmp_eq_u32 s{S_STEP}, {nsteps-1}\ns_cbranch_scc1 {LAST}")
    A("s_nop 0")
    stamp("n1")
    if "x32" in opt:
        for i in range(32): A(f"v_mov_b32 v{V_PM}, v{V_ZERO}")
    if "w64" in opt: A("s_nop 15")
    if "nopk" not in opt:
        for r in (0, 2): A(f"v_pk_mul_f32 {vr(F(0)+r,2)}, {vr(F(0)+r,2)}, {vr(V_SX,2)} op_sel_hi:[1,0]")
    for r in range(4):
        if "nomul" not in opt and "nopk" in opt: A(f"v_mul_f32 v{F(0)+r}, v{F(0)+r}, v{V_SX}")
    stamp("n2")
    A(f"v_cvt_pk_bf16_f32 v{F(0)}, v{F(0)}, v{F(0)+1}\nv_cvt_pk_bf16_f32 v{F(0)+1}, v{F(0)+2}, v{F(0)+3}")
    stamp("n3")
    if "nopk" not in opt:
        for r in (0, 2): A(f"v_pk_mul_f32 {vr(F(1)+r,2)}, {vr(F(1)+r,2)}, {vr(V_SX,2)} op_sel_hi:[1,0]")
    for r in range(4):
        if "nomul" not in opt and "nopk" in opt: A(f"v_mul_f32 v{F(1)+r}, v{F(1)+r}, v{V_SX}")
    stamp("n4")
    A(f"v_cvt_pk_bf16_f32 v{F(1)}, v{F(1)}, v{F(1)+1}\nv_cvt_pk_bf16_f32 v{F(1)+1}, v{F(1)+2}, v{F(1)+3}")
    stamp("n5")
    A(f"s_mov_b64 exec, s[{S_VALID}:{S_VALID+1}]")
    ow = L.issue(f"ds_write2_b64 v{V_OW}, {vr(F(0),2)}, {vr(F(1),2)} offset0:0 offset1:4")
    A("s_mov_b64 exec, -1")
    stamp(6)
    ACC = [V_VX0, V_VX1]
    for a in ACC:
        A(f"v_mov_b64 {vr(a,2)}, 0\nv_mov_b64 {vr(a+2,2)}, 0")
    A(f"v_mov_b32 v{V_OUT+3}, s{S_TAG}")
    stamp("o1")
    L.wait(ow)
    stamp("o2")
    A("s_barrier")
    stamp("o3")
    o0 = L.issue(f"ds_read_b128 {vr(V_F23,4)}, v{V_L16} offset:{L_O}")
    o1 = L.issue(f"ds_read_b128 {vr(V_F23+4,4)}, v{V_L16} offset:{L_O+1024}")
    wrd(4); wrd(5)
    stamp("o4")
    stamp("o5")
    stamp("o6")
    L.wait(o1)
    stamp(7)
    NT = 9
    NA = len(ACC)
    def epi(sl):
        a = ACC[sl % NA]; tau = sl % 3
        q = [f"v_add_f32 v{a}, v{a}, v{a+2}", f"v_add_f32 v{a+1}, v{a+1}, v{a+3}", f"v_cvt_pk_bf16_f32 v{V_OUT+tau}, v{a}, v{a+1}"]
        if sl < NT - NA: q += [f"v_mov_b64 {vr(a,2)}, 0", f"v_mov_b64 {vr(a+2,2)}, 0"]
        if tau == 2:
            sg = sl // 3
            q += [f"s_add_u32 s{S_T0}, s{S_P1}, {sg*131072}", f"buffer_store_dwordx4 {vr(V_OUT,4)}, v{V_P1}, {ws}, s{S_T0} offen {st}"]
        return q
    rq = []
    for f in range(NB, NF): rq += [(f, 0), (f, 1)]
    free_after = {f: (f - NB) for f in range(NB, NF)}
    issued = set(range(NB))
    done_sm = set()
    def pump(n):
        k = 0
        while rq and k < n and (free_after[rq[0][0]] in done_sm):
            f, h = rq.pop(0)
            sl_, kk = divmod(f, 2)
            i_ = L.issue(f"ds_read_b128 {vr(WB[f%NB]+4*h,4)}, v{V_WO} offset:{sl_*4096 + kk*2048 + h*1024}")
            if h == 1: wf[f] = i_
            k += 1
        return k
    for sl in range(NT):
        if sl in (3, 6): stamp(f"wo{sl}")
        pend = epi(sl - 1) if sl >= 1 else []
        while (2*sl+1) not in wf: pump(1)
        L.wait(wf[2*sl+1])
        budget = WOP[sl]
        for k in range(2):
            f = 2*sl + k
            if "noWo" not in opt: A(smf(ACC[sl%NA], V_F23 + 4*k, vr(WB[f%NB], 8)))
            done_sm.add(f)
            n = pump(min(2, budget)); budget -= n
            if k == 0 and pend:
                fill = (3 if sl == 1 else 0) + max(0, 2 - n)
                if sl == 1: A("s_nop 3")
                elif n < 2: A(f"s_nop {1 - n}") if n < 2 else None
            if pend: A(pend.pop(0))
        for x in pend: A(x)
        if sl >= 1 and sl < NT - NA + 1: A("s_nop 0")
    A("s_nop 6")
    for x in epi(NT-1): A(x)
    stamp(8)
    hk = housekeeping()
    if "fixkv" in opt: hk = [x for x in hk if f"s{S_KXO}," not in x and f"s{S_VXO}," not in x]
    zero = [f"v_mov_b64 {vr(b+2*i,2)}, 0" for b in (V_AQ, V_AK) for i in range(4)]
    NR = A.uid("NR"); R0 = A.uid("R0"); R1 = A.uid("R1"); RB = A.uid("RB"); RW3 = A.uid("RW3")
    SEL = V_F23
    A(f"s_cmp_eq_u32 s{S_W}, 3\ns_cbranch_scc1 {RW3}")
    A(f"s_mov_b32 s{S_T1}, s{S_P1}\ns_mov_b32 s{S_T2}, s{S_MN}\ns_mov_b32 s53, s{S_MC}\ns_mov_b32 s41, s{S_TAG4}")
    A(f"buffer_load_dwordx4 {vr(SEL,4)}, v{V_L16}, {ws}, s{S_SELO} offen")
    zeroq = [f"v_mov_b64 {vr(V_AQ+2*i,2)}, 0" for i in range(4)]
    zerok = [f"v_mov_b64 {vr(V_AK+2*i,2)}, 0" for i in range(4)]
    for x in hk + zeroq: A(x)
    d0, d1, d2 = DELAYS
    if d0: A(f"s_sleep {d0}")
    A(f"s_cmp_eq_u32 s{S_W}, 0\ns_cbranch_scc1 {R0}")
    if d1: A(f"s_sleep {d1}")
    A(f"s_cmp_eq_u32 s{S_W}, 1\ns_cbranch_scc1 {R0}")
    if d2: A(f"s_sleep {d2}")
    A.label(R0)
    stamp(11)
    BX, BY = V_R, V_KA
    def rl(B): return [f"buffer_load_dwordx4 {vr(B+4*q,4)}, v{V_RD}, {ws}, s{S_T1} offen offset:{q*1024} sc1" for q in range(4)]
    def proc(B, young=4):
        for q in range(4):
            A(f"s_waitcnt vmcnt({young + 3 - q})")
            A(mf32(V_SX, B+4*q, SEL, "0" if q == 0 else vr(V_SX,4)))
        A(f"v_add3_u32 v{V_PM}, v{B+3}, v{B+7}, v{B+11}\nv_add_u32 v{V_PM}, v{V_PM}, v{B+15}\nv_cmp_ne_u32 vcc, s41, v{V_PM}")
    FIN = A.uid("FIN")
    for x in rl(BX): A(x)
    for x in zerok: A(x)
    if RGAP: A(f"s_sleep {RGAP}")
    for x in rl(BY): A(x)
    proc(BX, 4)
    A(f"s_cbranch_vccz {FIN}")
    A.label(RB)
    spin("s98")
    for x in rl(BX): A(x)
    proc(BY)
    A(f"s_cbranch_vccz {FIN}")
    spin("s98")
    for x in rl(BY): A(x)
    proc(BX)
    A(f"s_cbranch_vccnz {RB}")
    A("s_nop 0")
    A.label(FIN)
    stamp(12)
    A(f"v_mov_b32 v{V_PM}, -1\ns_mov_b64 exec, s[{S_MMASK}:{S_MMASK+1}]\ns_nop 1")
    A(f"v_add_f32 v{V_SX}, v{V_SX}, v{V_SX+2}\nv_add_f32 v{V_SX+1}, v{V_SX+1}, v{V_SX+3}\nv_cvt_pk_bf16_f32 v{V_SX}, v{V_SX}, v{V_SX+1}")
    A(f"buffer_store_dword v{V_SX}, v{V_MST}, {ws}, s{S_T2} offen {st}")
    A(f"buffer_store_dword v{V_PM}, v{V_MST}, {ws}, s53 offen {st}")
    A("s_mov_b64 exec, -1")
    if G01:
        NG01 = A.uid("NG")
        A(f"s_cmp_eq_u32 s{S_W}, 2\ns_cbranch_scc1 {NR}\ns_sleep {G01}")
    A.label(NR)
    A(f"v_add_u32 v{V_PM}, s{S_GW}, v{V_L16}")
    stamp(13)
    stamp_acc()
    A(f"s_mov_b32 s{S_SPIN}, {SPIN_MAX}")
    A(f"s_branch {STEP}")
    A.label(RW3)
    for x in hk + zeroq + zerok: A(x)
    if "flags" in opt:
        A(f"s_waitcnt vmcnt(3)")
        PW, PK = A.uid("PW"), A.uid("PK")
        A(f"s_cmp_lt_u32 s{S_STEP}, 62\ns_cbranch_scc0 {PK}")
        A.label(PW)
        A(f"v_readfirstlane_b32 s{S_T1}, v{V_PF+1}")
        A(f"s_sub_u32 s{S_T1}, s{S_T1}, s7\ns_sub_u32 s{S_T1}, s{S_T1}, 1\ns_cmp_lt_u32 s{S_T1}, 16\ns_cbranch_scc0 {PW}n\ns_cmp_ge_u32 s{S_T1}, s{S_PKK}\ns_cbranch_scc1 {PK}")
        A.label(PW + "n")
        spin()
        A(f"s_sleep 8\nbuffer_load_dword v{V_PF+1}, v{V_ZERO}, {ws}, s{S_PFA} offen sc1\ns_waitcnt vmcnt(0)\ns_branch {PW}")
        A.label(PK)
        A(f"s_add_u32 s{S_PRHO}, s{S_PRHO}, 1\ns_cmp_eq_u32 s{S_PRHO}, 7\ns_cselect_b32 s{S_T0}, 1, 0\ns_cselect_b32 s{S_PRHO}, 0, s{S_PRHO}\ns_add_u32 s{S_PKK}, s{S_PKK}, s{S_T0}")
        A(f"s_lshl_b32 s{S_PFA}, s{S_PRHO}, 2\ns_add_u32 s{S_PFA}, s{S_PFA}, s{S_PFO}")
    A(f"s_add_u32 s{S_PF0}, s{S_KV}, {32*16384}\ns_add_u32 s{S_PF1}, s{S_PF0}, 8192")
    stamp(11); stamp(12)
    A(f"s_branch {NR}")
    if "flags" in opt:
        A.label(PUBL)
        A(f"s_mov_b64 exec, 1\nv_mov_b32 v{V_PM}, s{S_CFV}\nbuffer_store_dword v{V_PM}, v{V_ZERO}, {ws}, s{S_CFO} offen sc1\ns_mov_b64 exec, -1")
        A(f"buffer_store_dwordx4 {vr(V_F23,4)}, v{V_L16}, {ws}, s{S_KMC} offen sc1\ns_branch {PUBb}")
    if npf:
        A.label(PF3)
        A(f"buffer_load_dword v{V_PF+1}, v{V_PF}, {ws}, s{S_PF0} offen\nbuffer_load_dword v{V_PF+1}, v{V_PF}, {ws}, s{S_PF1} offen")
        if "flags" in opt: A(f"buffer_load_dword v{V_PF+1}, v{V_ZERO}, {ws}, s{S_PFA} offen sc1")
        A(f"s_branch {PF3b}")
    A.label(W2)
    if "flags" in opt:
        A(f"s_cmp_eq_u32 s{S_W}, 3\ns_cbranch_scc0 {W2}m\ns_waitcnt vmcnt({2*npf + 1})\ns_branch {W2b}")
        A.label(W2 + "m"); A(f"s_waitcnt vmcnt(2)\ns_branch {W2b}")
    else:
        A(f"s_waitcnt vmcnt({2*npf})\ns_branch {W2b}")
    A.label(SLOW)
    L2 = Lg(A)
    A("s_nop 7")
    for cc in range(4):
        for Hh in range(2):
            L2.issue(f"ds_read_b64_tr_b16 {vr(F(cc)+2*Hh,2)}, v{V_TR} offset:{cc*1024 + Hh*512}")
    T0r, T1r = V_S0, V_SX
    for tau in range(2):
        A(f"s_add_u32 s{S_T0}, s{S_KV}, {tau*4096}")
        for c in range(4): A(f"buffer_load_dwordx4 {vr(V_R+4*c,4)}, v{V_L16}, {ws}, s{S_T0} offen offset:{c*1024}")
        A("s_waitcnt vmcnt(0) lgkmcnt(0)")
        d = [T0r, T1r][tau]
        for c in range(4): A(mf32(d, V_R+4*c, F(c), "0" if c == 0 else vr(d,4)))
        A("s_nop 7")
    for c in range(4):
        A(mf32(sm, F(c), F(c), "0" if c == 0 else vr(sm,4)))
    A("s_nop 7\ns_nop 1")
    a0, a1 = T0r, T1r
    A(f"v_max3_f32 v{V_PM}, v{a0}, v{a0+1}, v{a0+2}")
    A(f"v_max3_f32 v{V_PM}, v{a0+3}, v{a1}, v{V_PM}")
    A(f"v_max3_f32 v{V_PM}, v{a1+1}, v{a1+2}, v{V_PM}")
    A(f"v_max3_f32 v{V_PM}, v{a1+3}, v{sm}, v{V_PM}")
    A(f"v_max_f32 v{V_PM}, v{sm+1}, v{V_PM}")
    t = F(3)
    A(f"v_mov_b32 v{t}, v{V_PM}\ns_nop 1\nv_permlane32_swap_b32 v{t}, v{V_PM}\ns_nop 1\nv_max_f32 v{V_PM}, v{V_PM}, v{t}")
    A(f"v_mov_b32 v{t}, v{V_PM}\ns_nop 1\nv_permlane16_swap_b32 v{t}, v{V_PM}\ns_nop 1\nv_max_f32 v{V_PM}, v{V_PM}, v{t}")
    rs = list(range(a0, a0+4)) + list(range(a1, a1+4)) + [sm, sm+1]
    for r in rs: A(f"v_sub_f32 v{r}, v{r}, v{V_PM}")
    for r in rs: A(f"v_exp_f32 v{r}, v{r}")
    A("s_nop 0")
    A(f"v_cvt_pk_bf16_f32 v{a0}, v{a0}, v{a0+1}\nv_cvt_pk_bf16_f32 v{a0+1}, v{a0+2}, v{a0+3}")
    A(f"v_cvt_pk_bf16_f32 v{a0+2}, v{a1}, v{a1+1}\nv_cvt_pk_bf16_f32 v{a0+3}, v{a1+2}, v{a1+3}")
    A(f"v_cvt_pk_bf16_f32 v{V_PM}, v{sm}, v{sm+1}")
    A(f"v_mov_b64 {vr(V_ONES,2)}, s[{S_ONES}:{S_ONES+1}]\nv_mov_b64 {vr(V_ONES+2,2)}, s[{S_ONES}:{S_ONES+1}]\ns_nop 1")
    A(mf32(F(0), V_VX0, V_S0, "0"))
    A(mf32(F(1), V_VX1, V_S0, "0"))
    A(mf32(F(2), V_ONES, V_S0, "0"))
    A("s_nop 7")
    A(mf16(F(2), V_ONES, V_PM, vr(F(2),4)))
    A(mf16(F(0), AV, V_PM, vr(F(0),4)))
    A(mf16(F(1), AV+4, V_PM, vr(F(1),4)))
    for f in range(4):
        sl, k = divmod(f, 2)
        A(f"ds_read_b128 {vr(WB[f],4)}, v{V_WO} offset:{sl*4096 + k*2048}\nds_read_b128 {vr(WB[f]+4,4)}, v{V_WO} offset:{sl*4096 + k*2048 + 1024}")
    A("s_waitcnt lgkmcnt(0)\ns_nop 7")
    A(f"v_rcp_f32 v{V_SX}, v{F(2)}")
    A(f"s_branch {BACK}")
    A.label(LAST)
    A(f"s_branch {DONE}")
    if "flags" in opt:
        A.label(FINAL)
        A(f"s_cmp_lg_u32 s{S_MP}, 0\ns_cbranch_scc0 {DONE}")
        A(f"s_lshl_b32 s{S_T0}, s{S_H}, 10\nv_add_u32 v{V_PM}, s{S_T0}, v{V_L16}\nds_read_b128 {vr(V_F23,4)}, v{V_PM} offset:{L_MEM}")
        A(f"s_add_u32 s{S_T0}, s{S_T0}, s{S_KM}\ns_waitcnt lgkmcnt(0)")
        A(f"buffer_store_dwordx4 {vr(V_F23,4)}, v{V_L16}, {ws}, s{S_T0} offen sc1\ns_waitcnt vmcnt(0)")
        A(f"s_add_u32 s{S_T0}, s7, {nsteps}\nv_mov_b32 v{V_PM}, s{S_T0}\ns_mov_b64 exec, 1")
        A(f"buffer_store_dword v{V_PM}, v{V_ZERO}, {ws}, s{S_CFO} offen sc1\ns_mov_b64 exec, -1")
        A(f"s_branch {DONE}")
    if CUT:
        A.label(CUTL)
        A(f"s_mov_b64 exec, -1\ns_waitcnt vmcnt(0) lgkmcnt(0)\ns_nop 7\ns_sub_u32 s72, s72, s70\ns_add_u32 s86, s86, s72")
        for b in (V_AQ, V_AK):
            for i in range(4): A(f"v_mov_b64 {vr(b+2*i,2)}, 0")
        for c in range(4): A(f"buffer_load_dwordx4 {vr(KX(c),4)}, v{V_L16}, {ws}, s{S_KXO} offen offset:{c*1024}")
        for et in range(2): A(f"buffer_load_dwordx4 {vr([V_VX0,V_VX1][et],4)}, v{V_L16}, {ws}, s{S_VXO} offen offset:{et*1024}")
        A(f"s_waitcnt vmcnt(0)\ns_add_u32 s{S_STEP}x, 0, 0".replace(f"s_add_u32 s{S_STEP}x, 0, 0", "s_add_u32 s87, s87, 1"))
        A(f"s_cmp_lt_u32 s87, 63\ns_cbranch_scc1 {JOIN}\ns_branch {DONE}")
    A.label(FAIL)
    A(f"s_mov_b64 exec, -1\ns_mov_b32 s{S_FAIL}, 1")
    A.label(DONE)


def chain_init_mem(A, st):
    ws = f"s[{SRD_WS}:{SRD_WS+3}]"
    N0 = A.uid("IM"); N1 = A.uid("IM")
    A(f"""
    s_cmp_lt_u32 s{S_H}, 9
    s_cbranch_scc0 {N1}
    s_cmp_eq_u32 s{S_W}, 0
    s_cbranch_scc0 {N0}
    s_load_dwordx2 s[4:5], s[0:1], {KA['A_mem0']}
    s_waitcnt lgkmcnt(0)
    s_mov_b32 s{SRD_W}, s4
    s_mov_b32 s{SRD_W+1}, s5
    s_mov_b32 s{SRD_W+2}, {8*1152}
    s_mov_b32 s{SRD_W+3}, 0x00020000
    v_bfe_u32 v24, v{V_L16}, 4, 4            ; n
    v_lshrrev_b32 v25, 2, v24
    v_lshlrev_b32 v25, 1, v25
    v_and_b32 v26, 1, v24
    v_add_u32 v25, v25, v26                  ; irow
    v_mul_u32_u24 v25, 1152, v25
    v_bfe_u32 v26, v24, 1, 1                 ; hf
    v_lshl_add_u32 v25, v26, 4, v25
    v_lshrrev_b32 v26, 8, v{V_L16}           ; g
    v_lshl_add_u32 v25, v26, 5, v25
    s_lshl_b32 s{S_T0}, s{S_H}, 7            ; c*128 bytes
    buffer_load_dwordx4 v[28:31], v25, s[{SRD_W}:{SRD_W+3}], s{S_T0} offen
    s_lshl_b32 s{S_T0}, s{S_H}, 10
    s_add_u32 s{S_T0}, s{S_T0}, {WS_M}
    s_waitcnt vmcnt(0)
    buffer_store_dwordx4 v[28:31], v{V_L16}, {ws}, s{S_T0} offen {st}
    s_branch {N1}
    {N0}:
    v_mov_b32 v28, -1
    v_mov_b32 v29, -1
    v_mov_b32 v30, -1
    v_mov_b32 v31, -1
    s_mul_i32 s{S_T0}, s{S_W}, {M_SLOT}
    s_lshl_b32 s{S_T1}, s{S_H}, 10
    s_add_u32 s{S_T0}, s{S_T0}, s{S_T1}
    s_add_u32 s{S_T0}, s{S_T0}, {WS_M}
    s_cmp_eq_u32 s{S_W}, 3
    s_cbranch_scc1 {N0}s
    buffer_store_dwordx4 v[28:31], v{V_L16}, {ws}, s{S_T0} offen {st}
    s_branch {N1}
    {N0}s:
    v_bfe_u32 v24, v{V_L16}, 4, 3            ; j = n & 7
    v_and_b32 v25, 1, v24
    v_lshlrev_b32 v25, 4, v25
    v_mov_b32 v26, 0x3f80
    v_lshlrev_b32 v25, v25, v26              ; X
    v_lshrrev_b32 v24, 1, v24
    """)
    for r in range(4):
        A(f"v_cmp_eq_u32 vcc, {r}, v24\ns_nop 1\nv_cndmask_b32 v{28+r}, 0, v25, vcc")
    A(f"s_mov_b32 s{S_T0}, {WS_SEL}\nbuffer_store_dwordx4 v[28:31], v{V_L16}, {ws}, s{S_T0} offen {st}")
    A.label(N1)
    A("s_waitcnt vmcnt(0)")


def load_all_weights(A):
    import common as CM
    def trfun(mi, half):
        base = L_WO + (0 if half == 0 else 81920)
        A(f"""
        v_lshrrev_b32 v24, 8, v{V_L16}          ; gB
        v_bfe_u32 v25, v{V_L16}, 6, 2           ; r
        v_bfe_u32 v26, v{V_L16}, 4, 2           ; cq
        v_lshrrev_b32 v27, 1, v24
        v_lshlrev_b32 v27, 4, v27
        v_lshrrev_b32 v28, 1, v25
        v_lshl_add_u32 v27, v28, 3, v27
        v_and_b32 v29, 1, v24
        v_lshl_add_u32 v27, v29, 2, v27
        v_and_b32 v30, 1, v25
        v_add_u32 v27, v27, v30                 ; row
        v_lshlrev_b32 v27, 8, v27
        v_lshl_add_u32 v30, v29, 1, v30
        v_lshl_add_u32 v30, v28, 2, v30         ; f
        v_lshl_add_u32 v27, v26, 3, v27
        v_add_u32 v27, {base}, v27
        s_lshl_b32 s{S_T0}, s{S_W}, 1
        """)
        cs = range(0, 5) if half == 0 else range(5, 9)
        for et in range(2):
            A(f"""
            s_add_u32 s{S_T1}, s{S_T0}, {et}
            v_xor_b32 v31, s{S_T1}, v30
            v_lshl_add_u32 v31, v31, 5, v27
            """)
            for c in cs:
                kind, b = wfrag_regs(mi, et, c)
                for Hh in range(2):
                    for rr in range(2):
                        reg = b + 4 * Hh + 2 * rr
                        A(f"ds_read_b64_tr_b16 {kind}[{reg}:{reg+1}], v31 offset:{Hh*8192 + rr*512}")
                A(f"s_waitcnt lgkmcnt(0)\nv_add_u32 v31, 16384, v31")
    CM.load_head_slices_pipelined(A, [KA['A_Wq'], KA['A_Wk'], KA['A_Wv']], L_WO, trfun)
    load_wo(A)
```

```python
import sys
sys.path.insert(0, "gen")
from common import *
import chain4 as C, pstation as P, astation as AS, wstation as W, bstation as B

KNAME = "concat_heads__memory_aug_recurrent_mem_tr__grouped_kv_mqa__prompt_kernel"
SPIN = 4000000
GRAN = 32

def poll_flags(A, s_off, nflags, fail, tmp=(2, 3), spin=35, s_val=S_NONCE):
    ws = f"s[{SRD_WS}:{SRD_WS+3}]"
    Wl = A.uid("PW")
    a, b = tmp
    A(f"v_lshrrev_b32 v{a}, 2, v{V_L16}\nv_cmp_gt_u32 vcc, {4*nflags}, v{a}\ns_nop 1\nv_cndmask_b32 v{a}, 0, v{a}, vcc\ns_mov_b32 s{spin}, {SPIN}")
    A.label(Wl)
    A(f"""
    buffer_load_dword v{b}, v{a}, {ws}, s{s_off} offen sc1
    s_waitcnt vmcnt(0)
    v_cmp_ne_u32 vcc, s{s_val}, v{b}
    s_cbranch_vccz {Wl}k
    s_sub_u32 s{spin}, s{spin}, 1
    s_cbranch_scc1 {fail}
    s_sleep 4
    s_branch {Wl}
    {Wl}k:
    """)

def build(opt=()):
    A = Asm()
    def tl(i, vt=(60,61)):
        if "tl" not in opt: return
        ws = f"s[{SRD_WS}:{SRD_WS+3}]"
        L = A.uid("TL")
        A(f"""
        s_cmp_eq_u32 s{S_W}, 0
        s_cbranch_scc0 {L}
        s_memrealtime s[98:99]
        s_waitcnt lgkmcnt(0)
        v_mov_b32 v{vt[0]}, s98
        v_mov_b32 v{vt[1]}, 0
        s_lshl_b32 s98, s6, 6
        s_add_u32 s98, s98, {WS_FLAGS + 32768 + i*4}
        s_mov_b64 exec, 1
        buffer_store_dword v{vt[0]}, v{vt[1]}, {ws}, s98 offen sc1
        s_mov_b64 exec, -1
        {L}:
        """)
    END = "K_END"
    A(f"""
    s_cmp_lt_u32 s2, 256
    s_cbranch_scc1 K_GO
    s_endpgm
    K_GO:
    s_load_dwordx2 s[4:5], s[0:1], {KA['ws']}
    s_load_dwordx2 s[20:21], s[0:1], {KA['dbg']}
    s_getreg_b32 s3, hwreg(HW_REG_XCC_ID, 0, 4)
    s_waitcnt lgkmcnt(0)
    s_mov_b32 s{SRD_WS}, s4
    s_mov_b32 s{SRD_WS+1}, s5
    s_mov_b32 s{SRD_WS+2}, {WS_SIZE}
    s_mov_b32 s{SRD_WS+3}, 0x00020000
    s_mov_b32 s12, s20
    s_mov_b32 s13, s21
    s_mov_b32 s14, 256
    s_mov_b32 s15, 0x00020000
    """)
    lane_setup(A)
    A("s_mov_b32 s6, s2")
    tl(0, (6,7))
    A(f"""
    s_cmp_eq_u32 s{S_W}, 0
    s_cbranch_scc0 K_TK1
    s_mov_b64 exec, 1
    v_mov_b32 v2, 1
    v_mov_b32 v3, 0
    s_mov_b32 s22, -1
    s_cmp_eq_u32 s3, 0
    s_cbranch_scc0 K_TB
    buffer_atomic_add v2, v3, s[12:15], 0 offen sc0
    s_waitcnt vmcnt(0)
    v_readfirstlane_b32 s22, v2
    s_cmp_lt_u32 s22, 32
    s_cbranch_scc1 K_TW
    K_TB:
    v_mov_b32 v2, 1
    buffer_atomic_add v2, v3, s[12:15], 0 offen offset:64 sc0
    s_waitcnt vmcnt(0)
    v_readfirstlane_b32 s23, v2              ; ticket B
    s_mov_b32 s22, -1
    s_cmp_lt_u32 s23, 224
    s_cbranch_scc1 K_TB2
    s_sub_u32 s22, 255, s23
    K_TB2:
    s_cmp_eq_u32 s23, 0
    s_cbranch_scc0 K_TW2
    s_memrealtime s[24:25]
    s_waitcnt lgkmcnt(0)
    s_or_b32 s24, s24, 1
    v_mov_b32 v2, s24
    buffer_store_dword v2, v3, s[12:15], 0 offen offset:128 sc1
    s_branch K_TW2
    K_TW:
    s_mov_b32 s23, -1
    K_TW2:
    v_mov_b32 v4, s22
    v_mov_b32 v5, s23
    ds_write_b64 v3, v[4:5]
    s_waitcnt lgkmcnt(0)
    s_mov_b64 exec, -1
    K_TK1:
    s_barrier
    v_mov_b32 v3, 0
    ds_read_b64 v[4:5], v3
    s_waitcnt lgkmcnt(0)
    v_readfirstlane_b32 s22, v4
    v_readfirstlane_b32 s23, v5
    s_barrier
    s_cmp_eq_u32 s23, -1
    s_cbranch_scc1 K_ROK
    s_cmp_lt_u32 s23, 256
    s_cbranch_scc1 K_ROK
    s_endpgm
    K_ROK:
    s_cmp_eq_u32 s22, -1
    s_cbranch_scc1 K_BULK
    s_branch K_CHAIN
    K_BULK:
    """)
    def get_nonce(fail, srd=12):
        Wl = A.uid("NW")
        A(f"v_mov_b32 v3, 0\ns_mov_b32 s35, {SPIN}")
        A.label(Wl)
        A(f"""
        buffer_load_dword v2, v3, s[{srd}:{srd+3}], 0 offen offset:128 sc1
        s_waitcnt vmcnt(0)
        v_readfirstlane_b32 s{S_NONCE}, v2
        s_cmp_lg_u32 s{S_NONCE}, 0
        s_cbranch_scc1 {Wl}k
        s_sub_u32 s35, s35, 1
        s_cbranch_scc1 {fail}
        s_sleep 2
        s_branch {Wl}
        {Wl}k:
        """)
    A(f"s_and_b32 s{S_H}, s23, 31\ns_lshr_b32 s50, s23, 5\ns_mov_b32 s51, s23")
    A("s_mov_b32 s88, s12\ns_mov_b32 s89, s13\ns_mov_b32 s90, s14\ns_mov_b32 s91, s15")
    if "nowarm" not in opt:
        A(f"s_mul_i32 s40, s51, 21504\ns_mul_i32 s41, s{S_W}, 5376\ns_add_u32 s40, s40, s41")
        for ka in (KA['A_Wq'], KA['A_Wk'], KA['A_Wv'], KA['A_Wo']):
            make_srd(A, SRD_A, ka, None, 576*8192)
            for i in range(6):
                A(f"buffer_load_dwordx4 v[8:11], v{V_L16}, s[{SRD_A}:{SRD_A+3}], s40 offen offset:{min(i*1024, 4080)}" if i < 4 else
                  f"s_add_u32 s42, s40, {i*1024}\nbuffer_load_dwordx4 v[8:11], v{V_L16}, s[{SRD_A}:{SRD_A+3}], s42 offen")
    if "delaybulk" in opt:
        A("s_mov_b32 s40, 0\nK_DL:\ns_sleep 127\ns_add_u32 s40, s40, 1\ns_cmp_lt_u32 s40, 3\ns_cbranch_scc1 K_DL")
    n0 = len(A.lines)
    tl(1, (6,7))
    A("s_lshl_b32 s6, s51, 0\ns_add_u32 s6, s6, 256")
    tl(0, (6,7))
    P.p_station(A, 50, nrep=7, flag=True, get_nonce=lambda: get_nonce(END, 88))
    tl(2, (6,7))
    hz = check_hazards(A.lines[n0:], "P")
    A(f"""
    s_cmp_lt_u32 s50, 2
    s_cbranch_scc1 K_A
    s_cmp_eq_u32 s50, 2
    s_cbranch_scc1 K_WB1
    s_branch K_B2
    K_A:
    s_lshl_b32 s28, s{S_H}, 5
    s_add_u32 s28, s28, {WS_FLAGS + F_P}
    s_add_u32 s29, s{S_NONCE}, 16
    """)
    poll_flags(A, 28, 7, END, s_val=29)
    n0 = len(A.lines)
    AS.a_station(A, s_par=50, nrep=2, wait_chain=True, flag=True)
    hz += check_hazards(A.lines[n0:], "A")
    tl(3, (6,7))
    A(f"s_branch {END}")
    A.label("K_WB1")
    A(f"""
    s_sub_u32 s52, s51, 64                   ; 0..31
    s_cmp_lt_u32 s52, 24
    s_cbranch_scc0 K_B1
    s_cmp_ge_u32 s52, 12
    s_cselect_b32 s54, 1, 0
    s_mul_i32 s53, s54, 12
    s_sub_u32 s53, s52, s53
    """)
    n0 = len(A.lines)
    W.w_station(A, 53, 54, 2, wait=True)
    hz += check_hazards(A.lines[n0:], "W")
    tl(3, (4,5))
    A(f"s_branch {END}")
    A.label("K_B1")
    A("s_sub_u32 s53, s52, 24")
    n0 = len(A.lines)
    B.b1_station(A, 53)
    hz += check_hazards(A.lines[n0:], "B1")
    tl(3, (6,7))
    A(f"s_branch {END}")
    A.label("K_B2")
    A("s_sub_u32 s53, s51, 96")
    n0 = len(A.lines)
    B.b2_station(A, 53, wait=True)
    hz += check_hazards(A.lines[n0:], "B2")
    tl(3, (6,7))
    A(f"s_endpgm")
    A.label("K_CHAIN")
    A(f"s_mov_b32 s{C.S_H}, s22\nv_lshrrev_b32 v0, 4, v0\ns_lshl_b32 s28, s{S_W}, 6\nv_add_u32 v0, s28, v0")
    A("s_mov_b32 s60, s12\ns_mov_b32 s61, s13\ns_mov_b32 s62, s14\ns_mov_b32 s63, s15")
    C.setup_regs(A)
    A(f"s_add_u32 s6, s{C.S_H}, 512")
    tl(0, (14,15))
    A(f"""
    v_mov_b32 v25, 0
    s_mov_b32 s65, {SPIN}
    K_MW:
    buffer_load_dword v24, v25, s[60:63], 0 offen sc1
    buffer_load_dword v26, v25, s[60:63], 0 offen offset:64 sc1
    buffer_load_dword v27, v25, s[60:63], 0 offen offset:128 sc1
    s_waitcnt vmcnt(0)
    v_readfirstlane_b32 s28, v24
    v_readfirstlane_b32 s29, v26
    v_readfirstlane_b32 s{S_NONCE}, v27
    s_cmp_eq_u32 s{S_NONCE}, 0
    s_cbranch_scc1 K_MW2
    s_mov_b32 s64, 0
    s_cmp_ge_u32 s28, 32
    s_cbranch_scc1 K_MK
    s_mov_b32 s64, 1
    s_cmp_gt_u32 s29, 224
    s_cbranch_scc1 K_MK
    K_MW2:
    s_sub_u32 s65, s65, 1
    s_cbranch_scc1 {END}
    s_sleep 2
    s_branch K_MW
    K_MK:
    """)
    if "forceslow" in opt: A("s_mov_b32 s64, 1")
    A("s_cmp_eq_u32 s64, 1\ns_cbranch_scc1 K_I1")
    C.chain_init_mem(A, "")
    A("s_branch K_I2")
    A.label("K_I1")
    C.chain_init_mem(A, "sc1")
    A.label("K_I2")
    A(f"""
    s_barrier
    s_cmp_eq_u32 s{S_W}, 0
    s_cbranch_scc0 K_RD
    s_mov_b64 exec, 1
    v_mov_b32 v24, 1
    v_mov_b32 v25, 0
    buffer_atomic_add v24, v25, s[60:63], 0 offen offset:192
    s_mov_b64 exec, -1
    K_RD:
    """)
    C.load_all_weights(A)
    tl(1, (14,15))
    for mode, st in ((0, ""), (1, "sc1")):
        lab = f"K_M{mode}"
        if mode == 0: A(f"s_cmp_eq_u32 s64, 1\ns_cbranch_scc1 K_M1")
        else: A.label("K_M1")
        A(f"""
        v_mov_b32 v25, 0
        s_mov_b32 s65, {SPIN}
        {lab}w:
        buffer_load_dword v24, v25, s[60:63], 0 offen offset:192 sc1
        s_waitcnt vmcnt(0)
        v_readfirstlane_b32 s28, v24
        s_cmp_ge_u32 s28, 32
        s_cbranch_scc1 {lab}k
        s_sub_u32 s65, s65, 1
        s_cbranch_scc1 {END}
        s_sleep 2
        s_branch {lab}w
        {lab}k:
        s_lshl_b32 s{C.S_PFO}, s{C.S_H}, 5
        s_add_u32 s{C.S_PFO}, s{C.S_PFO}, {WS_FLAGS + F_P}
        v_lshrrev_b32 v24, 2, v0
        v_and_b32 v24, 4, v24
        s_mov_b32 s65, {SPIN}
        {lab}p:
        buffer_load_dword v25, v24, s[{SRD_WS}:{SRD_WS+3}], s{C.S_PFO} offen sc1
        s_waitcnt vmcnt(0)
        v_subrev_u32 v25, s{S_NONCE}, v25
        v_subrev_u32 v25, 1, v25
        v_cmp_lt_u32 vcc, 15, v25
        s_cbranch_vccz {lab}q
        s_sub_u32 s65, s65, 1
        s_cbranch_scc1 {END}
        s_sleep 4
        s_branch {lab}p
        {lab}q:
        s_mov_b32 s{C.S_PRHO}, 2
        s_mov_b32 s{C.S_PKK}, 0
        s_add_u32 s{C.S_PFA}, s{C.S_PFO}, 8
        """)
        A(f"""
        s_and_b32 s{C.S_TAG}, s{S_NONCE}, 0x3fff3f00
        s_add_u32 s{C.S_TAG}, s{C.S_TAG}, 1
        s_lshl_b32 s{C.S_TAG4}, s{C.S_TAG}, 2
        s_lshl_b32 s{C.S_CFO}, s{C.S_H}, 2
        s_add_u32 s{C.S_CFO}, s{C.S_CFO}, {WS_FLAGS + F_C}
        """)
        C.init_state(A, flags=True)
        tl(2, (14,15))
        n0 = len(A.lines)
        if "cprof" in opt and mode == 0:
            for i in list(range(86,94))+[98,99,100,101]: A(f"s_mov_b32 s{i}, 0")
            A("s_memtime s[2:3]\ns_waitcnt lgkmcnt(0)\ns_mov_b32 s48, s2")
            for i in range(8): A(f"s_mov_b32 s{70+2*i}, s2")
        C.chain_step(A, st, prof=("cprof" in opt and mode == 0), nsteps=64, opt=("flags",) + tuple(o for o in opt if o in ("nopub","nopf","fixkv")))
        if "cprof" in opt and mode == 0:
            for i in range(8): A(f"v_mov_b32 v{28+i}, s{86+i}")
            A(f"""
            v_mov_b32 v44, s98
            v_mov_b32 v45, s99
            v_mov_b32 v46, s100
            v_mov_b32 v47, s101
            s_lshl_b32 s6, s{C.S_H}, 2
            s_add_u32 s6, s6, s{C.S_W}
            s_mul_i32 s6, s6, 96
            s_add_u32 s6, s6, {WS_FLAGS + 49152 + 32768}
            v_mov_b32 v48, s6
            s_mov_b64 exec, 1
            """)
            for j in range(1, 6): A(f"buffer_store_dwordx4 v[{24+4*j}:{27+4*j}], v48, s[8:11], 0 offen offset:{16*j}")
            A("s_mov_b64 exec, -1\ns_waitcnt vmcnt(0)")
        hz += check_hazards(A.lines[n0:], "chain")
        tl(3, (14,15))
        A("s_endpgm")
    A.label(END)
    return A, hz

HEADER = open("concat_heads__memory_aug_recurrent_mem_tr__grouped_kv_mqa__prompt.s.ref").read().split("; Override launch geometry")[0]

def full_text(opt=()):
    A, hz = build(opt)
    for m in hz: print("HAZARD", m)
    txt = HEADER + "; @launch grid=(256,1,1) block=(256,1,1) lds=163840\n"
    txt += f""".amdgcn_target "amdgcn-amd-amdhsa--gfx950"
.text
.globl {KNAME}
.p2align 8
.type {KNAME},@function
{KNAME}:
"""
    body = "\n".join(l.split(";")[0].rstrip().lstrip() if not l.lstrip().startswith(";") else "" for l in A.lines)
    body = "\n".join(l for l in body.split("\n") if l)
    if "noalign" not in opt:
        import alignpass
        body = "\n".join(alignpass.align(body.split("\n"), GRAN))
    txt += body + f"""
s_endpgm
.section .rodata,"a"
.p2align 6
.amdhsa_kernel {KNAME}
  .amdhsa_next_free_vgpr 512
  .amdhsa_next_free_sgpr 102
  .amdhsa_accum_offset 256
  .amdhsa_group_segment_fixed_size 0
  .amdhsa_kernarg_size 120
  .amdhsa_user_sgpr_count 2
  .amdhsa_user_sgpr_kernarg_segment_ptr 1
  .amdhsa_system_sgpr_workgroup_id_x 1
.end_amdhsa_kernel
"""
    return txt

if __name__ == "__main__":
    opt = tuple(a[2:] for a in sys.argv[1:] if a.startswith("--"))
    for a in sys.argv[1:]:
        if a.startswith("d="): C.DELAYS[:] = [int(x) for x in a[2:].split(",")]
        if a.startswith("g="): C.GSLEEP = int(a[2:])
        if a.startswith("gran="): GRAN = int(a[5:])
        if a.startswith("gm="): C.GMODE = int(a[3:])
        if a.startswith("g01="): C.G01 = int(a[4:])
        if a.startswith("pg="): C.PGAP = int(a[3:])
        if a.startswith("p0="): C.PUB0 = int(a[3:])
        if a.startswith("pgp="): C.PUBG = int(a[4:])
        if a.startswith("rg="): C.RGAP = int(a[3:])
    t = full_text(opt)
    out = "concat_heads__memory_aug_recurrent_mem_tr__grouped_kv_mqa__prompt.s"
    for a in sys.argv[1:]:
        if a.startswith("o="): out = a[2:]
    open(out, "w").write(t)
    print("written", len(t), "bytes")
```

```python
from common import *

V_XO, V_T3, V_QW, V_QR, V_MO, V_KFW, V_VFW, V_VFR = 2, 3, 4, 5, 6, 7, 8, 9
V_T0, V_T1 = 10, 11
V_ONES = 12
V_BIAS = 16
V_BM = 24
V_XF = 28
V_QA = 52
V_MF = 28
V_KA, V_VA = 40, 48
V_QF = 28
V_AR = 44
V_SM = 56
V_SX = 60
V_PX = 68
V_PM = 72
V_O = 28
V_L = 76
V_TMP = 56
SRD_X = 20
S_SEG, S_ROW, S_LB, S_EH, S_SPIN = 24, 25, 26, 34, 35
S_KVO, S_MO, S_OO, S_KB = 40, 41, 43, 42
S_LO, S_HI = 44, 45
S_PREV = 46
S_FAIL = 19
L_X0, L_X1 = 0, 36864
L_QF = 73728
L_KF = L_QF + 8192
L_VF = L_KF + 4096
L_KV0 = L_VF + 4096
L_MF = L_KV0 + 32768
QS = f32bits(QSCALE)
SPIN_MAX = 2000000

def wmap(mat):
    def f(et, cc):
        idx = mat*36 + et*18 + cc
        return ("a", idx*4) if idx < 64 else ("v", 80 + (idx-64)*4)
    return f
def wreg(mat, et, cc):
    k, b = wmap(mat)(et, cc); return f"{k}[{b}:{b+3}]"
def mf32(d, a, b, c): return f"v_mfma_f32_16x16x32_bf16 {vr(d,4)}, {a}, {b}, {c}"
def mf16(d, a, b, c): return f"v_mfma_f32_16x16x16_bf16 {vr(d,4)}, {vr(a,2)}, {vr(b,2)}, {c}"

def a_load(A):
    load_head_slices_pipelined(A, [KA['A_Wk'], KA['A_Wv'], KA['A_Wq']], 0, natural_tr(A, [wmap(1), wmap(2), wmap(0)], 0))

def a_station(A, s_par=None, nrep=1, wait_chain=True, flag=True, load=True, prof=False):
    def stamp(i):
        if prof: A(f"s_memtime s[60:61]\ns_waitcnt lgkmcnt(0)\ns_sub_u32 s62, s60, s63\ns_add_u32 s{70+i}, s{70+i}, s62\ns_mov_b32 s63, s60")
    ws = f"s[{SRD_WS}:{SRD_WS+3}]"
    if load: a_load(A)
    make_srd(A, SRD_X, KA['A_x'], None, 2048*1152)
    A(f"""
    v_bfe_u32 v28, v{V_L16}, 4, 4            ; n
    v_lshrrev_b32 v29, 8, v{V_L16}           ; g
    v_mul_u32_u24 v{V_XO}, 1152, v28
    v_lshl_add_u32 v{V_XO}, v29, 4, v{V_XO}
    s_lshl_b32 s28, s{S_W}, 10
    s_add_u32 s29, s28, {L_QF}
    v_add_u32 v{V_QW}, s29, v{V_L16}
    s_add_u32 s29, s28, {L_KF}
    v_add_u32 v{V_KFW}, s29, v{V_L16}
    s_and_b32 s28, s{S_W}, 1
    s_lshl_b32 s28, s28, 12
    s_add_u32 s28, s28, {L_QF}
    v_add_u32 v{V_QR}, s28, v{V_L16}
    s_lshr_b32 s{S_EH}, s{S_W}, 1
    v_lshrrev_b32 v30, 1, v{V_L16}           ; lane*8
    s_lshl_b32 s28, s{S_W}, 10
    s_add_u32 s28, s28, {L_VF}
    v_add_u32 v{V_VFW}, s28, v30             ; tiles 2w, 2w+1 (+512)
    s_lshl_b32 s28, s{S_EH}, 11
    s_add_u32 s28, s28, {L_VF}
    v_add_u32 v{V_VFR}, s28, v30
    v_and_b32 v30, 7, v28
    v_lshrrev_b32 v31, 1, v30
    v_lshlrev_b32 v31, 2, v31
    v_and_b32 v30, 1, v30
    v_add_u32 v31, v31, v30
    v_and_b32 v30, 1, v29
    v_lshl_add_u32 v31, v30, 1, v31
    v_lshlrev_b32 v31, 4, v31
    v_lshrrev_b32 v30, 1, v29
    v_lshl_add_u32 v{V_MO}, v30, 8, v31
    s_and_b32 s28, s{S_W}, 1
    s_lshl_b32 s28, s28, 4
    v_add_u32 v30, s28, v28                  ; query
    v_lshlrev_b32 v31, 2, v29                ; 4g
    v_mov_b32 v32, 0xf149f2ca                ; -1e30
    """)
    for tau in range(2):
        for r in range(4):
            A(f"v_add_u32 v33, {16*tau + r}, v31\nv_cmp_gt_u32 vcc, v33, v30\ns_nop 1\nv_cndmask_b32 v{V_BIAS + 4*tau + r}, 0, v32, vcc")
    A(f"v_cmp_lt_u32 vcc, 1, v29\ns_nop 1")
    for r in range(4): A(f"v_cndmask_b32 v{V_BM + r}, 0, v32, vcc")
    for i in range(4): A(f"v_mov_b32 v{V_ONES+i}, 0x3f803f80")
    A(f"""
    s_mov_b32 s{S_LO}, 0x21800000
    s_mov_b32 s{S_HI}, 0x5f800000
    s_mov_b32 s{S_SEG}, {('s%d' % s_par) if s_par is not None else 0}
    s_mul_i32 s{S_ROW}, s{S_SEG}, {32*1152}
    s_mov_b32 s{S_LB}, {L_X0}
    s_mov_b32 s{S_KB}, {L_KV0}
    s_mov_b32 s{S_FAIL}, 0
    """)
    def kv_dma(s_seg, s_lds):
        A(f"s_lshl_b32 s28, s{s_seg}, 5\ns_add_u32 s28, s28, s{S_H}\ns_lshl_b32 s28, s28, 14\ns_add_u32 s28, s28, {WS_KV}")
        A(f"s_lshl_b32 s29, s{S_W}, 12\ns_add_u32 s28, s28, s29\ns_add_u32 s29, s29, s{s_lds}")
        A("s_mov_b32 m0, s29\ns_nop 0")
        for i in range(4):
            A(f"buffer_load_dwordx4 v{V_L16}, {ws}, s28 offen offset:{i*1024} lds")
    x_dma(A, SRD_X, V_XO, S_ROW, S_LB)
    kv_dma(S_SEG, S_KB)
    V_OA = V_O
    LOOP = A.uid("AL"); NODMA = A.uid("AN"); END = A.uid("AE"); FAIL = A.uid("AF"); SLOW = A.uid("AS"); BACK = A.uid("AB")
    if prof:
        for i in range(10): A(f"s_mov_b32 s{70+i}, 0")
        A("s_memtime s[60:61]\ns_waitcnt lgkmcnt(0)\ns_mov_b32 s63, s60")
    def raise_flag(seg_sgpr):
        NF = A.uid("ANF")
        A(f"""
        s_cmp_eq_u32 s{S_W}, 0
        s_cbranch_scc0 {NF}
        s_lshl_b32 s28, s{seg_sgpr}, 7
        s_lshl_b32 s29, s{S_H}, 2
        s_add_u32 s28, s28, s29
        s_add_u32 s28, s28, {WS_FLAGS + F_O}
        v_mov_b32 v{V_T0}, s{S_NONCE}
        v_mov_b32 v{V_T1}, 0
        s_mov_b64 exec, 1
        buffer_store_dword v{V_T0}, v{V_T1}, {ws}, s28 offen sc1
        s_mov_b64 exec, -1
        """)
        A.label(NF)
    A(f"s_mov_b32 s{S_PREV}, -1")
    A.label(LOOP)
    A("s_waitcnt vmcnt(0) lgkmcnt(0)\ns_barrier")
    if flag:
        NP = A.uid("ANP")
        A(f"s_cmp_eq_u32 s{S_PREV}, -1\ns_cbranch_scc1 {NP}")
        raise_flag(S_PREV)
        A.label(NP)
    stamp(0)
    A(f"""
    s_add_u32 s37, s{S_SEG}, {nrep}
    s_cmp_lt_u32 s37, 64
    s_cbranch_scc0 {NODMA}
    s_mul_i32 s{S_ROW}, s37, {32*1152}
    s_xor_b32 s36, s{S_LB}, {L_X1}
    s_xor_b32 s38, s{S_KB}, {L_KV0 ^ (L_KV0 + 16384)}
    """)
    x_dma(A, SRD_X, V_XO, S_ROW, 36)
    kv_dma(37, 38)
    A.label(NODMA)
    stamp(1)
    A(f"v_add_u32 v{V_T3}, s{S_LB}, v{V_L16}")
    def xr(cc):
        st = cc % 3
        for tt in range(2):
            A(f"ds_read_b128 {vr(V_XF + (st*2+tt)*4, 4)}, v{V_T3} offset:{(tt*18+cc)*1024}")
    xr(0); xr(1)
    for cc in range(18):
        if cc + 2 < 18: xr(cc + 2)
        A(f"s_waitcnt lgkmcnt({2 * min(2, 17 - cc)})")
        st = cc % 3
        for et in range(2):
            for tt in range(2):
                d = V_QA + (et*2+tt)*4
                A(mf32(d, wreg(0,et,cc), vr(V_XF+(st*2+tt)*4,4), '0' if cc==0 else vr(d,4)))
    A(f"s_mov_b32 s29, {QS:#x}\ns_nop 6")
    for tt in range(2):
        t = V_XF + 4*tt
        for et in range(2):
            d = V_QA + (et*2+tt)*4
            for r in range(4): A(f"v_mul_f32 v{d+r}, s29, v{d+r}")
            A(f"v_cvt_pk_bf16_f32 v{t+2*et}, v{d}, v{d+1}\nv_cvt_pk_bf16_f32 v{t+2*et+1}, v{d+2}, v{d+3}")
        A(f"ds_write_b128 v{V_QW}, {vr(t,4)} offset:{tt*4096}")
    stamp(2)
    if wait_chain:
        W = A.uid("AW"); OK = A.uid("AK")
        A(f"""
        s_mov_b32 s28, {WS_FLAGS + F_C}
        s_mov_b32 s{S_SPIN}, {SPIN_MAX}
        v_lshrrev_b32 v{V_T0}, 2, v{V_L16}
        v_cmp_gt_u32 vcc, 36, v{V_T0}
        s_nop 1
        v_cndmask_b32 v{V_T0}, 0, v{V_T0}, vcc
        s_add_u32 s29, s{S_NONCE}, s{S_SEG}
        s_add_u32 s29, s29, 1                ; nonce + s + 1
        s_sub_u32 s30, 63, s{S_SEG}
        """)
        A.label(W)
        A(f"""
        buffer_load_dword v{V_T1}, v{V_T0}, {ws}, s28 offen sc1
        s_waitcnt vmcnt(0)
        v_subrev_u32 v{V_T1}, s29, v{V_T1}
        v_cmp_lt_u32 vcc, s30, v{V_T1}
        s_cbranch_vccz {OK}
        s_sub_u32 s{S_SPIN}, s{S_SPIN}, 1
        s_cbranch_scc1 {FAIL}
        s_sleep 4
        s_branch {W}
        """)
        A.label(OK)
    stamp(3)
    A(f"s_lshl_b32 s{S_MO}, s{S_SEG}, 14\ns_add_u32 s{S_MO}, s{S_MO}, {WS_MEMS}")
    A(f"s_lshl_b32 s28, s{S_W}, 9\ns_add_u32 s28, s28, s{S_MO}\ns_lshl_b32 s29, s{S_W}, 10\ns_add_u32 s29, s29, {L_MF}")
    for i in range(5):
        if i == 4:
            NM = A.uid("ANM")
            A(f"s_cmp_lt_u32 s{S_W}, 2\ns_cbranch_scc0 {NM}")
        A(f"s_mov_b32 m0, s29\ns_add_u32 s29, s29, 4096\nbuffer_load_dwordx4 v{V_MO}, {ws}, s28 offen lds\ns_add_u32 s28, s28, 2048")
        if i == 4: A.label(NM)
    A("s_waitcnt vmcnt(0) lgkmcnt(0)\ns_barrier")
    stamp(4)
    A(f"v_add_u32 v{V_T0}, {L_MF}, v{V_L16}")
    def mr(cc): A(f"ds_read_b128 {vr(V_MF + (cc%3)*4, 4)}, v{V_T0} offset:{cc*1024}")
    mr(0); mr(1)
    for cc in range(18):
        if cc + 2 < 18: mr(cc + 2)
        A(f"s_waitcnt lgkmcnt({min(2, 17 - cc)})")
        m = vr(V_MF + (cc%3)*4, 4)
        for et in range(2):
            A(mf32(V_KA+4*et, wreg(1,et,cc), m, '0' if cc==0 else vr(V_KA+4*et,4)))
            A(mf32(V_VA+4*et, m, wreg(2,et,cc), '0' if cc==0 else vr(V_VA+4*et,4)))
    A("s_nop 7")
    t = V_SM
    for et in range(2):
        d = V_KA + 4*et
        A(f"v_cvt_pk_bf16_f32 v{t+2*et}, v{d}, v{d+1}\nv_cvt_pk_bf16_f32 v{t+2*et+1}, v{d+2}, v{d+3}")
    A(f"ds_write_b128 v{V_KFW}, {vr(t,4)}")
    for et in range(2):
        d = V_VA + 4*et
        A(f"v_cvt_pk_bf16_f32 v{d}, v{d}, v{d+1}\nv_cvt_pk_bf16_f32 v{d+1}, v{d+2}, v{d+3}")
        A(f"ds_write_b64 v{V_VFW}, {vr(d,2)} offset:{et*512}")
    A("s_waitcnt lgkmcnt(0)\ns_barrier")
    stamp(5)
    for c in range(4):
        A(f"ds_read_b128 {vr(V_QF+4*c,4)}, v{V_QR} offset:{c*1024}")
    A(f"v_add_u32 v{V_T3}, s{S_KB}, v{V_L16}\nv_add_u32 v{V_T0}, {L_KF}, v{V_L16}")
    def scores():
        src = [(V_T0, c*1024) for c in range(4)] + [(V_T3, tau*4096 + c*1024) for tau in range(2) for c in range(4)]
        def rd(i): A(f"ds_read_b128 {vr(V_AR + (i%3)*4, 4)}, v{src[i][0]} offset:{src[i][1]}")
        rd(0); rd(1)
        for i in range(12):
            if i + 2 < 12: rd(i + 2)
            A(f"s_waitcnt lgkmcnt({min(2, 11 - i)})")
            c = i % 4
            if i < 4: d, c0 = V_SM, vr(V_BM,4)
            else: d, c0 = V_SX + 4*((i-4)//4), vr(V_BIAS + 4*((i-4)//4), 4)
            A(mf32(d, vr(V_AR + (i%3)*4, 4), vr(V_QF+4*c,4), c0 if c == 0 else vr(d,4)))
        A("s_nop 7\ns_nop 0")
    def tail():
        A(f"v_cvt_pk_bf16_f32 v{V_PM}, v{V_SM}, v{V_SM+1}\nv_cvt_pk_bf16_f32 v{V_PM+1}, v{V_SM+2}, v{V_SM+3}")
        A(f"v_cvt_pk_bf16_f32 v{V_PX}, v{V_SX}, v{V_SX+1}\nv_cvt_pk_bf16_f32 v{V_PX+1}, v{V_SX+2}, v{V_SX+3}")
        A(f"v_cvt_pk_bf16_f32 v{V_PX+2}, v{V_SX+4}, v{V_SX+5}\nv_cvt_pk_bf16_f32 v{V_PX+3}, v{V_SX+6}, v{V_SX+7}")
        A(f"s_lshl_b32 s28, s{S_EH}, 12\ns_add_u32 s28, s28, 8192\nv_add_u32 v{V_T1}, s28, v{V_T3}")
        VMR = V_SM
        for j in range(3): A(f"ds_read_b128 {vr(V_AR+4*j,4)}, v{V_T1} offset:{j*1024}")
        for j in range(4): A(f"ds_read_b64 {vr(VMR+2*j,2)}, v{V_VFR} offset:{j*512}")
        A(mf32(V_L, vr(V_ONES,4), vr(V_PX,4), '0'))
        A("s_waitcnt lgkmcnt(0)")
        for j in range(3): A(mf32(V_OA+4*j, vr(V_AR+4*j,4), vr(V_PX,4), '0'))
        A(f"ds_read_b128 {vr(V_AR,4)}, v{V_T1} offset:3072\ns_waitcnt lgkmcnt(0)")
        A(mf32(V_OA+12, vr(V_AR,4), vr(V_PX,4), '0'))
        A("s_nop 7")
        A(mf16(V_L, V_ONES, V_PM, vr(V_L,4)))
        for j in range(4): A(mf16(V_OA+4*j, VMR+2*j, V_PM, vr(V_OA+4*j,4)))
        A("s_nop 7")
    vals = list(range(V_SM, V_SM+4)) + list(range(V_SX, V_SX+8))
    scores()
    for r in vals: A(f"v_exp_f32 v{r}, v{r}")
    A("s_nop 0")
    tail()
    A(f"v_mov_b32 v{V_T0}, s{S_HI}\nv_med3_f32 v{V_T0}, v{V_L}, s{S_LO}, v{V_T0}\nv_cmp_neq_f32 vcc, v{V_T0}, v{V_L}")
    A(f"s_cbranch_vccnz {SLOW}")
    A.label(BACK)
    A(f"v_rcp_f32 v{V_T0}, v{V_L}\ns_nop 0")
    A(f"""
    s_lshl_b32 s28, s{S_SEG}, 1
    s_and_b32 s29, s{S_W}, 1
    s_add_u32 s28, s28, s29                  ; s*2 + tt
    s_lshl_b32 s28, s28, 7
    s_lshl_b32 s29, s{S_H}, 2
    s_add_u32 s28, s28, s29
    s_lshl_b32 s29, s{S_EH}, 1
    s_add_u32 s28, s28, s29                  ; + h*4 + 2eh
    s_lshl_b32 s28, s28, 10
    s_add_u32 s{S_OO}, s28, {WS_O}
    """)
    for c2 in range(2):
        t = 64 + 4*c2
        for half in range(2):
            o = V_OA + 4*(2*c2+half)
            for r in range(4): A(f"v_mul_f32 v{o+r}, v{o+r}, v{V_T0}")
            A(f"v_cvt_pk_bf16_f32 v{t+2*half}, v{o}, v{o+1}\nv_cvt_pk_bf16_f32 v{t+2*half+1}, v{o+2}, v{o+3}")
        A(f"buffer_store_dwordx4 {vr(t,4)}, v{V_L16}, {ws}, s{S_OO} offen offset:{c2*1024} sc1")
    stamp(6)
    A(f"s_mov_b32 s{S_PREV}, s{S_SEG}")
    A(f"""
    s_xor_b32 s{S_LB}, s{S_LB}, {L_X1}
    s_xor_b32 s{S_KB}, s{S_KB}, {L_KV0 ^ (L_KV0 + 16384)}
    s_add_u32 s{S_SEG}, s{S_SEG}, {nrep}
    s_cmp_lt_u32 s{S_SEG}, 64
    s_cbranch_scc1 {LOOP}
    s_waitcnt vmcnt(0)
    s_barrier
    """)
    if flag: raise_flag(S_PREV)
    A(f"s_branch {END}")
    A.label(SLOW)
    A("s_nop 7")
    for c in range(4):
        A(f"ds_read_b128 {vr(V_QF+4*c,4)}, v{V_QR} offset:{c*1024}")
    A(f"v_add_u32 v{V_T0}, {L_KF}, v{V_L16}\ns_waitcnt lgkmcnt(0)")
    scores()
    m = V_T0; t = V_T1
    A(f"v_max3_f32 v{m}, v{vals[0]}, v{vals[1]}, v{vals[2]}")
    for i in range(3, 11, 2): A(f"v_max3_f32 v{m}, v{vals[i]}, v{vals[i+1]}, v{m}")
    A(f"v_max_f32 v{m}, v{vals[11]}, v{m}")
    A(f"v_mov_b32 v{t}, v{m}\ns_nop 1\nv_permlane32_swap_b32 v{t}, v{m}\ns_nop 1\nv_max_f32 v{m}, v{m}, v{t}")
    A(f"v_mov_b32 v{t}, v{m}\ns_nop 1\nv_permlane16_swap_b32 v{t}, v{m}\ns_nop 1\nv_max_f32 v{m}, v{m}, v{t}")
    for r in vals: A(f"v_sub_f32 v{r}, v{r}, v{m}")
    for r in vals: A(f"v_exp_f32 v{r}, v{r}")
    A("s_nop 0")
    tail()
    A(f"s_branch {BACK}")
    A.label(FAIL)
    A(f"s_mov_b32 s{S_FAIL}, 1")
    A.label(END)
    if prof:
        for i in range(8): A(f"v_mov_b32 v{28+i}, s{70+i}")
        A(f"""
        s_lshl_b32 s28, s51, 2
        s_add_u32 s28, s28, s{S_W}
        s_lshl_b32 s28, s28, 5
        s_add_u32 s28, s28, {WS_FLAGS + 131072}
        v_mov_b32 v40, 0
        s_mov_b64 exec, 1
        buffer_store_dwordx4 v[28:31], v40, {ws}, s28 offen
        buffer_store_dwordx4 v[32:35], v40, {ws}, s28 offen offset:16
        s_mov_b64 exec, -1
        """)
```

```python
from asmlib import *
from layout import *
import struct

def f32bits(x): return struct.unpack("<I", struct.pack("<f", x))[0]

V_L16, V_IDX, V_QKW, V_TR, V_OW, V_P1, V_RD, V_MST, V_WO, V_SR = 0, 1, 2, 3, 4, 5, 6, 7, 8, 9
V_ONES = 52
V_SX = 14
V_PM = 18
V_ZERO = 19
V_OUT = 14
V_SEL = 48
V_PF = 6
NRING = 4
V_VX0, V_VX1 = 20, 10
S_ONES = 12
V_R = 24
V_AQ = 40
V_F23 = 48
V_AK = 56
V_KA = 64
V_KB = 72
def F(c): return [V_AQ, V_AQ + 4, V_F23, V_F23 + 4][c]
def KX(c): return [V_KA, V_KA + 4, V_KB, V_KB + 4][c]
V_AV = V_KA
V_VX = V_KB
V_AVX = V_AK
V_AK2 = V_KA
V_S0 = V_KB
V_SM = V_KB + 4
V_F2 = 24

S_H, S_W, S_STEP, S_FAIL = 16, 17, 18, 19
S_P1, S_MC, S_MN, S_MT = 20, 21, 22, 23
S_KV, S_KM, S_SPIN = 24, 25, 27
S_T0, S_T1, S_T2 = 28, 29, 30
S_GW = 31
S_VALID = 32
S_MMASK = 34
S_TAU512 = 36
S_T3, S_T4 = 37, 38
S_TAG, S_TAG4 = 39, 40
S_MC6 = 46
S_SELO = 50
S_KXO, S_VXO = 47, 49
SRD_WS = 8
SRD_W = 12
SPIN_MAX = 400000
STAMPS = ['0','3','5','7','8','11','12','13']
DELAYS = [0, 1, 2]
S_LHI = 44
S_CFO = 43
S_PFO, S_PRHO, S_PKK = 42, 68, 69
S_M3, S_MP, S_MP1 = 56, 58, 60
S_WV = 57
S_MCH, S_CFV, S_KMC = 62, 63, 64
S_PF0, S_PF1, S_PFA = 45, 26, 51
GSLEEP = 0
PGAP = 1
WOP = [4,4,3,3,3,3,3,3,3]
GMODE = 0
PUB0 = 2
PUBG = 1
RGAP = 2
G01 = 0
CUT = None
PROF0 = 86

def wfrag(mat, et, c):
    idx = mat * 18 + et * 9 + c
    if idx < 32: return ar(idx * 8, 8)
    return vr(80 + (idx - 32) * 8, 8)
def wfrag_regs(mat, et, c):
    idx = mat * 18 + et * 9 + c
    return ("a", idx * 8) if idx < 32 else ("v", 80 + (idx - 32) * 8)

def load_qkv(A, kaoff, mat):
    lw = A.uid("LW"); lr = A.uid("LR")
    A(f"""
    s_load_dwordx2 s[4:5], s[0:1], {kaoff}
    s_waitcnt lgkmcnt(0)
    s_lshl_b32 s{S_T0}, s{S_H}, 8
    s_add_u32 s{SRD_W}, s4, s{S_T0}
    s_addc_u32 s{SRD_W+1}, s5, 0
    s_sub_u32 s{SRD_W+2}, {576*8192}, s{S_T0}
    s_mov_b32 s{SRD_W+3}, 0x00020000
    v_lshrrev_b32 v24, 8, v{V_L16}          ; l>>4
    v_and_b32 v25, 1, v24
    s_lshl_b32 s{S_T0}, s{S_W}, 1           ; (w&1)<<1 | (w>>1)<<2 == w<<1
    v_or_b32 v25, s{S_T0}, v25              ; f
    v_bfe_u32 v26, v{V_L16}, 5, 3           ; (l&15)>>1
    v_xor_b32 v26, v26, v25
    v_lshlrev_b32 v26, 5, v26
    v_lshl_add_u32 v26, v24, 13, v26
    v_and_b32 v27, 16, v{V_L16}             ; (l&1)*16
    v_add_u32 v26, v26, v27
    s_lshl_b32 s{S_T0}, s{S_W}, 15          ; soffset = a*32768, a = 4i + w
    s_lshl_b32 s{S_T1}, s{S_W}, 10
    s_add_u32 s{S_T1}, s{S_T1}, {L_WO}      ; m0 = L_WO + a*1024
    s_mov_b32 s{S_T2}, 0
    {lw}:
    s_mov_b32 m0, s{S_T1}
    s_nop 0
    buffer_load_dwordx4 v26, s[{SRD_W}:{SRD_W+3}], s{S_T0} offen lds
    s_add_u32 s{S_T0}, s{S_T0}, {4*32768}
    s_add_u32 s{S_T1}, s{S_T1}, 4096
    s_add_u32 s{S_T2}, s{S_T2}, 1
    s_cmp_lt_u32 s{S_T2}, 36
    s_cbranch_scc1 {lw}
    s_waitcnt vmcnt(0)
    s_barrier
    v_lshrrev_b32 v24, 8, v{V_L16}          ; gB
    v_bfe_u32 v25, v{V_L16}, 6, 2           ; r = n>>2
    v_bfe_u32 v26, v{V_L16}, 4, 2           ; cq = n&3
    v_lshrrev_b32 v27, 1, v24               ; gB>>1
    v_lshlrev_b32 v27, 4, v27
    v_lshrrev_b32 v28, 1, v25               ; r>>1
    v_lshl_add_u32 v27, v28, 3, v27
    v_and_b32 v29, 1, v24                   ; gB&1
    v_lshl_add_u32 v27, v29, 2, v27
    v_and_b32 v30, 1, v25                   ; r&1
    v_add_u32 v27, v27, v30                 ; row
    v_lshlrev_b32 v27, 8, v27
    v_lshl_add_u32 v30, v29, 1, v30
    v_lshl_add_u32 v30, v28, 2, v30         ; f
    v_lshl_add_u32 v27, v26, 3, v27         ; + cq*8
    v_add_u32 v27, {L_WO}, v27
    s_lshl_b32 s{S_T0}, s{S_W}, 1
    """)
    for et in range(2):
        A(f"""
        s_add_u32 s{S_T1}, s{S_T0}, {et}
        v_xor_b32 v31, s{S_T1}, v30
        v_lshl_add_u32 v31, v31, 5, v27
        """)
        for c in range(9):
            kind, base = wfrag_regs(mat, et, c)
            for Hh in range(2):
                for rr in range(2):
                    reg = base + 4 * Hh + 2 * rr
                    A(f"ds_read_b64_tr_b16 {kind}[{reg}:{reg+1}], v31 offset:{Hh*8192 + rr*512}")
            A(f"s_waitcnt lgkmcnt(0)\nv_add_u32 v31, 16384, v31")
    A("s_barrier")

def load_wo(A):
    lw = A.uid("LW")
    A(f"""
    s_load_dwordx2 s[4:5], s[0:1], {KA['A_Wo']}
    s_waitcnt lgkmcnt(0)
    s_mul_i32 s{S_T0}, s{S_H}, {128*1152}
    s_add_u32 s{SRD_W}, s4, s{S_T0}
    s_addc_u32 s{SRD_W+1}, s5, 0
    s_mov_b32 s{SRD_W+2}, {128*1152}
    s_mov_b32 s{SRD_W+3}, 0x00020000
    v_lshrrev_b32 v24, 5, v{V_L16}          ; l>>1
    v_mul_u32_u24 v24, 1152, v24
    v_and_b32 v25, 16, v{V_L16}
    v_add_u32 v24, v24, v25
    """)
    for sg in range(3):
        for tau in range(3):
            for a in range(4):
                A(f"""
                s_mul_i32 s{S_T0}, s{S_W}, 96
                s_add_u32 s{S_T0}, s{S_T0}, {(12*sg + tau)*32 + a*32*1152}
                s_mul_i32 s{S_T1}, s{S_W}, 36864
                s_add_u32 s{S_T1}, s{S_T1}, {L_WO + (sg*3+tau)*4096 + a*1024}
                s_mov_b32 m0, s{S_T1}
                s_nop 0
                buffer_load_dwordx4 v24, s[{SRD_W}:{SRD_W+3}], s{S_T0} offen lds
                """)
    A("s_waitcnt vmcnt(0)")
    A(f"""
    v_lshrrev_b32 v24, 8, v{V_L16}          ; gB
    v_bfe_u32 v25, v{V_L16}, 6, 2           ; r
    v_bfe_u32 v26, v{V_L16}, 4, 2           ; cq
    v_and_b32 v27, 1, v24
    v_lshlrev_b32 v27, 5, v27
    v_lshrrev_b32 v28, 1, v25
    v_lshl_add_u32 v27, v28, 4, v27
    v_lshrrev_b32 v28, 1, v24
    v_lshl_add_u32 v27, v28, 2, v27
    v_and_b32 v28, 1, v25
    v_add_u32 v27, v27, v28
    v_lshlrev_b32 v27, 5, v27
    v_lshl_add_u32 v27, v26, 3, v27
    s_mul_i32 s{S_T1}, s{S_W}, 36864
    s_add_u32 s{S_T1}, s{S_T1}, {L_WO}
    v_add_u32 v27, s{S_T1}, v27
    """)
    for sl in range(9):
        for k in range(2):
            for Hh in range(2):
                for rr in range(2):
                    reg = 32 + k * 8 + Hh * 4 + rr * 2
                    A(f"ds_read_b64_tr_b16 v[{reg}:{reg+1}], v27 offset:{sl*4096 + (64*k + 8*Hh + 2*rr)*32}")
        A("s_waitcnt lgkmcnt(0)")
        for k in range(2):
            for Hh in range(2):
                reg = 32 + k * 8 + Hh * 4
                A(f"ds_write_b128 v{V_WO}, v[{reg}:{reg+3}] offset:{sl*4096 + k*2048 + Hh*1024}")
        A("s_waitcnt lgkmcnt(0)")
    A("s_barrier")

class Lg:
    def __init__(self, A): self.A = A; self.n = 0; self.done = 0
    def issue(self, txt):
        self.A(txt); self.n += 1; return self.n
    def wait(self, i):
        if i <= self.done: return
        cnt = self.n - i
        assert cnt <= 15, cnt
        self.A(f"s_waitcnt lgkmcnt({cnt})"); self.done = i
    def waitall(self):
        self.wait(self.n)

def smf(d, a, b): return f"v_smfmac_f32_16x16x64_bf16 {vr(d,4)}, {vr(a,4)}, {b}, v{V_IDX}"
def mf32(d, a, b, c): return f"v_mfma_f32_16x16x32_bf16 {vr(d,4)}, {vr(a,4)}, {vr(b,4)}, {c}"
def mf16(d, a, b, c): return f"v_mfma_f32_16x16x16_bf16 {vr(d,4)}, {vr(a,2)}, {vr(b,2)}, {c}"

def check4(A, r, tmp):
    A(f"v_max3_u32 v{tmp}, v{r}, v{r+1}, v{r+2}\nv_max_u32 v{tmp}, v{tmp}, v{r+3}\nv_cmp_eq_u32 vcc, -1, v{tmp}")


def setup_regs(A):
    A(f"""
    v_lshrrev_b32 v24, 6, v0
    v_and_b32 v25, 63, v0               ; lane
    s_nop 0
    v_readfirstlane_b32 s{S_W}, v24
    v_lshlrev_b32 v{V_L16}, 4, v25      ; l16
    v_and_b32 v26, 15, v25              ; n
    v_lshrrev_b32 v27, 4, v25           ; g
    v_bfe_u32 v28, v26, 1, 1            ; hf(n)
    v_mul_u32_u24 v29, 0xAAAA, v28
    v_add_u32 v{V_IDX}, 0x4444, v29
    s_lshl_b32 s{S_T0}, s{S_W}, 10
    s_add_u32 s{S_T0}, s{S_T0}, {L_QK}
    v_lshrrev_b32 v30, 2, v26               ; n>>2
    v_xor_b32 v30, v30, v27                 ; g ^ (n>>2)
    v_lshlrev_b32 v29, 5, v26
    v_lshl_add_u32 v29, v30, 3, v29
    v_add_u32 v{V_QKW}, s{S_T0}, v29
    v_lshrrev_b32 v29, 2, v26
    v_lshl_add_u32 v29, v27, 2, v29
    v_lshlrev_b32 v29, 5, v29
    v_and_b32 v30, 3, v26
    v_xor_b32 v30, v30, v27
    v_lshl_add_u32 v29, v30, 3, v29
    v_add_u32 v{V_TR}, {L_QK}, v29
    ; OW = L_O + (w>>1)*1024 + (g*16 + n - 2)*16 + (w&1)*8
    s_lshr_b32 s{S_T0}, s{S_W}, 1
    s_lshl_b32 s{S_T0}, s{S_T0}, 10
    s_and_b32 s{S_T1}, s{S_W}, 1
    s_lshl_b32 s{S_T1}, s{S_T1}, 3
    s_add_u32 s{S_T0}, s{S_T0}, s{S_T1}
    s_add_u32 s{S_T0}, s{S_T0}, {L_O - 32}
    v_add_u32 v{V_OW}, s{S_T0}, v{V_L16}
    s_lshl_b32 s{S_T0}, s{S_W}, 3
    v_lshrrev_b32 v29, 3, v26
    v_lshl_add_u32 v29, v27, 1, v29
    v_add_u32 v29, s{S_T0}, v29
    v_lshlrev_b32 v29, 12, v29
    v_and_b32 v30, 7, v26
    v_lshl_add_u32 v29, v30, 4, v29
    s_lshl_b32 s{S_T0}, s{S_H}, 7
    v_add_u32 v{V_P1}, s{S_T0}, v29
    s_lshl_b32 s51, s{S_W}, 5
    s_add_u32 s51, s51, s{S_H}
    s_lshl_b32 s{S_T1}, s51, 12
    v_lshl_add_u32 v29, v27, 1, v28
    v_lshlrev_b32 v29, 7, v29
    v_lshrrev_b32 v30, 2, v26
    v_lshlrev_b32 v30, 1, v30
    v_and_b32 v31, 1, v26
    v_add_u32 v30, v30, v31                 ; irow(n)
    v_lshl_add_u32 v29, v30, 4, v29
    v_add_u32 v{V_RD}, s{S_T1}, v29
    v_lshrrev_b32 v29, 1, v{V_L16}
    v_add_u32 v{V_SR}, {L_S}, v29
    s_lshr_b32 s{S_T1}, s51, 3
    s_mul_i32 s{S_T1}, s{S_T1}, 768
    s_and_b32 s{S_T2}, s51, 7
    s_lshl_b32 s{S_T2}, s{S_T2}, 5
    s_add_u32 s{S_T1}, s{S_T1}, s{S_T2}
    v_bfe_u32 v29, v26, 1, 2                ; tau
    v_lshlrev_b32 v29, 8, v29
    v_lshl_add_u32 v29, v31, 4, v29
    v_lshl_add_u32 v29, v27, 2, v29
    v_add_u32 v{V_MST}, s{S_T1}, v29
    s_mul_i32 s{S_T0}, s{S_W}, 36864
    s_add_u32 s{S_T0}, s{S_T0}, {L_WO}
    v_add_u32 v{V_WO}, s{S_T0}, v{V_L16}
    v_mov_b32 v{V_ZERO}, 0
    s_mov_b32 s{S_VALID}, 0xcccccccc
    s_mov_b32 s{S_VALID+1}, 0xcccccccc
    s_mov_b32 s{S_MMASK}, 0x003f003f
    s_mov_b32 s{S_MMASK+1}, 0x003f003f
    s_lshr_b32 s{S_TAU512}, s{S_W}, 1
    s_lshl_b32 s{S_TAU512}, s{S_TAU512}, 9
    s_lshl_b32 s{S_GW}, s{S_W}, 10
    v_mov_b32 v{V_PM}, 0
    s_mov_b32 s{S_FAIL}, 0
    s_mov_b32 s{S_T4}, 0x21800000       ; 2^-60
    s_mov_b32 s{S_LHI}, 0x5f800000      ; 2^64
    """)

def init_state(A, flags=False):
    L3 = A.uid("L3")
    A(f"""
    s_mov_b32 s{S_STEP}, 0
    s_mov_b32 s{S_P1}, {WS_P1}
    s_mov_b32 s{S_MC}, {WS_M}
    s_mov_b32 s{S_MN}, {WS_M + M_SLOT}
    s_mov_b32 s{S_MT}, {WS_M + 2*M_SLOT}
    s_lshl_b32 s{S_T0}, s{S_H}, 14
    s_add_u32 s{S_KV}, s{S_T0}, {WS_KV}
    s_mov_b32 s{S_KM}, {WS_MEMS}
    s_add_u32 s{S_PF0}, s{S_KV}, {32*16384}
    s_add_u32 s{S_PF1}, s{S_PF0}, 8192
    s_cmp_eq_u32 s{S_W}, 3
    s_cmp_eq_u32 s{S_W}, 2
    s_cselect_b32 s{S_T0}, 1, 0
    s_cmp_lt_u32 s{S_H}, 9
    s_cselect_b32 s{S_T1}, s{S_T0}, 0
    s_cselect_b32 s{S_MCH}, s{S_H}, 0
    s_and_b32 s{S_T1}, s{S_T1}, {1 if flags else 0}
    s_lshl_b32 s{S_MCH}, s{S_MCH}, 10
    s_mov_b32 s{S_MP1}, s{S_T1}
    s_mov_b32 s{S_MP1+1}, 0
    s_sub_u32 s{S_MP}, 0, s{S_T1}
    s_mov_b32 s{S_MP+1}, s{S_MP}
    s_cmp_eq_u32 s{S_W}, 3
    s_cselect_b32 s{S_WV}, 1, s{S_T1}
    s_add_u32 s{S_KMC}, s{S_KM}, s{S_MCH}
    s_mov_b32 s{S_CFV}, s7
    s_add_u32 s{S_MC6}, s{S_MC}, 6144
    s_lshl_b32 s{S_T0}, s{S_TAU512}, 3
    s_add_u32 s{S_KXO}, s{S_T0}, s{S_KV}
    s_lshl_b32 s{S_T0}, s{S_W}, 11
    s_add_u32 s{S_T0}, s{S_T0}, s{S_KV}
    s_add_u32 s{S_VXO}, s{S_T0}, 8192
    s_mov_b32 s{S_T3}, {f32bits(QSCALE):#x}
    s_mov_b32 s{S_SPIN}, {SPIN_MAX}
    s_mov_b32 s{S_ONES}, 0x3f803f80
    s_mov_b32 s{S_ONES+1}, 0x3f803f80
    s_mov_b32 s{S_SELO}, {WS_SEL}
    v_add_u32 v{V_PM}, s{S_GW}, v{V_L16}
    s_cmp_eq_u32 s{S_W}, 3
    s_cbranch_scc0 {L3}
    v_lshlrev_b32 v{V_PF}, 3, v{V_L16}
    {L3}:
    """)
    ws = f"s[{SRD_WS}:{SRD_WS+3}]"
    for c in range(4): A(f"buffer_load_dwordx4 {vr(KX(c),4)}, v{V_L16}, {ws}, s{S_KXO} offen offset:{c*1024}")
    for et in range(2): A(f"buffer_load_dwordx4 {vr([V_VX0,V_VX1][et],4)}, v{V_L16}, {ws}, s{S_VXO} offen offset:{et*1024}")
    A("s_waitcnt vmcnt(0)")
    for b in (V_AQ, V_AK):
        for i in range(4): A(f"v_mov_b64 {vr(b+2*i,2)}, 0")

def housekeeping():
    return [
      f"s_xor_b32 s{S_P1}, s{S_P1}, {P1_SLOT}",
      f"s_mov_b32 s{S_T0}, s{S_MC}", f"s_mov_b32 s{S_MC}, s{S_MN}", f"s_mov_b32 s{S_MN}, s{S_MT}", f"s_mov_b32 s{S_MT}, s{S_T0}",
      f"s_add_u32 s{S_KV}, s{S_KV}, {32*16384}", f"s_add_u32 s{S_KM}, s{S_KM}, 16384",
      f"s_add_u32 s{S_STEP}, s{S_STEP}, 1", f"s_add_u32 s{S_TAG}, s{S_TAG}, 1", f"s_add_u32 s{S_TAG4}, s{S_TAG4}, 4",
      f"s_add_u32 s{S_MC6}, s{S_MC}, 6144", f"s_add_u32 s{S_KMC}, s{S_KMC}, 16384", f"s_add_u32 s{S_CFV}, s{S_CFV}, 1",
      f"s_add_u32 s{S_KXO}, s{S_KXO}, {32*16384}", f"s_add_u32 s{S_VXO}, s{S_VXO}, {32*16384}",
    ]


def chain_step(A, st, prof=False, nsteps=64, opt=()):
    ws = f"s[{SRD_WS}:{SRD_WS+3}]"
    CUTL = A.uid("CUT")
    def stamp(name):
        name = str(name)
        if CUT == name: A(f"s_memtime s[72:73]\ns_branch {CUTL}")
        if not prof or name not in STAMPS: return
        i = STAMPS.index(name)
        if "abs" in opt: A(f"s_memrealtime s[{70+2*i}:{71+2*i}]")
        else: A(f"s_memtime s[{70+2*i}:{71+2*i}]")
    def stamp_acc():
        if not prof: return
        A("s_waitcnt lgkmcnt(0)")
        if "abs" in opt:
            A(f"s_cmp_eq_u32 s{S_STEP}, 31")
            for i in range(len(STAMPS)): A(f"s_cselect_b32 s{PROF0+i}, s{70+2*i}, s{PROF0+i}")
            return
        prev = 48
        for i in range(len(STAMPS)):
            A(f"s_sub_u32 s52, s{70+2*i}, s{prev}\ns_add_u32 s{PROF0+i}, s{PROF0+i}, s52")
            prev = 70+2*i
        A(f"s_mov_b32 s48, s{70+2*(len(STAMPS)-1)}")
    STEP = A.uid("STEP"); FAIL = A.uid("FAIL"); DONE = A.uid("DONE"); JOIN = A.uid("JOIN"); FINAL = A.uid("FINAL")
    GA, GB, GC, GC2 = 24, 28, 48, 52
    TMP = 14
    def spin(extra=""):
        A(f"s_sub_u32 s{S_SPIN}, s{S_SPIN}, 1\ns_cbranch_scc1 {FAIL}")
        if prof and extra: A(f"s_add_u32 {extra}, {extra}, 1")
    def chk(r, lab, neg=False):
        A(f"v_max3_u32 v{TMP}, v{r}, v{r+1}, v{r+2}\nv_max_u32 v{TMP}, v{TMP}, v{r+3}\nv_cmp_eq_u32 vcc, -1, v{TMP}\n{'s_cbranch_vccz' if neg else 's_cbranch_vccnz'} {lab}")
    def ld(r, which):
        so, off = [(S_MC, 0), (S_MC, 3072), (S_MC6, 0)][which]
        return f"buffer_load_dwordx4 {vr(r,4)}, v{V_PM}, {ws}, s{so} offen offset:{off} sc1"
    def wr(r, which): return f"ds_write_b128 v{V_PM}, {vr(r,4)} offset:{L_MEM + 3072*which}"

    P0, P1, GOK = A.uid("P0"), A.uid("P1"), A.uid("GOK")
    A.label(STEP)
    A(f"s_cmp_eq_u32 s{S_W}, 3\ns_cbranch_scc1 {JOIN}")
    S1 = (64, 68, 72); S2 = (48, 52, 76)
    def lds3(S): return "\n".join(ld(S[i], i) for i in range(3))
    def wrs3(S): return "\n".join(wr(S[i], i) for i in range(3))
    def chk3(S, lab, neg=False):
        regs = [S[i]+j for i in range(3) for j in range(4)]
        A(f"v_max3_u32 v{TMP}, v{regs[0]}, v{regs[1]}, v{regs[2]}")
        for j in range(3, 11, 2): A(f"v_max3_u32 v{TMP}, v{regs[j]}, v{regs[j+1]}, v{TMP}")
        A(f"v_max_u32 v{TMP}, v{regs[11]}, v{TMP}\nv_cmp_eq_u32 vcc, -1, v{TMP}\n{'s_cbranch_vccz' if neg else 's_cbranch_vccnz'} {lab}")
    if GMODE == 0:
        A(lds3(S1))
        if PGAP: A(f"s_sleep {PGAP}")
        A.label(P0)
        A(lds3(S2))
        A("s_waitcnt vmcnt(3)")
        A(wrs3(S1))
        chk3(S1, GOK, neg=True)
        spin("s99")
        A(lds3(S1))
        A("s_waitcnt vmcnt(3)")
        A(wrs3(S2))
        chk3(S2, P0)
    else:
        GA, GB, GC, GC2 = 64, 68, 72, 76
        CK, AB = A.uid("CK"), A.uid("AB")
        A(ld(GA,0)); A(ld(GB,1)); A(ld(GC,2))
        A.label(P0)
        A(ld(GC2,2))
        A("s_waitcnt vmcnt(1)")
        A(wr(GC,2))
        chk(GC, CK, neg=True)
        spin("s99")
        A(ld(GC,2))
        A("s_waitcnt vmcnt(1)")
        A(wr(GC2,2))
        chk(GC2, P0)
        A.label(CK)
        A(wr(GA,0)); A(wr(GB,1))
        A(f"v_max3_u32 v{TMP}, v{GA}, v{GA+1}, v{GA+2}\nv_max3_u32 v{TMP}, v{GA+3}, v{GB}, v{TMP}\nv_max3_u32 v{TMP}, v{GB+1}, v{GB+2}, v{TMP}\nv_max_u32 v{TMP}, v{TMP}, v{GB+3}\nv_cmp_eq_u32 vcc, -1, v{TMP}")
        A(f"s_cbranch_vccz {GOK}")
        spin("s100")
        A(ld(GA,0)); A(ld(GB,1)); A(f"s_waitcnt vmcnt(0)\ns_branch {CK}")
    A.label(GOK)
    A("s_waitcnt lgkmcnt(0)")
    A.label(JOIN)
    stamp(0)
    A("s_barrier")
    if CUT: A("s_memtime s[70:71]")
    L = Lg(A)
    Q, K, V = 0, 1, 2
    order = [(Q,c) for c in range(9)] + [(V,c) for c in range(9)] + [(K,c) for c in range(9)]
    rid = {}; nxt = [0]
    def rd():
        i = nxt[0]
        if i >= len(order): return False
        rid[i] = L.issue(f"ds_read_b128 {vr(V_R + 4*(i%NRING), 4)}, v{V_L16} offset:{L_MEM + order[i][1]*1024}")
        nxt[0] += 1
        return True
    ACCS = [V_AQ, V_AK2, V_AVX]
    def item(i, f1=(), f2=()):
        mat, c = order[i]
        L.wait(rid[i])
        skip = ("noV" in opt and mat == 2) or ("noQ" in opt and mat == 0) or ("noK" in opt and mat == 1)
        if not skip: A(smf(ACCS[mat], V_R + 4*(i%NRING), wfrag(mat,0,c)))
        for x in f1: A(x)
        if not skip: A(smf(ACCS[mat]+4, V_R + 4*(i%NRING), wfrag(mat,1,c)))
        while nxt[0] < i + 1 + NRING and rd(): pass
        for x in f2: A(x)
    if "flags" in opt:
        A(f"s_cmp_eq_u32 s{S_STEP}, {nsteps-1}\ns_cbranch_scc1 {FINAL}")
    for _ in range(NRING): rd()
    npf = 0 if "nopf" in opt else 1
    PF3, PF3b = A.uid("PF3"), A.uid("PF3b")
    kvl = [f"buffer_load_dwordx4 {vr(KX(c),4)}, v{V_L16}, {ws}, s{S_KXO} offen offset:{c*1024}" for c in range(4)] + \
          [f"buffer_load_dwordx4 {vr([V_VX0,V_VX1][et],4)}, v{V_L16}, {ws}, s{S_VXO} offen offset:{et*1024}" for et in range(2)]
    for i in range(0, 9): item(i, (), [kvl[i//2]] if i % 2 == 0 else ())
    stamp(1)
    qfold = []
    for t in range(2):
        b = V_AQ + 4*t
        qfold += [f"v_add_f32 v{b}, v{b}, v{b+2}", f"v_add_f32 v{b+1}, v{b+1}, v{b+3}",
                  f"v_mul_f32 v{b}, s{S_T3}, v{b}", f"v_mul_f32 v{b+1}, s{S_T3}, v{b+1}",
                  f"v_cvt_pk_bf16_f32 v{V_SX+t}, v{b}, v{b+1}"]
    M3 = f"s_mov_b64 exec, s[{S_M3}:{S_M3+1}]"; MALL = "s_mov_b64 exec, -1"
    pf = []; pub1 = []; pub2 = []
    if npf:
        pf = [M3, f"buffer_load_dword v{V_PF+1}, v{V_PF}, {ws}, s{S_PF0} offen", f"buffer_load_dword v{V_PF+1}, v{V_PF}, {ws}, s{S_PF1} offen"]
        if "flags" in opt: pf += [f"buffer_load_dword v{V_PF+1}, v{V_ZERO}, {ws}, s{S_PFA} offen sc1"]
        pf += [MALL]
    item(9); item(10, (), [kvl[5], qfold[0]])
    mrd = None
    if "flags" in opt:
        A(f"s_waitcnt vmcnt(6)\nv_add_u32 v{V_PM}, s{S_MCH}, v{V_L16}")
        mrd = L.issue(f"ds_read_b128 {vr(V_F23,4)}, v{V_PM} offset:{L_MEM}")
    item(11, qfold[1:3], qfold[3:5]); item(12, qfold[5:7], qfold[7:9]); item(13, qfold[9:10])
    qw = L.issue(f"ds_write2_b32 v{V_QKW}, v{V_SX}, v{V_SX+1} offset0:1 offset1:129")
    PUBL, PUBb = A.uid("PUBL"), A.uid("PUBb")
    if "flags" in opt:
        L.wait(mrd)
        A(f"s_cmp_lg_u32 s{S_MP}, 0\ns_cbranch_scc1 {PUBL}")
        A.label(PUBb)
    item(14)
    if npf:
        A(f"s_cmp_eq_u32 s{S_W}, 3\ns_cbranch_scc1 {PF3}")
        A.label(PF3b)
    item(15)
    W2, W2b = A.uid("W2"), A.uid("W2b")
    A(f"s_cmp_lg_u32 s{S_WV}, 0\ns_cbranch_scc1 {W2}\ns_waitcnt vmcnt(0)")
    A.label(W2b)
    L.wait(qw)
    A("s_barrier")
    fr = {}
    f2k = [(cc,Hh) for cc in range(4) for Hh in range(2)]
    f1 = [f"ds_read_b64_tr_b16 {vr(F(cc)+2*Hh,2)}, v{V_TR} offset:{cc*1024 + Hh*512}" for cc, Hh in f2k]
    for j in range(8): fr[f2k[j]] = L.issue(f1[j])
    item(16); item(17)
    stamp(3)
    AV = V_AVX
    L.wait(fr[(1,1)])
    A(mf32(V_SX, KX(0), F(0), "0"))
    A(mf32(V_SX, KX(1), F(1), vr(V_SX,4)))
    L.wait(fr[(3,1)])
    A(mf32(V_SX, KX(2), F(2), vr(V_SX,4)))
    A(mf32(V_SX, KX(3), F(3), vr(V_SX,4)))
    for i in range(4): A(f"v_mov_b64 {vr(V_AK2+2*i,2)}, 0")
    A(f"v_add_u32 v{V_PM}, s{S_TAU512}, v{V_SR}")
    stamp("sx")
    vfold = []
    for b in (AV, AV+4):
        vfold += [f"v_add_f32 v{b}, v{b}, v{b+2}", f"v_add_f32 v{b+1}, v{b+1}, v{b+3}", f"v_cvt_pk_bf16_f32 v{b}, v{b}, v{b+1}", f"v_mov_b32 v{b+1}, 0"]
    exo = [f"v_exp_f32 v{V_SX+r}, v{V_SX+r}" for r in range(4)]
    item(18, (), exo[0:1]); item(19, exo[1:2], exo[2:3]); item(20, exo[3:4], vfold[0:1])
    A(f"v_cvt_pk_bf16_f32 v{V_SX}, v{V_SX}, v{V_SX+1}\nv_cvt_pk_bf16_f32 v{V_SX+1}, v{V_SX+2}, v{V_SX+3}")
    sw = L.issue(f"ds_write_b64 v{V_PM}, {vr(V_SX,2)}")
    ones = [f"v_mov_b64 {vr(V_ONES,2)}, s[{S_ONES}:{S_ONES+1}]", f"v_mov_b64 {vr(V_ONES+2,2)}, s[{S_ONES}:{S_ONES+1}]"]
    item(21, vfold[1:2], vfold[2:3]); item(22, vfold[3:4], vfold[4:5])
    L.wait(sw)
    A("s_barrier")
    s0 = L.issue(f"ds_read2_b64 {vr(V_S0,4)}, v{V_SR} offset0:0 offset1:64")
    stamp(4)
    item(23, vfold[5:6], vfold[6:7]); item(24, vfold[7:8], ones[0:1]); item(25, ones[1:2])
    L.wait(s0)
    item(26)
    NF = 18
    WB = [V_KA, V_R, V_R+8, V_KB, V_AK, V_AQ]
    NB = len(WB)
    wf = {}
    def wrd(f):
        if "noWrd" in opt:
            wf[f] = L.n; return
        if f < NF:
            sl, k = divmod(f, 2)
            L.issue(f"ds_read_b128 {vr(WB[f%NB],4)}, v{V_WO} offset:{sl*4096 + k*2048}")
            wf[f] = L.issue(f"ds_read_b128 {vr(WB[f%NB]+4,4)}, v{V_WO} offset:{sl*4096 + k*2048 + 1024}")
    A(mf32(F(2), V_ONES, V_S0, "0"))
    A(mf32(F(0), V_VX0, V_S0, "0"))
    A(mf32(F(1), V_VX1, V_S0, "0"))
    A("s_nop 3")
    stamp(5)
    for t in range(2):
        b = V_AK2 + 4*t
        A(f"v_pk_add_f32 {vr(b,2)}, {vr(b,2)}, {vr(b+2,2)}")
    for t in range(2):
        b = V_AK2 + 4*t
        A(f"v_cvt_pk_bf16_f32 v{V_SX+2+t}, v{b}, v{b+1}")
    kw = L.issue(f"ds_write2_b32 v{V_QKW}, v{V_SX+2}, v{V_SX+3} offset0:0 offset1:128")
    A(f"v_mov_b32 v{V_SX}, s{S_LHI}")
    L.wait(kw)
    A("s_barrier")
    fr2 = {}
    for cc, Hh in f2k: fr2[(cc,Hh)] = L.issue(f"ds_read_b64_tr_b16 {vr(V_F2+4*cc+2*Hh,2)}, v{V_TR} offset:{cc*1024 + Hh*512}")
    wrd(0)
    stamp("kb")
    sm = V_SM
    L.wait(fr2[(0,1)])
    A(mf32(sm, V_F2, V_F2, "0"))
    L.wait(fr2[(1,1)])
    A(mf32(sm, V_F2+4, V_F2+4, vr(sm,4)))
    L.wait(fr2[(2,1)])
    A(mf32(sm, V_F2+8, V_F2+8, vr(sm,4)))
    L.wait(fr2[(3,1)])
    A(mf32(sm, V_F2+12, V_F2+12, vr(sm,4)))
    wrd(1); wrd(2)
    A("s_nop 3")
    A(f"v_exp_f32 v{sm}, v{sm}\nv_exp_f32 v{sm+1}, v{sm+1}\ns_nop 0")
    A(f"v_cvt_pk_bf16_f32 v{V_PM}, v{sm}, v{sm+1}\ns_nop 1")
    A(mf16(F(2), V_ONES, V_PM, vr(F(2),4)))
    A(mf16(F(0), AV, V_PM, vr(F(0),4)))
    A(mf16(F(1), AV+4, V_PM, vr(F(1),4)))
    wrd(3)
    stamp("pvm0")
    A("s_nop 3")
    A(f"v_med3_f32 v{V_SX}, v{F(2)}, s{S_T4}, v{V_SX}")
    A(f"v_cmp_neq_f32 vcc, v{V_SX}, v{F(2)}")
    A(f"v_rcp_f32 v{V_SX}, v{F(2)}")
    A(f"s_and_b64 vcc, vcc, s[{S_VALID}:{S_VALID+1}]")
    SLOW = A.uid("SLOW"); BACK = A.uid("BACK"); LAST = A.uid("LAST")
    A(f"s_cbranch_vccnz {SLOW}")
    A.label(BACK)
    stamp("pvm")
    A(f"s_cmp_eq_u32 s{S_STEP}, {nsteps-1}\ns_cbranch_scc1 {LAST}")
    A("s_nop 0")
    stamp("n1")
    if "x32" in opt:
        for i in range(32): A(f"v_mov_b32 v{V_PM}, v{V_ZERO}")
    if "w64" in opt: A("s_nop 15")
    if "nopk" not in opt:
        for r in (0, 2): A(f"v_pk_mul_f32 {vr(F(0)+r,2)}, {vr(F(0)+r,2)}, {vr(V_SX,2)} op_sel_hi:[1,0]")
    for r in range(4):
        if "nomul" not in opt and "nopk" in opt: A(f"v_mul_f32 v{F(0)+r}, v{F(0)+r}, v{V_SX}")
    stamp("n2")
    A(f"v_cvt_pk_bf16_f32 v{F(0)}, v{F(0)}, v{F(0)+1}\nv_cvt_pk_bf16_f32 v{F(0)+1}, v{F(0)+2}, v{F(0)+3}")
    stamp("n3")
    if "nopk" not in opt:
        for r in (0, 2): A(f"v_pk_mul_f32 {vr(F(1)+r,2)}, {vr(F(1)+r,2)}, {vr(V_SX,2)} op_sel_hi:[1,0]")
    for r in range(4):
        if "nomul" not in opt and "nopk" in opt: A(f"v_mul_f32 v{F(1)+r}, v{F(1)+r}, v{V_SX}")
    stamp("n4")
    A(f"v_cvt_pk_bf16_f32 v{F(1)}, v{F(1)}, v{F(1)+1}\nv_cvt_pk_bf16_f32 v{F(1)+1}, v{F(1)+2}, v{F(1)+3}")
    stamp("n5")
    A(f"s_mov_b64 exec, s[{S_VALID}:{S_VALID+1}]")
    ow = L.issue(f"ds_write2_b64 v{V_OW}, {vr(F(0),2)}, {vr(F(1),2)} offset0:0 offset1:4")
    A("s_mov_b64 exec, -1")
    stamp(6)
    ACC = [V_VX0, V_VX1]
    for a in ACC:
        A(f"v_mov_b64 {vr(a,2)}, 0\nv_mov_b64 {vr(a+2,2)}, 0")
    A(f"v_mov_b32 v{V_OUT+3}, s{S_TAG}")
    stamp("o1")
    L.wait(ow)
    stamp("o2")
    A("s_barrier")
    stamp("o3")
    o0 = L.issue(f"ds_read_b128 {vr(V_F23,4)}, v{V_L16} offset:{L_O}")
    o1 = L.issue(f"ds_read_b128 {vr(V_F23+4,4)}, v{V_L16} offset:{L_O+1024}")
    wrd(4); wrd(5)
    stamp("o4")
    stamp("o5")
    stamp("o6")
    L.wait(o1)
    stamp(7)
    NT = 9
    NA = len(ACC)
    def epi(sl):
        a = ACC[sl % NA]; tau = sl % 3
        q = [f"v_add_f32 v{a}, v{a}, v{a+2}", f"v_add_f32 v{a+1}, v{a+1}, v{a+3}", f"v_cvt_pk_bf16_f32 v{V_OUT+tau}, v{a}, v{a+1}"]
        if sl < NT - NA: q += [f"v_mov_b64 {vr(a,2)}, 0", f"v_mov_b64 {vr(a+2,2)}, 0"]
        if tau == 2:
            sg = sl // 3
            q += [f"s_add_u32 s{S_T0}, s{S_P1}, {sg*131072}", f"buffer_store_dwordx4 {vr(V_OUT,4)}, v{V_P1}, {ws}, s{S_T0} offen {st}"]
        return q
    rq = []
    for f in range(NB, NF): rq += [(f, 0), (f, 1)]
    free_after = {f: (f - NB) for f in range(NB, NF)}
    issued = set(range(NB))
    done_sm = set()
    def pump(n):
        k = 0
        while rq and k < n and (free_after[rq[0][0]] in done_sm):
            f, h = rq.pop(0)
            sl_, kk = divmod(f, 2)
            i_ = L.issue(f"ds_read_b128 {vr(WB[f%NB]+4*h,4)}, v{V_WO} offset:{sl_*4096 + kk*2048 + h*1024}")
            if h == 1: wf[f] = i_
            k += 1
        return k
    for sl in range(NT):
        if sl in (3, 6): stamp(f"wo{sl}")
        pend = epi(sl - 1) if sl >= 1 else []
        while (2*sl+1) not in wf: pump(1)
        L.wait(wf[2*sl+1])
        budget = WOP[sl]
        for k in range(2):
            f = 2*sl + k
            if "noWo" not in opt: A(smf(ACC[sl%NA], V_F23 + 4*k, vr(WB[f%NB], 8)))
            done_sm.add(f)
            n = pump(min(2, budget)); budget -= n
            if k == 0 and pend:
                fill = (3 if sl == 1 else 0) + max(0, 2 - n)
                if sl == 1: A("s_nop 3")
                elif n < 2: A(f"s_nop {1 - n}") if n < 2 else None
            if pend: A(pend.pop(0))
        for x in pend: A(x)
        if sl >= 1 and sl < NT - NA + 1: A("s_nop 0")
    A("s_nop 6")
    for x in epi(NT-1): A(x)
    stamp(8)
    hk = housekeeping()
    if "fixkv" in opt: hk = [x for x in hk if f"s{S_KXO}," not in x and f"s{S_VXO}," not in x]
    zero = [f"v_mov_b64 {vr(b+2*i,2)}, 0" for b in (V_AQ, V_AK) for i in range(4)]
    NR = A.uid("NR"); R0 = A.uid("R0"); R1 = A.uid("R1"); RB = A.uid("RB"); RW3 = A.uid("RW3")
    SEL = V_F23
    A(f"s_cmp_eq_u32 s{S_W}, 3\ns_cbranch_scc1 {RW3}")
    A(f"s_mov_b32 s{S_T1}, s{S_P1}\ns_mov_b32 s{S_T2}, s{S_MN}\ns_mov_b32 s53, s{S_MC}\ns_mov_b32 s41, s{S_TAG4}")
    A(f"buffer_load_dwordx4 {vr(SEL,4)}, v{V_L16}, {ws}, s{S_SELO} offen")
    zeroq = [f"v_mov_b64 {vr(V_AQ+2*i,2)}, 0" for i in range(4)]
    zerok = [f"v_mov_b64 {vr(V_AK+2*i,2)}, 0" for i in range(4)]
    for x in hk + zeroq: A(x)
    d0, d1, d2 = DELAYS
    if d0: A(f"s_sleep {d0}")
    A(f"s_cmp_eq_u32 s{S_W}, 0\ns_cbranch_scc1 {R0}")
    if d1: A(f"s_sleep {d1}")
    A(f"s_cmp_eq_u32 s{S_W}, 1\ns_cbranch_scc1 {R0}")
    if d2: A(f"s_sleep {d2}")
    A.label(R0)
    stamp(11)
    BX, BY = V_R, V_KA
    def rl(B): return [f"buffer_load_dwordx4 {vr(B+4*q,4)}, v{V_RD}, {ws}, s{S_T1} offen offset:{q*1024} sc1" for q in range(4)]
    def proc(B, young=4):
        for q in range(4):
            A(f"s_waitcnt vmcnt({young + 3 - q})")
            A(mf32(V_SX, B+4*q, SEL, "0" if q == 0 else vr(V_SX,4)))
        A(f"v_add3_u32 v{V_PM}, v{B+3}, v{B+7}, v{B+11}\nv_add_u32 v{V_PM}, v{V_PM}, v{B+15}\nv_cmp_ne_u32 vcc, s41, v{V_PM}")
    FIN = A.uid("FIN")
    if RGAP >= 50:
        for x in rl(BX): A(x)
        for x in zerok: A(x)
        A.label(RB)
        proc(BX, 0)
        A(f"s_cbranch_vccz {FIN}")
        spin("s98")
        for x in rl(BX): A(x)
        A(f"s_branch {RB}")
    else:
        for x in rl(BX): A(x)
        for x in zerok: A(x)
        if RGAP: A(f"s_sleep {RGAP}")
        for x in rl(BY): A(x)
        proc(BX, 4)
        A(f"s_cbranch_vccz {FIN}")
        A.label(RB)
        spin("s98")
        for x in rl(BX): A(x)
        proc(BY)
        A(f"s_cbranch_vccz {FIN}")
        spin("s98")
        for x in rl(BY): A(x)
        proc(BX)
        A(f"s_cbranch_vccnz {RB}")
        A("s_nop 0")
    A.label(FIN)
    stamp(12)
    A(f"v_mov_b32 v{V_PM}, -1\ns_mov_b64 exec, s[{S_MMASK}:{S_MMASK+1}]\ns_nop 1")
    A(f"v_add_f32 v{V_SX}, v{V_SX}, v{V_SX+2}\nv_add_f32 v{V_SX+1}, v{V_SX+1}, v{V_SX+3}\nv_cvt_pk_bf16_f32 v{V_SX}, v{V_SX}, v{V_SX+1}")
    A(f"buffer_store_dword v{V_SX}, v{V_MST}, {ws}, s{S_T2} offen {st}")
    A(f"buffer_store_dword v{V_PM}, v{V_MST}, {ws}, s53 offen {st}")
    A("s_mov_b64 exec, -1")
    if G01:
        NG01 = A.uid("NG")
        A(f"s_cmp_eq_u32 s{S_W}, 2\ns_cbranch_scc1 {NR}\ns_sleep {G01}")
    A.label(NR)
    A(f"v_add_u32 v{V_PM}, s{S_GW}, v{V_L16}")
    stamp(13)
    stamp_acc()
    A(f"s_mov_b32 s{S_SPIN}, {SPIN_MAX}")
    A(f"s_branch {STEP}")
    A.label(RW3)
    for x in hk + zeroq + zerok: A(x)
    if "flags" in opt:
        A(f"s_waitcnt vmcnt(3)")
        PW, PK = A.uid("PW"), A.uid("PK")
        A(f"s_cmp_lt_u32 s{S_STEP}, 62\ns_cbranch_scc0 {PK}")
        A.label(PW)
        A(f"v_readfirstlane_b32 s{S_T1}, v{V_PF+1}")
        A(f"s_sub_u32 s{S_T1}, s{S_T1}, s7\ns_sub_u32 s{S_T1}, s{S_T1}, 1\ns_cmp_lt_u32 s{S_T1}, 16\ns_cbranch_scc0 {PW}n\ns_cmp_ge_u32 s{S_T1}, s{S_PKK}\ns_cbranch_scc1 {PK}")
        A.label(PW + "n")
        spin()
        A(f"s_sleep 8\nbuffer_load_dword v{V_PF+1}, v{V_ZERO}, {ws}, s{S_PFA} offen sc1\ns_waitcnt vmcnt(0)\ns_branch {PW}")
        A.label(PK)
        A(f"s_add_u32 s{S_PRHO}, s{S_PRHO}, 1\ns_cmp_eq_u32 s{S_PRHO}, 7\ns_cselect_b32 s{S_T0}, 1, 0\ns_cselect_b32 s{S_PRHO}, 0, s{S_PRHO}\ns_add_u32 s{S_PKK}, s{S_PKK}, s{S_T0}")
        A(f"s_lshl_b32 s{S_PFA}, s{S_PRHO}, 2\ns_add_u32 s{S_PFA}, s{S_PFA}, s{S_PFO}")
    A(f"s_add_u32 s{S_PF0}, s{S_KV}, {32*16384}\ns_add_u32 s{S_PF1}, s{S_PF0}, 8192")
    stamp(11); stamp(12)
    A(f"s_branch {NR}")
    if "flags" in opt:
        A.label(PUBL)
        A(f"s_mov_b64 exec, 1\nv_mov_b32 v{V_PM}, s{S_CFV}\nbuffer_store_dword v{V_PM}, v{V_ZERO}, {ws}, s{S_CFO} offen sc1\ns_mov_b64 exec, -1")
        A(f"buffer_store_dwordx4 {vr(V_F23,4)}, v{V_L16}, {ws}, s{S_KMC} offen sc1\ns_branch {PUBb}")
    if npf:
        A.label(PF3)
        A(f"buffer_load_dword v{V_PF+1}, v{V_PF}, {ws}, s{S_PF0} offen\nbuffer_load_dword v{V_PF+1}, v{V_PF}, {ws}, s{S_PF1} offen")
        if "flags" in opt: A(f"buffer_load_dword v{V_PF+1}, v{V_ZERO}, {ws}, s{S_PFA} offen sc1")
        A(f"s_branch {PF3b}")
    A.label(W2)
    if "flags" in opt:
        A(f"s_cmp_eq_u32 s{S_W}, 3\ns_cbranch_scc0 {W2}m\ns_waitcnt vmcnt({2*npf + 1})\ns_branch {W2b}")
        A.label(W2 + "m"); A(f"s_waitcnt vmcnt(2)\ns_branch {W2b}")
    else:
        A(f"s_waitcnt vmcnt({2*npf})\ns_branch {W2b}")
    A.label(SLOW)
    L2 = Lg(A)
    A("s_nop 7")
    for cc in range(4):
        for Hh in range(2):
            L2.issue(f"ds_read_b64_tr_b16 {vr(F(cc)+2*Hh,2)}, v{V_TR} offset:{cc*1024 + Hh*512}")
    T0r, T1r = V_S0, V_SX
    for tau in range(2):
        A(f"s_add_u32 s{S_T0}, s{S_KV}, {tau*4096}")
        for c in range(4): A(f"buffer_load_dwordx4 {vr(V_R+4*c,4)}, v{V_L16}, {ws}, s{S_T0} offen offset:{c*1024}")
        A("s_waitcnt vmcnt(0) lgkmcnt(0)")
        d = [T0r, T1r][tau]
        for c in range(4): A(mf32(d, V_R+4*c, F(c), "0" if c == 0 else vr(d,4)))
        A("s_nop 7")
    for c in range(4):
        A(mf32(sm, F(c), F(c), "0" if c == 0 else vr(sm,4)))
    A("s_nop 7\ns_nop 1")
    a0, a1 = T0r, T1r
    A(f"v_max3_f32 v{V_PM}, v{a0}, v{a0+1}, v{a0+2}")
    A(f"v_max3_f32 v{V_PM}, v{a0+3}, v{a1}, v{V_PM}")
    A(f"v_max3_f32 v{V_PM}, v{a1+1}, v{a1+2}, v{V_PM}")
    A(f"v_max3_f32 v{V_PM}, v{a1+3}, v{sm}, v{V_PM}")
    A(f"v_max_f32 v{V_PM}, v{sm+1}, v{V_PM}")
    t = F(3)
    A(f"v_mov_b32 v{t}, v{V_PM}\ns_nop 1\nv_permlane32_swap_b32 v{t}, v{V_PM}\ns_nop 1\nv_max_f32 v{V_PM}, v{V_PM}, v{t}")
    A(f"v_mov_b32 v{t}, v{V_PM}\ns_nop 1\nv_permlane16_swap_b32 v{t}, v{V_PM}\ns_nop 1\nv_max_f32 v{V_PM}, v{V_PM}, v{t}")
    rs = list(range(a0, a0+4)) + list(range(a1, a1+4)) + [sm, sm+1]
    for r in rs: A(f"v_sub_f32 v{r}, v{r}, v{V_PM}")
    for r in rs: A(f"v_exp_f32 v{r}, v{r}")
    A("s_nop 0")
    A(f"v_cvt_pk_bf16_f32 v{a0}, v{a0}, v{a0+1}\nv_cvt_pk_bf16_f32 v{a0+1}, v{a0+2}, v{a0+3}")
    A(f"v_cvt_pk_bf16_f32 v{a0+2}, v{a1}, v{a1+1}\nv_cvt_pk_bf16_f32 v{a0+3}, v{a1+2}, v{a1+3}")
    A(f"v_cvt_pk_bf16_f32 v{V_PM}, v{sm}, v{sm+1}")
    A(f"v_mov_b64 {vr(V_ONES,2)}, s[{S_ONES}:{S_ONES+1}]\nv_mov_b64 {vr(V_ONES+2,2)}, s[{S_ONES}:{S_ONES+1}]\ns_nop 1")
    A(mf32(F(0), V_VX0, V_S0, "0"))
    A(mf32(F(1), V_VX1, V_S0, "0"))
    A(mf32(F(2), V_ONES, V_S0, "0"))
    A("s_nop 7")
    A(mf16(F(2), V_ONES, V_PM, vr(F(2),4)))
    A(mf16(F(0), AV, V_PM, vr(F(0),4)))
    A(mf16(F(1), AV+4, V_PM, vr(F(1),4)))
    for f in range(4):
        sl, k = divmod(f, 2)
        A(f"ds_read_b128 {vr(WB[f],4)}, v{V_WO} offset:{sl*4096 + k*2048}\nds_read_b128 {vr(WB[f]+4,4)}, v{V_WO} offset:{sl*4096 + k*2048 + 1024}")
    A("s_waitcnt lgkmcnt(0)\ns_nop 7")
    A(f"v_rcp_f32 v{V_SX}, v{F(2)}")
    A(f"s_branch {BACK}")
    A.label(LAST)
    A(f"s_branch {DONE}")
    if "flags" in opt:
        A.label(FINAL)
        A(f"s_cmp_lg_u32 s{S_MP}, 0\ns_cbranch_scc0 {DONE}")
        A(f"s_lshl_b32 s{S_T0}, s{S_H}, 10\nv_add_u32 v{V_PM}, s{S_T0}, v{V_L16}\nds_read_b128 {vr(V_F23,4)}, v{V_PM} offset:{L_MEM}")
        A(f"s_add_u32 s{S_T0}, s{S_T0}, s{S_KM}\ns_waitcnt lgkmcnt(0)")
        A(f"buffer_store_dwordx4 {vr(V_F23,4)}, v{V_L16}, {ws}, s{S_T0} offen sc1\ns_waitcnt vmcnt(0)")
        A(f"s_add_u32 s{S_T0}, s7, {nsteps}\nv_mov_b32 v{V_PM}, s{S_T0}\ns_mov_b64 exec, 1")
        A(f"buffer_store_dword v{V_PM}, v{V_ZERO}, {ws}, s{S_CFO} offen sc1\ns_mov_b64 exec, -1")
        A(f"s_branch {DONE}")
    if CUT:
        A.label(CUTL)
        A(f"s_mov_b64 exec, -1\ns_waitcnt vmcnt(0) lgkmcnt(0)\ns_nop 7\ns_sub_u32 s72, s72, s70\ns_add_u32 s86, s86, s72")
        for b in (V_AQ, V_AK):
            for i in range(4): A(f"v_mov_b64 {vr(b+2*i,2)}, 0")
        for c in range(4): A(f"buffer_load_dwordx4 {vr(KX(c),4)}, v{V_L16}, {ws}, s{S_KXO} offen offset:{c*1024}")
        for et in range(2): A(f"buffer_load_dwordx4 {vr([V_VX0,V_VX1][et],4)}, v{V_L16}, {ws}, s{S_VXO} offen offset:{et*1024}")
        A(f"s_waitcnt vmcnt(0)\ns_add_u32 s{S_STEP}x, 0, 0".replace(f"s_add_u32 s{S_STEP}x, 0, 0", "s_add_u32 s87, s87, 1"))
        A(f"s_cmp_lt_u32 s87, 63\ns_cbranch_scc1 {JOIN}\ns_branch {DONE}")
    A.label(FAIL)
    A(f"s_mov_b64 exec, -1\ns_mov_b32 s{S_FAIL}, 1")
    A.label(DONE)


def chain_init_mem(A, st):
    ws = f"s[{SRD_WS}:{SRD_WS+3}]"
    N0 = A.uid("IM"); N1 = A.uid("IM")
    A(f"""
    s_cmp_lt_u32 s{S_H}, 9
    s_cbranch_scc0 {N1}
    s_cmp_eq_u32 s{S_W}, 0
    s_cbranch_scc0 {N0}
    s_load_dwordx2 s[4:5], s[0:1], {KA['A_mem0']}
    s_waitcnt lgkmcnt(0)
    s_mov_b32 s{SRD_W}, s4
    s_mov_b32 s{SRD_W+1}, s5
    s_mov_b32 s{SRD_W+2}, {8*1152}
    s_mov_b32 s{SRD_W+3}, 0x00020000
    v_bfe_u32 v24, v{V_L16}, 4, 4            ; n
    v_lshrrev_b32 v25, 2, v24
    v_lshlrev_b32 v25, 1, v25
    v_and_b32 v26, 1, v24
    v_add_u32 v25, v25, v26                  ; irow
    v_mul_u32_u24 v25, 1152, v25
    v_bfe_u32 v26, v24, 1, 1                 ; hf
    v_lshl_add_u32 v25, v26, 4, v25
    v_lshrrev_b32 v26, 8, v{V_L16}           ; g
    v_lshl_add_u32 v25, v26, 5, v25
    s_lshl_b32 s{S_T0}, s{S_H}, 7            ; c*128 bytes
    buffer_load_dwordx4 v[28:31], v25, s[{SRD_W}:{SRD_W+3}], s{S_T0} offen
    s_lshl_b32 s{S_T0}, s{S_H}, 10
    s_add_u32 s{S_T0}, s{S_T0}, {WS_M}
    s_waitcnt vmcnt(0)
    buffer_store_dwordx4 v[28:31], v{V_L16}, {ws}, s{S_T0} offen {st}
    s_branch {N1}
    {N0}:
    v_mov_b32 v28, -1
    v_mov_b32 v29, -1
    v_mov_b32 v30, -1
    v_mov_b32 v31, -1
    s_mul_i32 s{S_T0}, s{S_W}, {M_SLOT}
    s_lshl_b32 s{S_T1}, s{S_H}, 10
    s_add_u32 s{S_T0}, s{S_T0}, s{S_T1}
    s_add_u32 s{S_T0}, s{S_T0}, {WS_M}
    s_cmp_eq_u32 s{S_W}, 3
    s_cbranch_scc1 {N0}s
    buffer_store_dwordx4 v[28:31], v{V_L16}, {ws}, s{S_T0} offen {st}
    s_branch {N1}
    {N0}s:
    v_bfe_u32 v24, v{V_L16}, 4, 3            ; j = n & 7
    v_and_b32 v25, 1, v24
    v_lshlrev_b32 v25, 4, v25
    v_mov_b32 v26, 0x3f80
    v_lshlrev_b32 v25, v25, v26              ; X
    v_lshrrev_b32 v24, 1, v24
    """)
    for r in range(4):
        A(f"v_cmp_eq_u32 vcc, {r}, v24\ns_nop 1\nv_cndmask_b32 v{28+r}, 0, v25, vcc")
    A(f"s_mov_b32 s{S_T0}, {WS_SEL}\nbuffer_store_dwordx4 v[28:31], v{V_L16}, {ws}, s{S_T0} offen {st}")
    A.label(N1)
    A("s_waitcnt vmcnt(0)")


def load_all_weights(A):
    import common as CM
    def trfun(mi, half):
        base = L_WO + (0 if half == 0 else 81920)
        A(f"""
        v_lshrrev_b32 v24, 8, v{V_L16}          ; gB
        v_bfe_u32 v25, v{V_L16}, 6, 2           ; r
        v_bfe_u32 v26, v{V_L16}, 4, 2           ; cq
        v_lshrrev_b32 v27, 1, v24
        v_lshlrev_b32 v27, 4, v27
        v_lshrrev_b32 v28, 1, v25
        v_lshl_add_u32 v27, v28, 3, v27
        v_and_b32 v29, 1, v24
        v_lshl_add_u32 v27, v29, 2, v27
        v_and_b32 v30, 1, v25
        v_add_u32 v27, v27, v30                 ; row
        v_lshlrev_b32 v27, 8, v27
        v_lshl_add_u32 v30, v29, 1, v30
        v_lshl_add_u32 v30, v28, 2, v30         ; f
        v_lshl_add_u32 v27, v26, 3, v27
        v_add_u32 v27, {base}, v27
        s_lshl_b32 s{S_T0}, s{S_W}, 1
        """)
        cs = range(0, 5) if half == 0 else range(5, 9)
        for et in range(2):
            A(f"""
            s_add_u32 s{S_T1}, s{S_T0}, {et}
            v_xor_b32 v31, s{S_T1}, v30
            v_lshl_add_u32 v31, v31, 5, v27
            """)
            for c in cs:
                kind, b = wfrag_regs(mi, et, c)
                for Hh in range(2):
                    for rr in range(2):
                        reg = b + 4 * Hh + 2 * rr
                        A(f"ds_read_b64_tr_b16 {kind}[{reg}:{reg+1}], v31 offset:{Hh*8192 + rr*512}")
                A(f"s_waitcnt lgkmcnt(0)\nv_add_u32 v31, 16384, v31")
    CM.load_head_slices_pipelined(A, [KA['A_Wq'], KA['A_Wk'], KA['A_Wv']], L_WO, trfun)
    load_wo(A)
```

```python
from asmlib import *
from layout import *
import struct
def f32bits(x): return struct.unpack("<I", struct.pack("<f", x))[0]

SRD_WS = 8
SRD_A = 12
S_H, S_W = 16, 17
S_NONCE = 7
V_L16 = 0

def srd_ws(A):
    A(f"""
    s_load_dwordx2 s[4:5], s[0:1], {KA['ws']}
    s_waitcnt lgkmcnt(0)
    s_mov_b32 s{SRD_WS}, s4
    s_mov_b32 s{SRD_WS+1}, s5
    s_mov_b32 s{SRD_WS+2}, {WS_SIZE}
    s_mov_b32 s{SRD_WS+3}, 0x00020000
    """)

def lane_setup(A):
    A(f"""
    v_lshrrev_b32 v1, 6, v0
    v_and_b32 v0, 63, v0
    s_nop 0
    v_readfirstlane_b32 s{S_W}, v1
    v_lshlrev_b32 v0, 4, v0
    """)

def make_srd(A, srd, kaoff, add_sgpr, nbytes_total, tmp=4):
    A(f"""
    s_load_dwordx2 s[{tmp}:{tmp+1}], s[0:1], {kaoff}
    s_waitcnt lgkmcnt(0)
    """)
    if add_sgpr is None:
        A(f"s_mov_b32 s{srd}, s{tmp}\ns_mov_b32 s{srd+1}, s{tmp+1}\ns_mov_b32 s{srd+2}, {nbytes_total}\ns_mov_b32 s{srd+3}, 0x00020000")
    else:
        A(f"s_add_u32 s{srd}, s{tmp}, s{add_sgpr}\ns_addc_u32 s{srd+1}, s{tmp+1}, 0\ns_sub_u32 s{srd+2}, {nbytes_total}, s{add_sgpr}\ns_mov_b32 s{srd+3}, 0x00020000")

def load_head_slice(A, kaoff, regmap, lds_base, t0=28, t1=29, t2=30):
    lw = A.uid("LW")
    A(f"s_lshl_b32 s{t0}, s{S_H}, 8")
    make_srd(A, SRD_A, kaoff, t0, 576*8192)
    A(f"""
    v_lshrrev_b32 v24, 8, v{V_L16}          ; l>>4
    v_and_b32 v25, 1, v24
    s_lshl_b32 s{t0}, s{S_W}, 1
    v_or_b32 v25, s{t0}, v25                ; f(row)
    v_bfe_u32 v26, v{V_L16}, 5, 3           ; (l&15)>>1
    v_xor_b32 v26, v26, v25
    v_lshlrev_b32 v26, 5, v26
    v_lshl_add_u32 v26, v24, 13, v26
    v_and_b32 v27, 16, v{V_L16}
    v_add_u32 v26, v26, v27
    s_lshl_b32 s{t0}, s{S_W}, 15
    s_lshl_b32 s{t1}, s{S_W}, 10
    s_add_u32 s{t1}, s{t1}, {lds_base}
    s_mov_b32 s{t2}, 0
    {lw}:
    s_mov_b32 m0, s{t1}
    s_nop 0
    buffer_load_dwordx4 v26, s[{SRD_A}:{SRD_A+3}], s{t0} offen lds
    s_add_u32 s{t0}, s{t0}, {4*32768}
    s_add_u32 s{t1}, s{t1}, 4096
    s_add_u32 s{t2}, s{t2}, 1
    s_cmp_lt_u32 s{t2}, 36
    s_cbranch_scc1 {lw}
    s_waitcnt vmcnt(0)
    s_barrier
    v_lshrrev_b32 v24, 8, v{V_L16}          ; g
    v_bfe_u32 v25, v{V_L16}, 6, 2           ; r
    v_bfe_u32 v26, v{V_L16}, 4, 2           ; cq
    v_lshl_add_u32 v27, v24, 3, v25         ; 8g + r
    v_lshlrev_b32 v27, 8, v27
    v_lshl_add_u32 v27, v26, 3, v27
    v_add_u32 v27, {lds_base}, v27
    v_and_b32 v28, 1, v25
    v_and_b32 v29, 1, v24
    v_lshl_add_u32 v28, v29, 2, v28
    v_or_b32 v29, 2, v28
    s_lshl_b32 s{t0}, s{S_W}, 1
    """)
    for et in range(2):
        A(f"""
        s_add_u32 s{t1}, s{t0}, {et}
        v_xor_b32 v30, s{t1}, v28
        v_lshl_add_u32 v30, v30, 5, v27
        v_xor_b32 v31, s{t1}, v29
        v_lshl_add_u32 v31, v31, 5, v27
        v_add_u32 v31, 1024, v31
        """)
        for cc in range(18):
            kind, base = regmap(et, cc)
            off = (cc % 8) * 8192
            A(f"ds_read_b64_tr_b16 {kind}[{base}:{base+1}], v30 offset:{off}")
            A(f"ds_read_b64_tr_b16 {kind}[{base+2}:{base+3}], v31 offset:{off}")
            if cc % 8 == 7:
                A("s_waitcnt lgkmcnt(0)\nv_add_u32 v30, 65536, v30\nv_add_u32 v31, 65536, v31")
        A("s_waitcnt lgkmcnt(0)")
    A("s_barrier")

def x_dma(A, srd_x, voff, s_row, lds_base_sgpr, t0=28, t1=29):
    A(f"""
    s_mul_i32 s{t0}, s{S_W}, {9*64}
    s_cmp_ge_u32 s{S_W}, 2
    s_cselect_b32 s{t1}, {16*1152 - 18*64}, 0
    s_add_u32 s{t0}, s{t0}, s{t1}
    s_add_u32 s{t0}, s{t0}, s{s_row}
    s_mul_i32 s{t1}, s{S_W}, 9216
    s_add_u32 m0, s{t1}, s{lds_base_sgpr}
    s_nop 0
    """)
    for i in range(9):
        A(f"buffer_load_dwordx4 v{voff}, s[{srd_x}:{srd_x+3}], s{t0} offen offset:{64*i} lds")
        if i < 8: A("s_add_u32 m0, m0, 960\ns_nop 0")

def load_head_slices_pipelined(A, mats, lds_base, trfun, t0=28, t1=29, t2=30):
    srds = [52, 56, 84]
    A(f"s_lshl_b32 s{t0}, s{S_H}, 8")
    for mi, ka in enumerate(mats): make_srd(A, srds[mi], ka, t0, 576*8192)
    A(f"""
    v_lshrrev_b32 v24, 8, v{V_L16}          ; l>>4
    v_and_b32 v25, 1, v24
    s_lshl_b32 s{t0}, s{S_W}, 1
    v_or_b32 v25, s{t0}, v25                ; f(row)
    v_bfe_u32 v26, v{V_L16}, 5, 3
    v_xor_b32 v26, v26, v25
    v_lshlrev_b32 v26, 5, v26
    v_lshl_add_u32 v26, v24, 13, v26
    v_and_b32 v27, 16, v{V_L16}
    v_add_u32 v23, v26, v27
    """)
    def dma(mi, half):
        n = 20 if half == 0 else 16
        a0 = 0 if half == 0 else 80
        lp = A.uid("DM")
        A(f"s_lshl_b32 s{t0}, s{S_W}, 15\ns_add_u32 s{t0}, s{t0}, {a0*32768}\ns_lshl_b32 s{t1}, s{S_W}, 10\ns_add_u32 s{t1}, s{t1}, {lds_base + a0*1024}\ns_mov_b32 s{t2}, 0")
        A.label(lp)
        A(f"s_mov_b32 m0, s{t1}\ns_add_u32 s{t1}, s{t1}, 4096\nbuffer_load_dwordx4 v23, s[{srds[mi]}:{srds[mi]+3}], s{t0} offen lds\ns_add_u32 s{t0}, s{t0}, {4*32768}\ns_add_u32 s{t2}, s{t2}, 1\ns_cmp_lt_u32 s{t2}, {n}\ns_cbranch_scc1 {lp}")
        return n
    seq = [(mi, h) for mi in range(len(mats)) for h in range(2)]
    cnt = {}
    cnt[0] = dma(*seq[0]); cnt[1] = dma(*seq[1])
    for i, (mi, h) in enumerate(seq):
        younger = cnt.get(i + 1, 0)
        A(f"s_waitcnt vmcnt({younger})\ns_barrier")
        trfun(mi, h)
        A("s_waitcnt lgkmcnt(0)\ns_barrier")
        if i + 2 < len(seq): cnt[i + 2] = dma(*seq[i + 2])

def natural_tr(A, regmaps, lds_base, t0=28, t1=29):
    def f(mi, half):
        A(f"""
        v_lshrrev_b32 v24, 8, v{V_L16}          ; g
        v_bfe_u32 v25, v{V_L16}, 6, 2           ; r
        v_bfe_u32 v26, v{V_L16}, 4, 2           ; cq
        v_lshl_add_u32 v27, v24, 3, v25         ; 8g + r
        v_lshlrev_b32 v27, 8, v27
        v_lshl_add_u32 v27, v26, 3, v27
        v_add_u32 v27, {lds_base + (0 if half == 0 else 81920)}, v27
        v_and_b32 v28, 1, v25
        v_and_b32 v29, 1, v24
        v_lshl_add_u32 v28, v29, 2, v28
        v_or_b32 v29, 2, v28
        s_lshl_b32 s{t0}, s{S_W}, 1
        """)
        ccs = range(0, 10) if half == 0 else range(10, 18)
        for et in range(2):
            A(f"""
            s_add_u32 s{t1}, s{t0}, {et}
            v_xor_b32 v30, s{t1}, v28
            v_lshl_add_u32 v30, v30, 5, v27
            v_xor_b32 v31, s{t1}, v29
            v_lshl_add_u32 v31, v31, 5, v27
            v_add_u32 v31, 1024, v31
            """)
            for k, cc in enumerate(ccs):
                kind, base = regmaps[mi](et, cc)
                if k == 8: A("s_waitcnt lgkmcnt(0)\nv_add_u32 v30, 65536, v30\nv_add_u32 v31, 65536, v31")
                off = (k % 8) * 8192
                A(f"ds_read_b64_tr_b16 {kind}[{base}:{base+1}], v30 offset:{off}")
                A(f"ds_read_b64_tr_b16 {kind}[{base+2}:{base+3}], v31 offset:{off}")
            A("s_waitcnt lgkmcnt(0)")
    return f
```

```python
from common import *

V_XO = 2
V_ACC = 8
V_XF = 40
V_T = 64
SRD_X = 20
S_SEG, S_ROW, S_LB, S_KVO, S_CNT = 24, 25, 26, 27, 34
L_X0, L_X1 = 0, 36864

def wmap(mat):
    def f(et, cc):
        idx = mat*36 + et*18 + cc
        return ("a", idx*4) if idx < 64 else ("v", 224 + (idx-64)*4)
    return f
def wreg(mat, et, cc):
    k, b = wmap(mat)(et, cc); return f"{k}[{b}:{b+3}]"

def p_station(A, s_rho, nrep=7, flag=True, get_nonce=None, wr=None, load=True):
    wreg = wr if wr is not None else globals()['wreg']
    ws = f"s[{SRD_WS}:{SRD_WS+3}]"
    if load: load_head_slices_pipelined(A, [KA['A_Wk'], KA['A_Wv']], 0, natural_tr(A, [wmap(0), wmap(1)], 0))
    if get_nonce is not None: get_nonce()
    make_srd(A, SRD_X, KA['A_x'], None, 2048*1152)
    A(f"""
    v_bfe_u32 v{V_XO}, v{V_L16}, 4, 4        ; n
    v_mul_u32_u24 v{V_XO}, 1152, v{V_XO}
    v_lshrrev_b32 v3, 8, v{V_L16}            ; g
    v_lshl_add_u32 v{V_XO}, v3, 4, v{V_XO}
    s_mov_b32 s{S_SEG}, s{s_rho}
    s_mul_i32 s{S_ROW}, s{S_SEG}, {32*1152}
    s_mov_b32 s{S_LB}, {L_X0}
    """)
    x_dma(A, SRD_X, V_XO, S_ROW, S_LB)
    LOOP = A.uid("PL"); NODMA = A.uid("PN"); END = A.uid("PE")
    A(f"s_mov_b32 s{S_CNT}, 0\ns_waitcnt vmcnt(0)")
    A(f"""
    s_lshl_b32 s39, s{S_H}, 5
    s_lshl_b32 s41, s{s_rho}, 2
    s_add_u32 s39, s39, s41
    s_add_u32 s39, s39, {WS_FLAGS + F_P}      ; PF[h][rho]
    """)
    A.label(LOOP)
    W0 = A.uid("PW0")
    A(f"s_cmp_eq_u32 s{S_CNT}, 1\ns_cbranch_scc0 {W0}\ns_waitcnt vmcnt(0)")
    A.label(W0)
    A("s_waitcnt vmcnt(4)\ns_barrier")
    if flag:
        NFL = A.uid("PNF")
        A(f"""
        s_cmp_ge_u32 s{S_CNT}, 1
        s_cbranch_scc0 {NFL}
        s_cmp_eq_u32 s{S_W}, 0
        s_cbranch_scc0 {NFL}
        s_add_u32 s41, s{S_CNT}, s{S_NONCE}
        s_sub_u32 s41, s41, 1
        s_cmp_eq_u32 s{S_CNT}, 1
        s_cselect_b32 s40, 1, 0
        s_add_u32 s41, s41, s40
        v_mov_b32 v4, s41
        v_mov_b32 v5, 0
        s_mov_b64 exec, 1
        buffer_store_dword v4, v5, {ws}, s39 offen sc1
        s_mov_b64 exec, -1
        """)
        A.label(NFL)
    A(f"""
    s_add_u32 s35, s{S_SEG}, {nrep}
    s_cmp_lt_u32 s35, 64
    s_cbranch_scc0 {NODMA}
    s_mul_i32 s{S_ROW}, s35, {32*1152}
    s_xor_b32 s36, s{S_LB}, {L_X1}
    """)
    x_dma(A, SRD_X, V_XO, S_ROW, 36)
    A.label(NODMA)
    A(f"v_add_u32 v3, s{S_LB}, v{V_L16}")
    def xr(cc):
        st = cc % 3
        for tt in range(2):
            A(f"ds_read_b128 {vr(V_XF + (st*2+tt)*4, 4)}, v3 offset:{(tt*18+cc)*1024}")
    xr(0); xr(1)
    for cc in range(18):
        if cc + 2 < 18: xr(cc + 2)
        later = 2 * min(2, 17 - cc)
        A(f"s_waitcnt lgkmcnt({later})")
        st = cc % 3
        for et in range(2):
            for tt in range(2):
                d = V_ACC + (et*2+tt)*4
                A(f"v_mfma_f32_16x16x32_bf16 {vr(d,4)}, {wreg(0,et,cc)}, {vr(V_XF+(st*2+tt)*4,4)}, {'0' if cc==0 else vr(d,4)}")
        for tt in range(2):
            for et in range(2):
                d = V_ACC + 16 + (tt*2+et)*4
                A(f"v_mfma_f32_16x16x32_bf16 {vr(d,4)}, {vr(V_XF+(st*2+tt)*4,4)}, {wreg(1,et,cc)}, {'0' if cc==0 else vr(d,4)}")
    A(f"""
    s_lshl_b32 s35, s{S_SEG}, 5
    s_add_u32 s35, s35, s{S_H}
    s_lshl_b32 s35, s35, 14
    s_add_u32 s35, s35, {WS_KV}
    s_lshl_b32 s36, s{S_W}, 10
    s_add_u32 s36, s36, s35                 ; K: + tau*4096 + w*1024
    s_lshl_b32 s37, s{S_W}, 11
    s_add_u32 s37, s37, s35
    s_add_u32 s37, s37, 8192                ; V: + w*2048 + et*1024
    s_nop 4
    """)
    for tt in range(2):
        t = V_T + tt*4
        for et in range(2):
            d = V_ACC + (et*2+tt)*4
            A(f"v_cvt_pk_bf16_f32 v{t+2*et}, v{d}, v{d+1}\nv_cvt_pk_bf16_f32 v{t+2*et+1}, v{d+2}, v{d+3}")
        A(f"s_add_u32 s38, s36, {tt*4096}")
        A(f"buffer_store_dwordx4 {vr(t,4)}, v{V_L16}, {ws}, s38 offen sc1")
    for et in range(2):
        t = V_T + 8 + et*4
        for tt in range(2):
            d = V_ACC + 16 + (tt*2+et)*4
            A(f"v_cvt_pk_bf16_f32 v{t+2*tt}, v{d}, v{d+1}\nv_cvt_pk_bf16_f32 v{t+2*tt+1}, v{d+2}, v{d+3}")
        A(f"buffer_store_dwordx4 {vr(t,4)}, v{V_L16}, {ws}, s37 offen offset:{et*1024} sc1")
    A(f"""
    s_xor_b32 s{S_LB}, s{S_LB}, {L_X1}
    s_add_u32 s{S_CNT}, s{S_CNT}, 1
    s_add_u32 s{S_SEG}, s{S_SEG}, {nrep}
    s_cmp_lt_u32 s{S_SEG}, 64
    s_cbranch_scc1 {LOOP}
    s_waitcnt vmcnt(0)
    s_barrier
    """)
    if flag:
        A(f"""
        s_cmp_eq_u32 s{S_W}, 0
        s_cbranch_scc0 {END}
        s_add_u32 s41, s{S_NONCE}, 16
        v_mov_b32 v3, s41
        v_mov_b32 v4, 0
        s_mov_b64 exec, 1
        buffer_store_dword v3, v4, {ws}, s39 offen sc1
        s_mov_b64 exec, -1
        """)
        A.label(END)
```

```python
from common import *

V_AD = 2
V_OF = 8
V_ACC = 72
V_T = 96
V_OUTA = 7
S_CG, S_SEG, S_SPIN, S_FAIL = 24, 25, 26, 19
SRD_O = 20
SPIN_MAX = 2000000
L_RED = 0

def wmap(ct, kc):
    idx = ct*32 + kc
    return ("a", idx*4) if idx < 64 else ("v", 128 + (idx-64)*4)
def wreg(ct, kc):
    k, b = wmap(ct, kc); return f"{k}[{b}:{b+3}]"

def load_wo_cols(A):
    A(f"s_mul_i32 s28, s{S_CG}, 96")
    A(f"s_mul_i32 s29, s{S_W}, {1024*1152}\ns_add_u32 s28, s28, s29")
    make_srd(A, SRD_A, KA['A_Wo'], 28, 4096*1152)
    A(f"""
    v_lshrrev_b32 v2, 4, v{V_L16}            ; lane
    s_mul_i32 s30, s{S_W}, 24576
    v_lshrrev_b32 v4, 8, v{V_L16}            ; g
    v_bfe_u32 v5, v{V_L16}, 6, 2             ; r
    v_bfe_u32 v6, v{V_L16}, 4, 2             ; cq
    v_lshl_add_u32 v4, v4, 2, v5
    v_mul_u32_u24 v4, 96, v4
    v_lshl_add_u32 v4, v6, 3, v4
    v_add_u32 v4, s30, v4
    """)
    for rnd in range(4):
        for i in range(24):
            A(f"""
            v_add_u32 v3, {64*i}, v2
            v_mul_u32_u24 v5, 43691, v3
            v_lshrrev_b32 v5, 18, v5
            v_mul_u32_u24 v6, 6, v5
            v_sub_u32 v6, v3, v6                 ; part
            v_mul_u32_u24 v5, 1152, v5
            v_lshl_add_u32 v5, v6, 4, v5
            s_add_u32 s31, s30, {i*1024}
            s_mov_b32 m0, s31
            s_mov_b32 s33, {rnd*256*1152}
            buffer_load_dwordx4 v5, s[{SRD_A}:{SRD_A+3}], s33 offen lds
            """)
        A("s_waitcnt vmcnt(0)")
        for kk in range(8):
            kc = rnd*8 + kk
            for ct in range(3):
                kind, base = wmap(ct, kc)
                for Hh in range(2):
                    A(f"ds_read_b64_tr_b16 {kind}[{base+2*Hh}:{base+2*Hh+1}], v4 offset:{kk*32*96 + Hh*16*96 + ct*32}")
            A("s_waitcnt lgkmcnt(0)")

def w_station(A, s_cg, s_rep, nrep, wait=True, nseg=64, s_tt=None):
    TTS = [0, 1] if s_tt is None else [0]
    ws = f"s[{SRD_WS}:{SRD_WS+3}]"
    A(f"s_mov_b32 s{S_CG}, s{s_cg}\ns_mov_b32 s{S_SEG}, s{s_rep}\ns_mov_b32 s{S_FAIL}, 0")
    load_wo_cols(A)
    make_srd(A, SRD_O, KA['out'], None, 2048*2304)
    A(f"""
    v_bfe_u32 v2, v{V_L16}, 4, 4
    v_mul_u32_u24 v2, 2304, v2
    v_lshrrev_b32 v3, 8, v{V_L16}
    v_lshl_add_u32 v{V_OUTA}, v3, 3, v2
    s_barrier
    """)
    LOOP = A.uid("WL"); END = A.uid("WE"); FAIL = A.uid("WF")
    A.label(LOOP)
    if wait:
        W = A.uid("WW")
        A(f"""
        s_lshl_b32 s28, s{S_SEG}, 7
        s_add_u32 s28, s28, {WS_FLAGS + F_O}
        s_mov_b32 s{S_SPIN}, {SPIN_MAX}
        v_lshrrev_b32 v2, 2, v{V_L16}
        v_and_b32 v2, 127, v2
        """)
        A.label(W)
        A(f"""
        buffer_load_dword v3, v2, {ws}, s28 offen sc1
        s_waitcnt vmcnt(0)
        v_cmp_ne_u32 vcc, s{S_NONCE}, v3
        s_cbranch_vccz {W}k
        s_sub_u32 s{S_SPIN}, s{S_SPIN}, 1
        s_cbranch_scc1 {FAIL}
        s_sleep {2 if s_tt is not None else 8}
        s_branch {W}
        {W}k:
        """)
    A(f"""
    s_lshl_b32 s28, s{S_SEG}, 8
    s_lshl_b32 s29, s{S_W}, 5
    s_add_u32 s28, s28, s29
    s_lshl_b32 s28, s28, 10
    s_add_u32 s28, s28, {WS_O}               ; tt = 0
    s_add_u32 s29, s28, {128*1024}           ; tt = 1
    """)
    if s_tt is not None: A(f"s_lshl_b32 s30, s{s_tt}, 17\ns_add_u32 s28, s28, s30")
    NS = 8
    def ld(kc):
        sl = kc % NS
        if kc % 4 == 0 and kc > 0: A("s_add_u32 s28, s28, 4096\ns_add_u32 s29, s29, 4096")
        A(f"buffer_load_dwordx4 {vr(V_OF + sl*8, 4)}, v{V_L16}, {ws}, s28 offen offset:{(kc%4)*1024}")
        if s_tt is None: A(f"buffer_load_dwordx4 {vr(V_OF + sl*8 + 4, 4)}, v{V_L16}, {ws}, s29 offen offset:{(kc%4)*1024}")
    for kc in range(NS): ld(kc)
    for kc in range(32):
        later = len(TTS) * min(NS - 1, 31 - kc)
        A(f"s_waitcnt vmcnt({later})")
        sl = kc % NS
        for ct in range(3):
            for tt in TTS:
                d = V_ACC + (ct*2+tt)*4
                A(f"v_mfma_f32_16x16x32_bf16 {vr(d,4)}, {wreg(ct,kc)}, {vr(V_OF+sl*8+4*tt,4)}, {'0' if kc==0 else vr(d,4)}")
        if kc + NS < 32: ld(kc + NS)
    A(f"s_mul_i32 s28, s{S_W}, 6144\nv_add_u32 v2, s28, v{V_L16}\ns_nop 5")
    for t in range(6):
        if t % 2 in TTS: A(f"ds_write_b128 v2, {vr(V_ACC+4*t,4)} offset:{t*1024}")
    A("s_waitcnt lgkmcnt(0)\ns_barrier")
    NOST = A.uid("WN")
    A(f"""
    s_cmp_lt_u32 s{S_W}, 3
    s_cbranch_scc0 {NOST}
    s_lshl_b32 s28, s{S_W}, 11
    v_add_u32 v2, s28, v{V_L16}
    """)
    for tt in TTS:
        for x in range(4): A(f"ds_read_b128 {vr(V_T + (tt*4+x)*4, 4)}, v2 offset:{x*6144 + tt*1024}")
    A("s_waitcnt lgkmcnt(0)")
    A(f"""
    s_mul_i32 s28, s{S_SEG}, {32*2304}
    s_mul_i32 s29, s{S_CG}, 96
    s_add_u32 s28, s28, s29
    s_lshl_b32 s29, s{S_W}, 5
    s_add_u32 s28, s28, s29
    """)
    if s_tt is not None: A(f"s_mul_i32 s29, s{s_tt}, {16*2304}\ns_add_u32 s28, s28, s29")
    for tt in TTS:
        b = V_T + tt*16
        for r in range(4):
            A(f"v_add_f32 v{b+r}, v{b+r}, v{b+4+r}\nv_add_f32 v{b+8+r}, v{b+8+r}, v{b+12+r}\nv_add_f32 v{b+r}, v{b+r}, v{b+8+r}")
        A(f"v_cvt_pk_bf16_f32 v{b}, v{b}, v{b+1}\nv_cvt_pk_bf16_f32 v{b+1}, v{b+2}, v{b+3}")
        if tt == 1: A(f"s_add_u32 s28, s28, {16*2304}")
        A(f"buffer_store_dwordx2 {vr(b,2)}, v{V_OUTA}, s[{SRD_O}:{SRD_O+3}], s28 offen")
    A.label(NOST)
    A(f"""
    s_barrier
    s_add_u32 s{S_SEG}, s{S_SEG}, {nrep}
    s_cmp_lt_u32 s{S_SEG}, {nseg}
    s_cbranch_scc1 {LOOP}
    s_branch {END}
    """)
    A.label(FAIL)
    A(f"s_mov_b32 s{S_FAIL}, 1")
    A.label(END)
```

```python
import sys
sys.path.insert(0, "gen")
from common import *
import chain5 as C, pstation as P, astation as AS, wstation as W, bstation as B

KNAME = "concat_heads__memory_aug_recurrent_mem_tr__grouped_kv_mqa__prompt_kernel"
SPIN = 4000000
GRAN = 32
NREG = 60

def poll_flags(A, s_off, nflags, fail, tmp=(2, 3), spin=35, s_val=S_NONCE):
    ws = f"s[{SRD_WS}:{SRD_WS+3}]"
    Wl = A.uid("PW")
    a, b = tmp
    A(f"v_lshrrev_b32 v{a}, 2, v{V_L16}\nv_cmp_gt_u32 vcc, {4*nflags}, v{a}\ns_nop 1\nv_cndmask_b32 v{a}, 0, v{a}, vcc\ns_mov_b32 s{spin}, {SPIN}")
    A.label(Wl)
    A(f"""
    buffer_load_dword v{b}, v{a}, {ws}, s{s_off} offen sc1
    s_waitcnt vmcnt(0)
    v_cmp_ne_u32 vcc, s{s_val}, v{b}
    s_cbranch_vccz {Wl}k
    s_sub_u32 s{spin}, s{spin}, 1
    s_cbranch_scc1 {fail}
    s_sleep 4
    s_branch {Wl}
    {Wl}k:
    """)

def build(opt=()):
    A = Asm()
    def tl(i, vt=(60,61)):
        if "tl" not in opt: return
        ws = f"s[{SRD_WS}:{SRD_WS+3}]"
        L = A.uid("TL")
        A(f"""
        s_cmp_eq_u32 s{S_W}, 0
        s_cbranch_scc0 {L}
        s_memrealtime s[98:99]
        s_waitcnt lgkmcnt(0)
        v_mov_b32 v{vt[0]}, s98
        v_mov_b32 v{vt[1]}, 0
        s_lshl_b32 s98, s6, 6
        s_add_u32 s98, s98, {WS_FLAGS + 32768 + i*4}
        s_mov_b64 exec, 1
        buffer_store_dword v{vt[0]}, v{vt[1]}, {ws}, s98 offen sc1
        s_mov_b64 exec, -1
        {L}:
        """)
    END = "K_END"
    A(f"""
    s_cmp_lt_u32 s2, 256
    s_cbranch_scc1 K_GO
    s_endpgm
    K_GO:
    s_load_dwordx2 s[4:5], s[0:1], {KA['ws']}
    s_load_dwordx2 s[20:21], s[0:1], {KA['dbg']}
    s_getreg_b32 s3, hwreg(HW_REG_XCC_ID, 0, 4)
    s_waitcnt lgkmcnt(0)
    s_mov_b32 s{SRD_WS}, s4
    s_mov_b32 s{SRD_WS+1}, s5
    s_mov_b32 s{SRD_WS+2}, {WS_SIZE}
    s_mov_b32 s{SRD_WS+3}, 0x00020000
    s_mov_b32 s12, s20
    s_mov_b32 s13, s21
    s_mov_b32 s14, 256
    s_mov_b32 s15, 0x00020000
    """)
    lane_setup(A)
    A("s_mov_b32 s6, s2")
    tl(0, (6,7))
    A(f"""
    s_cmp_eq_u32 s{S_W}, 0
    s_cbranch_scc0 K_TK1
    s_mov_b64 exec, 1
    v_mov_b32 v2, 1
    v_mov_b32 v3, 0
    s_mov_b32 s22, -1
    s_cmp_eq_u32 s3, 0
    s_cbranch_scc0 K_TB
    buffer_atomic_add v2, v3, s[12:15], 0 offen sc0
    s_waitcnt vmcnt(0)
    v_readfirstlane_b32 s22, v2
    s_cmp_lt_u32 s22, 32
    s_cbranch_scc1 K_TW
    K_TB:
    v_mov_b32 v2, 1
    buffer_atomic_add v2, v3, s[12:15], 0 offen offset:64 sc0
    s_waitcnt vmcnt(0)
    v_readfirstlane_b32 s23, v2              ; ticket B
    s_mov_b32 s22, -1
    s_cmp_lt_u32 s23, 224
    s_cbranch_scc1 K_TB2
    s_sub_u32 s22, 255, s23
    K_TB2:
    s_cmp_eq_u32 s23, 0
    s_cbranch_scc0 K_TW2
    s_memrealtime s[24:25]
    s_waitcnt lgkmcnt(0)
    s_or_b32 s24, s24, 1
    v_mov_b32 v2, s24
    buffer_store_dword v2, v3, s[12:15], 0 offen offset:128 sc1
    s_branch K_TW2
    K_TW:
    s_mov_b32 s23, -1
    K_TW2:
    v_mov_b32 v4, s22
    v_mov_b32 v5, s23
    ds_write_b64 v3, v[4:5]
    s_waitcnt lgkmcnt(0)
    s_mov_b64 exec, -1
    K_TK1:
    s_barrier
    v_mov_b32 v3, 0
    ds_read_b64 v[4:5], v3
    s_waitcnt lgkmcnt(0)
    v_readfirstlane_b32 s22, v4
    v_readfirstlane_b32 s23, v5
    s_barrier
    s_cmp_eq_u32 s23, -1
    s_cbranch_scc1 K_ROK
    s_cmp_lt_u32 s23, 256
    s_cbranch_scc1 K_ROK
    s_endpgm
    K_ROK:
    s_cmp_eq_u32 s22, -1
    s_cbranch_scc1 K_BULK
    s_branch K_CHAIN
    K_BULK:
    """)
    def get_nonce(fail, srd=12):
        Wl = A.uid("NW")
        A(f"v_mov_b32 v3, 0\ns_mov_b32 s35, {SPIN}")
        A.label(Wl)
        A(f"""
        buffer_load_dword v2, v3, s[{srd}:{srd+3}], 0 offen offset:128 sc1
        s_waitcnt vmcnt(0)
        v_readfirstlane_b32 s{S_NONCE}, v2
        s_cmp_lg_u32 s{S_NONCE}, 0
        s_cbranch_scc1 {Wl}k
        s_sub_u32 s35, s35, 1
        s_cbranch_scc1 {fail}
        s_sleep 2
        s_branch {Wl}
        {Wl}k:
        """)
    A(f"s_and_b32 s{S_H}, s23, 31\ns_lshr_b32 s50, s23, 5\ns_mov_b32 s51, s23")
    A("s_mov_b32 s88, s12\ns_mov_b32 s89, s13\ns_mov_b32 s90, s14\ns_mov_b32 s91, s15")
    if "nowarm" not in opt:
        A(f"s_mul_i32 s40, s51, 21504\ns_mul_i32 s41, s{S_W}, 5376\ns_add_u32 s40, s40, s41")
        for ka in (KA['A_Wq'], KA['A_Wk'], KA['A_Wv'], KA['A_Wo']):
            make_srd(A, SRD_A, ka, None, 576*8192)
            for i in range(6):
                A(f"buffer_load_dwordx4 v[8:11], v{V_L16}, s[{SRD_A}:{SRD_A+3}], s40 offen offset:{min(i*1024, 4080)}" if i < 4 else
                  f"s_add_u32 s42, s40, {i*1024}\nbuffer_load_dwordx4 v[8:11], v{V_L16}, s[{SRD_A}:{SRD_A+3}], s42 offen")
    if "delaybulk" in opt:
        A("s_mov_b32 s40, 0\nK_DL:\ns_sleep 127\ns_add_u32 s40, s40, 1\ns_cmp_lt_u32 s40, 3\ns_cbranch_scc1 K_DL")
    n0 = len(A.lines)
    tl(1, (6,7))
    A("s_lshl_b32 s6, s51, 0\ns_add_u32 s6, s6, 256")
    tl(0, (6,7))
    A("s_cmp_lt_u32 s50, 2\ns_cbranch_scc1 K_AP")
    P.p_station(A, 50, nrep=7, flag=True, get_nonce=lambda: get_nonce(END, 88))
    tl(2, (6,7))
    hz = check_hazards(A.lines[n0:], "P")
    A(f"""
    s_cmp_eq_u32 s50, 2
    s_cbranch_scc1 K_WB1
    s_branch K_B2
    K_AP:
    """)
    n0 = len(A.lines)
    AS.a_load(A)
    P.p_station(A, 50, nrep=7, flag=True, get_nonce=lambda: get_nonce(END, 88), wr=lambda mat, et, cc: AS.wreg(1 + mat, et, cc), load=False)
    tl(2, (6,7))
    A(f"""
    s_lshl_b32 s28, s{S_H}, 5
    s_add_u32 s28, s28, {WS_FLAGS + F_P}
    s_add_u32 s29, s{S_NONCE}, 16
    """)
    poll_flags(A, 28, 7, END, s_val=29)
    AS.a_station(A, s_par=50, nrep=2, wait_chain=True, flag=True, load=False, prof=("aprof" in opt))
    hz += check_hazards(A.lines[n0:], "A")
    tl(3, (6,7))
    A(f"s_branch {END}")
    A.label("K_WB1")
    A(f"""
    s_sub_u32 s52, s51, 64                   ; 0..31
    s_cmp_lt_u32 s52, 24
    s_cbranch_scc0 K_B1
    s_cmp_ge_u32 s52, 12
    s_cselect_b32 s54, 1, 0
    s_mul_i32 s53, s54, 12
    s_sub_u32 s53, s52, s53
    """)
    n0 = len(A.lines)
    W.w_station(A, 53, 54, 2, wait=True, nseg=NREG)
    hz += check_hazards(A.lines[n0:], "W")
    tl(3, (4,5))
    A(f"s_branch {END}")
    A.label("K_B1")
    A("s_sub_u32 s53, s52, 24")
    n0 = len(A.lines)
    B.b1_station(A, 53)
    hz += check_hazards(A.lines[n0:], "B1")
    tl(3, (6,7))
    A(f"s_branch {END}")
    A.label("K_B2")
    A("s_sub_u32 s53, s51, 96")
    n0 = len(A.lines)
    B.b2_station(A, 53, wait=True)
    hz += check_hazards(A.lines[n0:], "B2")
    tl(4, (6,7))
    A(f"""
    s_cmp_lt_u32 s53, {(64-NREG)*24}
    s_cbranch_scc1 K_WH
    s_endpgm
    K_WH:
    s_barrier
    s_mul_i32 s54, s53, 21846
    s_lshr_b32 s54, s54, 18                  ; u = idx / 12
    s_mul_i32 s55, s54, 12
    s_sub_u32 s55, s53, s55                  ; cg
    s_and_b32 s56, s54, 1                    ; tt
    s_lshr_b32 s54, s54, 1
    s_add_u32 s54, s54, {NREG}               ; segment
    """)
    n0 = len(A.lines)
    W.w_station(A, 55, 54, 64, wait=True, nseg=64, s_tt=56)
    hz += check_hazards(A.lines[n0:], "WH")
    tl(3, (4,5))
    A(f"s_endpgm")
    A.label("K_CHAIN")
    A(f"s_mov_b32 s{C.S_H}, s22\nv_lshrrev_b32 v0, 4, v0\ns_lshl_b32 s28, s{S_W}, 6\nv_add_u32 v0, s28, v0")
    A("s_mov_b32 s60, s12\ns_mov_b32 s61, s13\ns_mov_b32 s62, s14\ns_mov_b32 s63, s15")
    C.setup_regs(A)
    A(f"s_add_u32 s6, s{C.S_H}, 512")
    tl(0, (14,15))
    A(f"""
    v_mov_b32 v25, 0
    s_mov_b32 s65, {SPIN}
    K_MW:
    buffer_load_dword v24, v25, s[60:63], 0 offen sc1
    buffer_load_dword v26, v25, s[60:63], 0 offen offset:64 sc1
    buffer_load_dword v27, v25, s[60:63], 0 offen offset:128 sc1
    s_waitcnt vmcnt(0)
    v_readfirstlane_b32 s28, v24
    v_readfirstlane_b32 s29, v26
    v_readfirstlane_b32 s{S_NONCE}, v27
    s_cmp_eq_u32 s{S_NONCE}, 0
    s_cbranch_scc1 K_MW2
    s_mov_b32 s64, 0
    s_cmp_ge_u32 s28, 32
    s_cbranch_scc1 K_MK
    s_mov_b32 s64, 1
    s_cmp_gt_u32 s29, 224
    s_cbranch_scc1 K_MK
    K_MW2:
    s_sub_u32 s65, s65, 1
    s_cbranch_scc1 {END}
    s_sleep 2
    s_branch K_MW
    K_MK:
    """)
    if "forceslow" in opt: A("s_mov_b32 s64, 1")
    A("s_cmp_eq_u32 s64, 1\ns_cbranch_scc1 K_I1")
    C.chain_init_mem(A, "")
    A("s_branch K_I2")
    A.label("K_I1")
    C.chain_init_mem(A, "sc1")
    A.label("K_I2")
    A(f"""
    s_barrier
    s_cmp_eq_u32 s{S_W}, 0
    s_cbranch_scc0 K_RD
    s_mov_b64 exec, 1
    v_mov_b32 v24, 1
    v_mov_b32 v25, 0
    buffer_atomic_add v24, v25, s[60:63], 0 offen offset:192
    s_mov_b64 exec, -1
    K_RD:
    """)
    C.load_all_weights(A)
    tl(1, (14,15))
    for mode, st in ((0, ""), (1, "sc1")):
        lab = f"K_M{mode}"
        if mode == 0: A(f"s_cmp_eq_u32 s64, 1\ns_cbranch_scc1 K_M1")
        else: A.label("K_M1")
        A(f"""
        v_mov_b32 v25, 0
        s_mov_b32 s65, {SPIN}
        {lab}w:
        buffer_load_dword v24, v25, s[60:63], 0 offen offset:192 sc1
        s_waitcnt vmcnt(0)
        v_readfirstlane_b32 s28, v24
        s_cmp_ge_u32 s28, 32
        s_cbranch_scc1 {lab}k
        s_sub_u32 s65, s65, 1
        s_cbranch_scc1 {END}
        s_sleep 2
        s_branch {lab}w
        {lab}k:
        s_lshl_b32 s{C.S_PFO}, s{C.S_H}, 5
        s_add_u32 s{C.S_PFO}, s{C.S_PFO}, {WS_FLAGS + F_P}
        v_lshrrev_b32 v24, 2, v0
        v_and_b32 v24, 4, v24
        s_mov_b32 s65, {SPIN}
        {lab}p:
        buffer_load_dword v25, v24, s[{SRD_WS}:{SRD_WS+3}], s{C.S_PFO} offen sc1
        s_waitcnt vmcnt(0)
        v_subrev_u32 v25, s{S_NONCE}, v25
        v_subrev_u32 v25, 1, v25
        v_cmp_lt_u32 vcc, 15, v25
        s_cbranch_vccz {lab}q
        s_sub_u32 s65, s65, 1
        s_cbranch_scc1 {END}
        s_sleep 4
        s_branch {lab}p
        {lab}q:
        s_mov_b32 s{C.S_PRHO}, 2
        s_mov_b32 s{C.S_PKK}, 0
        s_add_u32 s{C.S_PFA}, s{C.S_PFO}, 8
        """)
        A(f"""
        s_and_b32 s{C.S_TAG}, s{S_NONCE}, 0x3fff3f00
        s_add_u32 s{C.S_TAG}, s{C.S_TAG}, 1
        s_lshl_b32 s{C.S_TAG4}, s{C.S_TAG}, 2
        s_lshl_b32 s{C.S_CFO}, s{C.S_H}, 2
        s_add_u32 s{C.S_CFO}, s{C.S_CFO}, {WS_FLAGS + F_C}
        """)
        C.init_state(A, flags=True)
        tl(2, (14,15))
        n0 = len(A.lines)
        if "cprof" in opt and mode == 0:
            for i in list(range(86,94))+[98,99,100,101]: A(f"s_mov_b32 s{i}, 0")
            A("s_memtime s[2:3]\ns_waitcnt lgkmcnt(0)\ns_mov_b32 s48, s2")
            for i in range(8): A(f"s_mov_b32 s{70+2*i}, s2")
        C.chain_step(A, st, prof=("cprof" in opt and mode == 0), nsteps=64, opt=("flags",) + tuple(o for o in opt if o in ("nopub","nopf","fixkv")))
        if "cprof" in opt and mode == 0:
            for i in range(8): A(f"v_mov_b32 v{28+i}, s{86+i}")
            A(f"""
            v_mov_b32 v44, s98
            v_mov_b32 v45, s99
            v_mov_b32 v46, s100
            v_mov_b32 v47, s101
            s_lshl_b32 s6, s{C.S_H}, 2
            s_add_u32 s6, s6, s{C.S_W}
            s_mul_i32 s6, s6, 96
            s_add_u32 s6, s6, {WS_FLAGS + 49152 + 32768}
            v_mov_b32 v48, s6
            s_mov_b64 exec, 1
            """)
            for j in range(1, 6): A(f"buffer_store_dwordx4 v[{24+4*j}:{27+4*j}], v48, s[8:11], 0 offen offset:{16*j}")
            A("s_mov_b64 exec, -1\ns_waitcnt vmcnt(0)")
        hz += check_hazards(A.lines[n0:], "chain")
        tl(3, (14,15))
        A("s_endpgm")
    A.label(END)
    return A, hz

HEADER = open("concat_heads__memory_aug_recurrent_mem_tr__grouped_kv_mqa__prompt.s.ref").read().split("; Override launch geometry")[0]

def full_text(opt=()):
    A, hz = build(opt)
    for m in hz: print("HAZARD", m)
    txt = HEADER + "; @launch grid=(256,1,1) block=(256,1,1) lds=163840\n"
    txt += f""".amdgcn_target "amdgcn-amd-amdhsa--gfx950"
.text
.globl {KNAME}
.p2align 8
.type {KNAME},@function
{KNAME}:
"""
    body = "\n".join(l.split(";")[0].rstrip().lstrip() if not l.lstrip().startswith(";") else "" for l in A.lines)
    body = "\n".join(l for l in body.split("\n") if l)
    if "noalign" not in opt:
        import alignpass
        body = "\n".join(alignpass.align(body.split("\n"), GRAN))
    txt += body + f"""
s_endpgm
.section .rodata,"a"
.p2align 6
.amdhsa_kernel {KNAME}
  .amdhsa_next_free_vgpr 512
  .amdhsa_next_free_sgpr 102
  .amdhsa_accum_offset 256
  .amdhsa_group_segment_fixed_size 0
  .amdhsa_kernarg_size 120
  .amdhsa_user_sgpr_count 2
  .amdhsa_user_sgpr_kernarg_segment_ptr 1
  .amdhsa_system_sgpr_workgroup_id_x 1
.end_amdhsa_kernel
"""
    return txt

if __name__ == "__main__":
    opt = tuple(a[2:] for a in sys.argv[1:] if a.startswith("--"))
    for a in sys.argv[1:]:
        if a.startswith("d="): C.DELAYS[:] = [int(x) for x in a[2:].split(",")]
        if a.startswith("g="): C.GSLEEP = int(a[2:])
        if a.startswith("gran="): GRAN = int(a[5:])
        if a.startswith("gm="): C.GMODE = int(a[3:])
        if a.startswith("g01="): C.G01 = int(a[4:])
        if a.startswith("pg="): C.PGAP = int(a[3:])
        if a.startswith("p0="): C.PUB0 = int(a[3:])
        if a.startswith("pgp="): C.PUBG = int(a[4:])
        if a.startswith("rg="): C.RGAP = int(a[3:])
    t = full_text(opt)
    out = "concat_heads__memory_aug_recurrent_mem_tr__grouped_kv_mqa__prompt.s"
    for a in sys.argv[1:]:
        if a.startswith("o="): out = a[2:]
    open(out, "w").write(t)
    print("written", len(t), "bytes")
```

```python
from asmlib import *
from layout import *
import struct

def f32bits(x): return struct.unpack("<I", struct.pack("<f", x))[0]

V_L16, V_IDX, V_QKW, V_TR, V_OW, V_P1, V_RD, V_MST, V_WO, V_SR = 0, 1, 2, 3, 4, 5, 6, 7, 8, 9
V_ONES = 52
V_SX = 14
V_PM = 18
V_ZERO = 19
V_OUT = 14
V_SEL = 48
V_PF = 6
NRING = 4
V_VX0, V_VX1 = 20, 10
S_ONES = 12
V_R = 24
V_AQ = 40
V_F23 = 48
V_AK = 56
V_KA = 64
V_KB = 72
def F(c): return [V_AQ, V_AQ + 4, V_F23, V_F23 + 4][c]
def KX(c): return [V_KA, V_KA + 4, V_KB, V_KB + 4][c]
V_AV = V_KA
V_VX = V_KB
V_AVX = V_KA
V_AK2 = V_AK
V_S0 = V_AK
V_SM = V_AK + 4
V_F2 = V_AQ
V_ONE2 = 14

S_H, S_W, S_STEP, S_FAIL = 16, 17, 18, 19
S_P1, S_MC, S_MN, S_MT = 20, 21, 22, 23
S_KV, S_KM, S_SPIN = 24, 25, 27
S_T0, S_T1, S_T2 = 28, 29, 30
S_GW = 31
S_VALID = 32
S_MMASK = 34
S_TAU512 = 36
S_T3, S_T4 = 37, 38
S_TAG, S_TAG4 = 39, 40
S_MC6 = 46
S_SELO = 50
S_KXO, S_VXO = 47, 49
SRD_WS = 8
SRD_W = 12
SPIN_MAX = 400000
STAMPS = ['0','3','5','7','8','11','12','13']
DELAYS = [0, 1, 2]
S_LHI = 44
S_CFO = 43
S_PFO, S_PRHO, S_PKK = 42, 68, 69
S_M3, S_MP, S_MP1 = 56, 58, 60
S_WV = 57
S_MCH, S_CFV, S_KMC = 62, 63, 64
S_PF0, S_PF1, S_PFA = 45, 26, 51
GSLEEP = 0
PGAP = 1
WOP = [4,4,3,3,3,3,3,3,3]
GMODE = 0
PUB0 = 2
PUBG = 1
RGAP = 2
G01 = 0
CUT = None
PROF0 = 86

def wfrag(mat, et, c):
    idx = mat * 18 + et * 9 + c
    if idx < 32: return ar(idx * 8, 8)
    return vr(80 + (idx - 32) * 8, 8)
def wfrag_regs(mat, et, c):
    idx = mat * 18 + et * 9 + c
    return ("a", idx * 8) if idx < 32 else ("v", 80 + (idx - 32) * 8)

def load_qkv(A, kaoff, mat):
    lw = A.uid("LW"); lr = A.uid("LR")
    A(f"""
    s_load_dwordx2 s[4:5], s[0:1], {kaoff}
    s_waitcnt lgkmcnt(0)
    s_lshl_b32 s{S_T0}, s{S_H}, 8
    s_add_u32 s{SRD_W}, s4, s{S_T0}
    s_addc_u32 s{SRD_W+1}, s5, 0
    s_sub_u32 s{SRD_W+2}, {576*8192}, s{S_T0}
    s_mov_b32 s{SRD_W+3}, 0x00020000
    v_lshrrev_b32 v24, 8, v{V_L16}          ; l>>4
    v_and_b32 v25, 1, v24
    s_lshl_b32 s{S_T0}, s{S_W}, 1           ; (w&1)<<1 | (w>>1)<<2 == w<<1
    v_or_b32 v25, s{S_T0}, v25              ; f
    v_bfe_u32 v26, v{V_L16}, 5, 3           ; (l&15)>>1
    v_xor_b32 v26, v26, v25
    v_lshlrev_b32 v26, 5, v26
    v_lshl_add_u32 v26, v24, 13, v26
    v_and_b32 v27, 16, v{V_L16}             ; (l&1)*16
    v_add_u32 v26, v26, v27
    s_lshl_b32 s{S_T0}, s{S_W}, 15          ; soffset = a*32768, a = 4i + w
    s_lshl_b32 s{S_T1}, s{S_W}, 10
    s_add_u32 s{S_T1}, s{S_T1}, {L_WO}      ; m0 = L_WO + a*1024
    s_mov_b32 s{S_T2}, 0
    {lw}:
    s_mov_b32 m0, s{S_T1}
    s_nop 0
    buffer_load_dwordx4 v26, s[{SRD_W}:{SRD_W+3}], s{S_T0} offen lds
    s_add_u32 s{S_T0}, s{S_T0}, {4*32768}
    s_add_u32 s{S_T1}, s{S_T1}, 4096
    s_add_u32 s{S_T2}, s{S_T2}, 1
    s_cmp_lt_u32 s{S_T2}, 36
    s_cbranch_scc1 {lw}
    s_waitcnt vmcnt(0)
    s_barrier
    v_lshrrev_b32 v24, 8, v{V_L16}          ; gB
    v_bfe_u32 v25, v{V_L16}, 6, 2           ; r = n>>2
    v_bfe_u32 v26, v{V_L16}, 4, 2           ; cq = n&3
    v_lshrrev_b32 v27, 1, v24               ; gB>>1
    v_lshlrev_b32 v27, 4, v27
    v_lshrrev_b32 v28, 1, v25               ; r>>1
    v_lshl_add_u32 v27, v28, 3, v27
    v_and_b32 v29, 1, v24                   ; gB&1
    v_lshl_add_u32 v27, v29, 2, v27
    v_and_b32 v30, 1, v25                   ; r&1
    v_add_u32 v27, v27, v30                 ; row
    v_lshlrev_b32 v27, 8, v27
    v_lshl_add_u32 v30, v29, 1, v30
    v_lshl_add_u32 v30, v28, 2, v30         ; f
    v_lshl_add_u32 v27, v26, 3, v27         ; + cq*8
    v_add_u32 v27, {L_WO}, v27
    s_lshl_b32 s{S_T0}, s{S_W}, 1
    """)
    for et in range(2):
        A(f"""
        s_add_u32 s{S_T1}, s{S_T0}, {et}
        v_xor_b32 v31, s{S_T1}, v30
        v_lshl_add_u32 v31, v31, 5, v27
        """)
        for c in range(9):
            kind, base = wfrag_regs(mat, et, c)
            for Hh in range(2):
                for rr in range(2):
                    reg = base + 4 * Hh + 2 * rr
                    A(f"ds_read_b64_tr_b16 {kind}[{reg}:{reg+1}], v31 offset:{Hh*8192 + rr*512}")
            A(f"s_waitcnt lgkmcnt(0)\nv_add_u32 v31, 16384, v31")
    A("s_barrier")

def load_wo(A):
    lw = A.uid("LW")
    A(f"""
    s_load_dwordx2 s[4:5], s[0:1], {KA['A_Wo']}
    s_waitcnt lgkmcnt(0)
    s_mul_i32 s{S_T0}, s{S_H}, {128*1152}
    s_add_u32 s{SRD_W}, s4, s{S_T0}
    s_addc_u32 s{SRD_W+1}, s5, 0
    s_mov_b32 s{SRD_W+2}, {128*1152}
    s_mov_b32 s{SRD_W+3}, 0x00020000
    v_lshrrev_b32 v24, 5, v{V_L16}          ; l>>1
    v_mul_u32_u24 v24, 1152, v24
    v_and_b32 v25, 16, v{V_L16}
    v_add_u32 v24, v24, v25
    """)
    for sg in range(3):
        for tau in range(3):
            for a in range(4):
                A(f"""
                s_mul_i32 s{S_T0}, s{S_W}, 96
                s_add_u32 s{S_T0}, s{S_T0}, {(12*sg + tau)*32 + a*32*1152}
                s_mul_i32 s{S_T1}, s{S_W}, 36864
                s_add_u32 s{S_T1}, s{S_T1}, {L_WO + (sg*3+tau)*4096 + a*1024}
                s_mov_b32 m0, s{S_T1}
                s_nop 0
                buffer_load_dwordx4 v24, s[{SRD_W}:{SRD_W+3}], s{S_T0} offen lds
                """)
    A("s_waitcnt vmcnt(0)")
    A(f"""
    v_lshrrev_b32 v24, 8, v{V_L16}          ; gB
    v_bfe_u32 v25, v{V_L16}, 6, 2           ; r
    v_bfe_u32 v26, v{V_L16}, 4, 2           ; cq
    v_and_b32 v27, 1, v24
    v_lshlrev_b32 v27, 5, v27
    v_lshrrev_b32 v28, 1, v25
    v_lshl_add_u32 v27, v28, 4, v27
    v_lshrrev_b32 v28, 1, v24
    v_lshl_add_u32 v27, v28, 2, v27
    v_and_b32 v28, 1, v25
    v_add_u32 v27, v27, v28
    v_lshlrev_b32 v27, 5, v27
    v_lshl_add_u32 v27, v26, 3, v27
    s_mul_i32 s{S_T1}, s{S_W}, 36864
    s_add_u32 s{S_T1}, s{S_T1}, {L_WO}
    v_add_u32 v27, s{S_T1}, v27
    """)
    for sl in range(9):
        for k in range(2):
            for Hh in range(2):
                for rr in range(2):
                    reg = 32 + k * 8 + Hh * 4 + rr * 2
                    A(f"ds_read_b64_tr_b16 v[{reg}:{reg+1}], v27 offset:{sl*4096 + (64*k + 8*Hh + 2*rr)*32}")
        A("s_waitcnt lgkmcnt(0)")
        for k in range(2):
            for Hh in range(2):
                reg = 32 + k * 8 + Hh * 4
                A(f"ds_write_b128 v{V_WO}, v[{reg}:{reg+3}] offset:{sl*4096 + k*2048 + Hh*1024}")
        A("s_waitcnt lgkmcnt(0)")
    A("s_barrier")

class Lg:
    def __init__(self, A): self.A = A; self.n = 0; self.done = 0
    def issue(self, txt):
        self.A(txt); self.n += 1; return self.n
    def wait(self, i):
        if i <= self.done: return
        cnt = self.n - i
        assert cnt <= 15, cnt
        self.A(f"s_waitcnt lgkmcnt({cnt})"); self.done = i
    def waitall(self):
        self.wait(self.n)

def smf(d, a, b): return f"v_smfmac_f32_16x16x64_bf16 {vr(d,4)}, {vr(a,4)}, {b}, v{V_IDX}"
def mf32(d, a, b, c): return f"v_mfma_f32_16x16x32_bf16 {vr(d,4)}, {vr(a,4)}, {vr(b,4)}, {c}"
def mf16(d, a, b, c): return f"v_mfma_f32_16x16x16_bf16 {vr(d,4)}, {vr(a,2)}, {vr(b,2)}, {c}"

def check4(A, r, tmp):
    A(f"v_max3_u32 v{tmp}, v{r}, v{r+1}, v{r+2}\nv_max_u32 v{tmp}, v{tmp}, v{r+3}\nv_cmp_eq_u32 vcc, -1, v{tmp}")


def setup_regs(A):
    A(f"""
    v_lshrrev_b32 v24, 6, v0
    v_and_b32 v25, 63, v0               ; lane
    s_nop 0
    v_readfirstlane_b32 s{S_W}, v24
    v_lshlrev_b32 v{V_L16}, 4, v25      ; l16
    v_and_b32 v26, 15, v25              ; n
    v_lshrrev_b32 v27, 4, v25           ; g
    v_bfe_u32 v28, v26, 1, 1            ; hf(n)
    v_mul_u32_u24 v29, 0xAAAA, v28
    v_add_u32 v{V_IDX}, 0x4444, v29
    s_lshl_b32 s{S_T0}, s{S_W}, 10
    s_add_u32 s{S_T0}, s{S_T0}, {L_QK}
    v_lshrrev_b32 v30, 2, v26               ; n>>2
    v_xor_b32 v30, v30, v27                 ; g ^ (n>>2)
    v_lshlrev_b32 v29, 5, v26
    v_lshl_add_u32 v29, v30, 3, v29
    v_add_u32 v{V_QKW}, s{S_T0}, v29
    v_lshrrev_b32 v29, 2, v26
    v_lshl_add_u32 v29, v27, 2, v29
    v_lshlrev_b32 v29, 5, v29
    v_and_b32 v30, 3, v26
    v_xor_b32 v30, v30, v27
    v_lshl_add_u32 v29, v30, 3, v29
    v_add_u32 v{V_TR}, {L_QK}, v29
    ; OW = L_O + (w>>1)*1024 + (g*16 + n - 2)*16 + (w&1)*8
    s_lshr_b32 s{S_T0}, s{S_W}, 1
    s_lshl_b32 s{S_T0}, s{S_T0}, 10
    s_and_b32 s{S_T1}, s{S_W}, 1
    s_lshl_b32 s{S_T1}, s{S_T1}, 3
    s_add_u32 s{S_T0}, s{S_T0}, s{S_T1}
    s_add_u32 s{S_T0}, s{S_T0}, {L_O - 32}
    v_add_u32 v{V_OW}, s{S_T0}, v{V_L16}
    s_lshl_b32 s{S_T0}, s{S_W}, 3
    v_lshrrev_b32 v29, 3, v26
    v_lshl_add_u32 v29, v27, 1, v29
    v_add_u32 v29, s{S_T0}, v29
    v_lshlrev_b32 v29, 12, v29
    v_and_b32 v30, 7, v26
    v_lshl_add_u32 v29, v30, 4, v29
    s_lshl_b32 s{S_T0}, s{S_H}, 7
    v_add_u32 v{V_P1}, s{S_T0}, v29
    s_lshl_b32 s51, s{S_W}, 5
    s_add_u32 s51, s51, s{S_H}
    s_lshl_b32 s{S_T1}, s51, 12
    v_lshl_add_u32 v29, v27, 1, v28
    v_lshlrev_b32 v29, 7, v29
    v_lshrrev_b32 v30, 2, v26
    v_lshlrev_b32 v30, 1, v30
    v_and_b32 v31, 1, v26
    v_add_u32 v30, v30, v31                 ; irow(n)
    v_lshl_add_u32 v29, v30, 4, v29
    v_add_u32 v{V_RD}, s{S_T1}, v29
    v_lshrrev_b32 v29, 1, v{V_L16}
    v_add_u32 v{V_SR}, {L_S}, v29
    s_lshr_b32 s{S_T1}, s51, 3
    s_mul_i32 s{S_T1}, s{S_T1}, 768
    s_and_b32 s{S_T2}, s51, 7
    s_lshl_b32 s{S_T2}, s{S_T2}, 5
    s_add_u32 s{S_T1}, s{S_T1}, s{S_T2}
    v_bfe_u32 v29, v26, 1, 2                ; tau
    v_lshlrev_b32 v29, 8, v29
    v_lshl_add_u32 v29, v31, 4, v29
    v_lshl_add_u32 v29, v27, 2, v29
    v_add_u32 v{V_MST}, s{S_T1}, v29
    s_mul_i32 s{S_T0}, s{S_W}, 36864
    s_add_u32 s{S_T0}, s{S_T0}, {L_WO}
    v_add_u32 v{V_WO}, s{S_T0}, v{V_L16}
    v_mov_b32 v{V_ZERO}, 0
    s_mov_b32 s{S_VALID}, 0xcccccccc
    s_mov_b32 s{S_VALID+1}, 0xcccccccc
    s_mov_b32 s{S_MMASK}, 0x003f003f
    s_mov_b32 s{S_MMASK+1}, 0x003f003f
    s_lshr_b32 s{S_TAU512}, s{S_W}, 1
    s_lshl_b32 s{S_TAU512}, s{S_TAU512}, 9
    s_lshl_b32 s{S_GW}, s{S_W}, 10
    v_mov_b32 v{V_PM}, 0
    s_mov_b32 s{S_FAIL}, 0
    s_mov_b32 s{S_T4}, 0x21800000       ; 2^-60
    s_mov_b32 s{S_LHI}, 0x5f800000      ; 2^64
    """)

def init_state(A, flags=False):
    L3 = A.uid("L3")
    A(f"""
    s_mov_b32 s{S_STEP}, 0
    s_mov_b32 s{S_P1}, {WS_P1}
    s_mov_b32 s{S_MC}, {WS_M}
    s_mov_b32 s{S_MN}, {WS_M + M_SLOT}
    s_mov_b32 s{S_MT}, {WS_M + 2*M_SLOT}
    s_lshl_b32 s{S_T0}, s{S_H}, 14
    s_add_u32 s{S_KV}, s{S_T0}, {WS_KV}
    s_mov_b32 s{S_KM}, {WS_MEMS}
    s_add_u32 s{S_PF0}, s{S_KV}, {32*16384}
    s_add_u32 s{S_PF1}, s{S_PF0}, 8192
    s_cmp_eq_u32 s{S_W}, 3
    s_cmp_eq_u32 s{S_W}, 2
    s_cselect_b32 s{S_T0}, 1, 0
    s_cmp_lt_u32 s{S_H}, 9
    s_cselect_b32 s{S_T1}, s{S_T0}, 0
    s_cselect_b32 s{S_MCH}, s{S_H}, 0
    s_and_b32 s{S_T1}, s{S_T1}, {1 if flags else 0}
    s_lshl_b32 s{S_MCH}, s{S_MCH}, 10
    s_mov_b32 s{S_MP1}, s{S_T1}
    s_mov_b32 s{S_MP1+1}, 0
    s_sub_u32 s{S_MP}, 0, s{S_T1}
    s_mov_b32 s{S_MP+1}, s{S_MP}
    s_cmp_eq_u32 s{S_W}, 3
    s_cselect_b32 s{S_WV}, 1, s{S_T1}
    s_add_u32 s{S_KMC}, s{S_KM}, s{S_MCH}
    s_mov_b32 s{S_CFV}, s7
    s_add_u32 s{S_MC6}, s{S_MC}, 6144
    s_lshl_b32 s{S_T0}, s{S_TAU512}, 3
    s_add_u32 s{S_KXO}, s{S_T0}, s{S_KV}
    s_lshl_b32 s{S_T0}, s{S_W}, 11
    s_add_u32 s{S_T0}, s{S_T0}, s{S_KV}
    s_add_u32 s{S_VXO}, s{S_T0}, 8192
    s_mov_b32 s{S_T3}, {f32bits(QSCALE):#x}
    s_mov_b32 s{S_SPIN}, {SPIN_MAX}
    s_mov_b32 s{S_ONES}, 0x3f803f80
    s_mov_b32 s{S_ONES+1}, 0x3f803f80
    s_mov_b32 s{S_SELO}, {WS_SEL}
    v_add_u32 v{V_PM}, s{S_GW}, v{V_L16}
    s_cmp_eq_u32 s{S_W}, 3
    s_cbranch_scc0 {L3}
    v_lshlrev_b32 v{V_PF}, 3, v{V_L16}
    {L3}:
    """)
    ws = f"s[{SRD_WS}:{SRD_WS+3}]"
    for c in range(4): A(f"buffer_load_dwordx4 {vr(KX(c),4)}, v{V_L16}, {ws}, s{S_KXO} offen offset:{c*1024}")
    for et in range(2): A(f"buffer_load_dwordx4 {vr([V_VX0,V_VX1][et],4)}, v{V_L16}, {ws}, s{S_VXO} offen offset:{et*1024}")
    A("s_waitcnt vmcnt(0)")
    for b in (V_AQ, V_AK):
        for i in range(4): A(f"v_mov_b64 {vr(b+2*i,2)}, 0")

def housekeeping():
    return [
      f"s_xor_b32 s{S_P1}, s{S_P1}, {P1_SLOT}",
      f"s_mov_b32 s{S_T0}, s{S_MC}", f"s_mov_b32 s{S_MC}, s{S_MN}", f"s_mov_b32 s{S_MN}, s{S_MT}", f"s_mov_b32 s{S_MT}, s{S_T0}",
      f"s_add_u32 s{S_KV}, s{S_KV}, {32*16384}", f"s_add_u32 s{S_KM}, s{S_KM}, 16384",
      f"s_add_u32 s{S_STEP}, s{S_STEP}, 1", f"s_add_u32 s{S_TAG}, s{S_TAG}, 1", f"s_add_u32 s{S_TAG4}, s{S_TAG4}, 4",
      f"s_add_u32 s{S_MC6}, s{S_MC}, 6144", f"s_add_u32 s{S_KMC}, s{S_KMC}, 16384", f"s_add_u32 s{S_CFV}, s{S_CFV}, 1",
      f"s_add_u32 s{S_KXO}, s{S_KXO}, {32*16384}", f"s_add_u32 s{S_VXO}, s{S_VXO}, {32*16384}",
    ]


def chain_step(A, st, prof=False, nsteps=64, opt=()):
    ws = f"s[{SRD_WS}:{SRD_WS+3}]"
    CUTL = A.uid("CUT")
    def stamp(name):
        name = str(name)
        if CUT == name: A(f"s_memtime s[72:73]\ns_branch {CUTL}")
        if not prof or name not in STAMPS: return
        i = STAMPS.index(name)
        if "abs" in opt: A(f"s_memrealtime s[{70+2*i}:{71+2*i}]")
        else: A(f"s_memtime s[{70+2*i}:{71+2*i}]")
    def stamp_acc():
        if not prof: return
        A("s_waitcnt lgkmcnt(0)")
        if "abs" in opt:
            A(f"s_cmp_eq_u32 s{S_STEP}, 31")
            for i in range(len(STAMPS)): A(f"s_cselect_b32 s{PROF0+i}, s{70+2*i}, s{PROF0+i}")
            return
        prev = 48
        for i in range(len(STAMPS)):
            A(f"s_sub_u32 s52, s{70+2*i}, s{prev}\ns_add_u32 s{PROF0+i}, s{PROF0+i}, s52")
            prev = 70+2*i
        A(f"s_mov_b32 s48, s{70+2*(len(STAMPS)-1)}")
    STEP = A.uid("STEP"); FAIL = A.uid("FAIL"); DONE = A.uid("DONE"); JOIN = A.uid("JOIN"); FINAL = A.uid("FINAL")
    GA, GB, GC, GC2 = 24, 28, 48, 52
    TMP = 14
    def spin(extra=""):
        A(f"s_sub_u32 s{S_SPIN}, s{S_SPIN}, 1\ns_cbranch_scc1 {FAIL}")
        if prof and extra: A(f"s_add_u32 {extra}, {extra}, 1")
    def chk(r, lab, neg=False):
        A(f"v_max3_u32 v{TMP}, v{r}, v{r+1}, v{r+2}\nv_max_u32 v{TMP}, v{TMP}, v{r+3}\nv_cmp_eq_u32 vcc, -1, v{TMP}\n{'s_cbranch_vccz' if neg else 's_cbranch_vccnz'} {lab}")
    def ld(r, which):
        so, off = [(S_MC, 0), (S_MC, 3072), (S_MC6, 0)][which]
        return f"buffer_load_dwordx4 {vr(r,4)}, v{V_PM}, {ws}, s{so} offen offset:{off} sc1"
    def wr(r, which): return f"ds_write_b128 v{V_PM}, {vr(r,4)} offset:{L_MEM + 3072*which}"

    P0, P1, GOK = A.uid("P0"), A.uid("P1"), A.uid("GOK")
    A.label(STEP)
    A(f"s_cmp_eq_u32 s{S_W}, 3\ns_cbranch_scc1 {JOIN}")
    S1 = (64, 68, 72); S2 = (48, 52, 76)
    def lds3(S): return "\n".join(ld(S[i], i) for i in range(3))
    def wrs3(S): return "\n".join(wr(S[i], i) for i in range(3))
    def chk3(S, lab, neg=False):
        regs = [S[i]+j for i in range(3) for j in range(4)]
        A(f"v_max3_u32 v{TMP}, v{regs[0]}, v{regs[1]}, v{regs[2]}")
        for j in range(3, 11, 2): A(f"v_max3_u32 v{TMP}, v{regs[j]}, v{regs[j+1]}, v{TMP}")
        A(f"v_max_u32 v{TMP}, v{regs[11]}, v{TMP}\nv_cmp_eq_u32 vcc, -1, v{TMP}\n{'s_cbranch_vccz' if neg else 's_cbranch_vccnz'} {lab}")
    if GMODE == 0:
        A(lds3(S1))
        if PGAP: A(f"s_sleep {PGAP}")
        A.label(P0)
        A(lds3(S2))
        A("s_waitcnt vmcnt(3)")
        A(wrs3(S1))
        chk3(S1, GOK, neg=True)
        spin("s99")
        A(lds3(S1))
        A("s_waitcnt vmcnt(3)")
        A(wrs3(S2))
        chk3(S2, P0)
    else:
        GA, GB, GC, GC2 = 64, 68, 72, 76
        CK, AB = A.uid("CK"), A.uid("AB")
        A(ld(GA,0)); A(ld(GB,1)); A(ld(GC,2))
        A.label(P0)
        A(ld(GC2,2))
        A("s_waitcnt vmcnt(1)")
        A(wr(GC,2))
        chk(GC, CK, neg=True)
        spin("s99")
        A(ld(GC,2))
        A("s_waitcnt vmcnt(1)")
        A(wr(GC2,2))
        chk(GC2, P0)
        A.label(CK)
        A(wr(GA,0)); A(wr(GB,1))
        A(f"v_max3_u32 v{TMP}, v{GA}, v{GA+1}, v{GA+2}\nv_max3_u32 v{TMP}, v{GA+3}, v{GB}, v{TMP}\nv_max3_u32 v{TMP}, v{GB+1}, v{GB+2}, v{TMP}\nv_max_u32 v{TMP}, v{TMP}, v{GB+3}\nv_cmp_eq_u32 vcc, -1, v{TMP}")
        A(f"s_cbranch_vccz {GOK}")
        spin("s100")
        A(ld(GA,0)); A(ld(GB,1)); A(f"s_waitcnt vmcnt(0)\ns_branch {CK}")
    A.label(GOK)
    A("s_waitcnt lgkmcnt(0)")
    A.label(JOIN)
    stamp(0)
    A("s_barrier")
    if CUT: A("s_memtime s[70:71]")
    L = Lg(A)
    Q, K, V = 0, 1, 2
    order = [(Q,c) for c in range(9)] + [(K,c) for c in range(9)] + [(V,c) for c in range(9)]
    rid = {}; nxt = [0]
    def rd():
        i = nxt[0]
        if i >= len(order): return False
        rid[i] = L.issue(f"ds_read_b128 {vr(V_R + 4*(i%NRING), 4)}, v{V_L16} offset:{L_MEM + order[i][1]*1024}")
        nxt[0] += 1
        return True
    ACCS = [V_AQ, V_AK2, V_AVX]
    def item(i, f1=(), f2=(), d1=(), d2=()):
        mat, c = order[i]
        L.wait(rid[i])
        skip = ("noV" in opt and mat == 2) or ("noQ" in opt and mat == 0) or ("noK" in opt and mat == 1)
        if not skip: A(smf(ACCS[mat], V_R + 4*(i%NRING), wfrag(mat,0,c)))
        for t, k in d1: ids[k] = L.issue(t)
        for x in f1: A(x)
        if not skip: A(smf(ACCS[mat]+4, V_R + 4*(i%NRING), wfrag(mat,1,c)))
        while nxt[0] < i + 1 + NRING and rd(): pass
        for t, k in d2: ids[k] = L.issue(t)
        for x in f2: A(x)
    ids = {}
    if "flags" in opt:
        A(f"s_cmp_eq_u32 s{S_STEP}, {nsteps-1}\ns_cbranch_scc1 {FINAL}")
    for _ in range(NRING): rd()
    npf = 0 if "nopf" in opt else 1
    PF3, PF3b = A.uid("PF3"), A.uid("PF3b")
    kvl = [f"buffer_load_dwordx4 {vr(KX(c),4)}, v{V_L16}, {ws}, s{S_KXO} offen offset:{c*1024}" for c in range(4)] + \
          [f"buffer_load_dwordx4 {vr([V_VX0,V_VX1][et],4)}, v{V_L16}, {ws}, s{S_VXO} offen offset:{et*1024}" for et in range(2)]
    for i in range(0, 9): item(i, (), [kvl[i//2]] if i % 2 == 0 else ())
    stamp(1)
    qfold = []
    for t in range(2):
        b = V_AQ + 4*t
        qfold += [f"v_add_f32 v{b}, v{b}, v{b+2}", f"v_add_f32 v{b+1}, v{b+1}, v{b+3}",
                  f"v_mul_f32 v{b}, s{S_T3}, v{b}", f"v_mul_f32 v{b+1}, s{S_T3}, v{b+1}",
                  f"v_cvt_pk_bf16_f32 v{V_SX+t}, v{b}, v{b+1}"]
    item(9, (), [kvl[5]])
    item(10, (), qfold[0:2]); item(11, qfold[2:4], qfold[4:6]); item(12, qfold[6:8], qfold[8:10])
    qw = L.issue(f"ds_write2_b32 v{V_QKW}, v{V_SX}, v{V_SX+1} offset0:1 offset1:129")
    stamp("qw")
    mrd = None
    PUBL, PUBb = A.uid("PUBL"), A.uid("PUBb")
    if "flags" in opt:
        A(f"s_waitcnt vmcnt(6)\nv_add_u32 v{V_PM}, s{S_MCH}, v{V_L16}")
        mrd = L.issue(f"ds_read_b128 {vr(V_F23,4)}, v{V_PM} offset:{L_MEM}")
    item(13)
    if "flags" in opt:
        L.wait(mrd)
        A(f"s_cmp_lg_u32 s{S_MP}, 0\ns_cbranch_scc1 {PUBL}")
        A.label(PUBb)
    item(14)
    if npf:
        A(f"s_cmp_eq_u32 s{S_W}, 3\ns_cbranch_scc1 {PF3}")
        A.label(PF3b)
    W2, W2b = A.uid("W2"), A.uid("W2b")
    A(f"s_cmp_lg_u32 s{S_WV}, 0\ns_cbranch_scc1 {W2}\ns_waitcnt vmcnt(0)")
    A.label(W2b)
    stamp("preqb")
    L.wait(qw)
    A("s_barrier")
    stamp("qb")
    f2k = [(cc,Hh) for cc in range(4) for Hh in range(2)]
    fT = [f"ds_read_b64_tr_b16 {vr(F(cc)+2*Hh,2)}, v{V_TR} offset:{cc*1024 + Hh*512}" for cc, Hh in f2k]
    for j in range(4): ids[("f", j)] = L.issue(fT[j])
    item(15, d1=[(fT[4], ("f",4)), (fT[5], ("f",5))], d2=[(fT[6], ("f",6))])
    item(16, d1=[(fT[7], ("f",7))], f1=[f"v_add_u32 v{V_PM}, s{S_TAU512}, v{V_SR}"])
    item(17)
    stamp(3)
    AV = V_AVX
    L.wait(ids[("f",3)])
    A(mf32(V_SX, KX(0), F(0), "0"))
    A(mf32(V_SX, KX(1), F(1), vr(V_SX,4)))
    L.wait(ids[("f",7)])
    A(mf32(V_SX, KX(2), F(2), vr(V_SX,4)))
    A(mf32(V_SX, KX(3), F(3), vr(V_SX,4)))
    for i in range(4): A(f"v_mov_b64 {vr(V_AVX+2*i,2)}, 0")
    A("s_nop 0")
    stamp("sx")
    KD = V_AK2
    kf = []
    for t in range(2):
        b = V_AK2 + 4*t
        kf += [f"v_add_f32 v{b}, v{b}, v{b+2}", f"v_add_f32 v{b+1}, v{b+1}, v{b+3}"]
    kc = [f"v_cvt_pk_bf16_f32 v{V_AK2+4*t}, v{V_AK2+4*t}, v{V_AK2+4*t+1}" for t in range(2)]
    exo = [f"v_exp_f32 v{V_SX+r}, v{V_SX+r}" for r in range(4)]
    item(18, kf[0:1], kf[1:2]); item(19, kf[2:3], kf[3:4]); item(20, kc[0:1], kc[1:2])
    kw = L.issue(f"ds_write2_b32 v{V_QKW}, v{V_AK2}, v{V_AK2+4} offset0:0 offset1:128")
    item(21, exo[0:1], exo[1:2]); item(22, exo[2:3], exo[3:4])
    stamp("prekb")
    L.wait(kw)
    A("s_barrier")
    stamp("kb")
    pc = [f"v_cvt_pk_bf16_f32 v{V_SX}, v{V_SX}, v{V_SX+1}", f"v_cvt_pk_bf16_f32 v{V_SX+1}, v{V_SX+2}, v{V_SX+3}"]
    A(pc[0]); A(pc[1])
    sw = L.issue(f"ds_write_b64 v{V_PM}, {vr(V_SX,2)}")
    item(23, d1=[(fT[0], ("g",0)), (fT[1], ("g",1))], d2=[(fT[2], ("g",2)), (fT[3], ("g",3))])
    item(24, d1=[(fT[4], ("g",4)), (fT[5], ("g",5))], d2=[(fT[6], ("g",6)), (fT[7], ("g",7))])
    item(25)
    stamp("prepb")
    L.wait(sw)
    A("s_barrier")
    s0 = L.issue(f"ds_read2_b64 {vr(V_S0,4)}, v{V_SR} offset0:0 offset1:64")
    stamp(4)
    ones = [f"v_mov_b64 {vr(V_ONE2,2)}, s[{S_ONES}:{S_ONES+1}]", f"v_mov_b64 {vr(V_ONE2+2,2)}, s[{S_ONES}:{S_ONES+1}]"]
    item(26, ones[0:1], ones[1:2])
    NF = 18
    WB = [V_KB, V_R, V_R+8, V_AK, V_AQ, V_KA]
    NB = len(WB)
    wf = {}
    def wrd(f):
        if "noWrd" in opt:
            wf[f] = L.n; return
        if f < NF:
            sl, k = divmod(f, 2)
            L.issue(f"ds_read_b128 {vr(WB[f%NB],4)}, v{V_WO} offset:{sl*4096 + k*2048}")
            wf[f] = L.issue(f"ds_read_b128 {vr(WB[f%NB]+4,4)}, v{V_WO} offset:{sl*4096 + k*2048 + 1024}")
    sm = V_SM
    L.wait(ids[("g",3)])
    A(mf32(sm, F(0), F(0), "0"))
    A(mf32(sm, F(1), F(1), vr(sm,4)))
    L.wait(ids[("g",7)])
    A(mf32(sm, F(2), F(2), vr(sm,4)))
    A(mf32(sm, F(3), F(3), vr(sm,4)))
    wrd(0)
    L.wait(s0)
    vfold = []
    for b in (AV, AV+4):
        vfold += [f"v_add_f32 v{b}, v{b}, v{b+2}", f"v_add_f32 v{b+1}, v{b+1}, v{b+3}", f"v_cvt_pk_bf16_f32 v{b}, v{b}, v{b+1}", f"v_mov_b32 v{b+1}, 0"]
    A(mf32(F(2), V_ONE2, V_S0, "0")); A(vfold[0]); A(vfold[1])
    A(mf32(F(0), V_VX0, V_S0, "0")); A(vfold[2]); A(vfold[3])
    A(mf32(F(1), V_VX1, V_S0, "0")); A(vfold[4]); A(vfold[5])
    stamp(5)
    A(f"v_exp_f32 v{sm}, v{sm}\nv_exp_f32 v{sm+1}, v{sm+1}")
    A(vfold[6]); A(vfold[7])
    A(f"v_cvt_pk_bf16_f32 v{V_PM}, v{sm}, v{sm+1}")
    wrd(1)
    A(mf16(F(2), V_ONE2, V_PM, vr(F(2),4)))
    A(mf16(F(0), AV, V_PM, vr(F(0),4)))
    A(mf16(F(1), AV+4, V_PM, vr(F(1),4)))
    wrd(2)
    stamp("pvm0")
    RC = AV + 2
    A(f"v_mov_b32 v{RC}, s{S_LHI}\ns_nop 2")
    A(f"v_med3_f32 v{RC}, v{F(2)}, s{S_T4}, v{RC}")
    A(f"v_cmp_neq_f32 vcc, v{RC}, v{F(2)}")
    A(f"v_rcp_f32 v{RC}, v{F(2)}")
    A(f"s_and_b64 vcc, vcc, s[{S_VALID}:{S_VALID+1}]")
    SLOW = A.uid("SLOW"); BACK = A.uid("BACK"); LAST = A.uid("LAST")
    A(f"s_cbranch_vccnz {SLOW}")
    A.label(BACK)
    stamp("pvm")
    A(f"s_cmp_eq_u32 s{S_STEP}, {nsteps-1}\ns_cbranch_scc1 {LAST}")
    A("s_nop 0")
    stamp("n1")
    if "x32" in opt:
        for i in range(32): A(f"v_mov_b32 v{V_PM}, v{V_ZERO}")
    if "w64" in opt: A("s_nop 15")
    if "nopk" not in opt:
        for r in (0, 2): A(f"v_pk_mul_f32 {vr(F(0)+r,2)}, {vr(F(0)+r,2)}, {vr(RC,2)} op_sel_hi:[1,0]")
    for r in range(4):
        if "nomul" not in opt and "nopk" in opt: A(f"v_mul_f32 v{F(0)+r}, v{F(0)+r}, v{RC}")
    stamp("n2")
    A(f"v_cvt_pk_bf16_f32 v{F(0)}, v{F(0)}, v{F(0)+1}\nv_cvt_pk_bf16_f32 v{F(0)+1}, v{F(0)+2}, v{F(0)+3}")
    stamp("n3")
    if "nopk" not in opt:
        for r in (0, 2): A(f"v_pk_mul_f32 {vr(F(1)+r,2)}, {vr(F(1)+r,2)}, {vr(RC,2)} op_sel_hi:[1,0]")
    for r in range(4):
        if "nomul" not in opt and "nopk" in opt: A(f"v_mul_f32 v{F(1)+r}, v{F(1)+r}, v{RC}")
    stamp("n4")
    A(f"v_cvt_pk_bf16_f32 v{F(1)}, v{F(1)}, v{F(1)+1}\nv_cvt_pk_bf16_f32 v{F(1)+1}, v{F(1)+2}, v{F(1)+3}")
    stamp("n5")
    A(f"s_mov_b64 exec, s[{S_VALID}:{S_VALID+1}]")
    ow = L.issue(f"ds_write2_b64 v{V_OW}, {vr(F(0),2)}, {vr(F(1),2)} offset0:0 offset1:4")
    A("s_mov_b64 exec, -1")
    stamp(6)
    ACC = [V_VX0, V_VX1]
    for a in ACC:
        A(f"v_mov_b64 {vr(a,2)}, 0\nv_mov_b64 {vr(a+2,2)}, 0")
    A(f"v_mov_b32 v{V_OUT+3}, s{S_TAG}")
    stamp("o1")
    L.wait(ow)
    stamp("o2")
    A("s_barrier")
    stamp("o3")
    o0 = L.issue(f"ds_read_b128 {vr(V_F23,4)}, v{V_L16} offset:{L_O}")
    o1 = L.issue(f"ds_read_b128 {vr(V_F23+4,4)}, v{V_L16} offset:{L_O+1024}")
    wrd(3); wrd(4); wrd(5)
    stamp("o4")
    stamp("o5")
    stamp("o6")
    L.wait(o1)
    stamp(7)
    NT = 9
    NA = len(ACC)
    def epi(sl):
        a = ACC[sl % NA]; tau = sl % 3
        q = [f"v_add_f32 v{a}, v{a}, v{a+2}", f"v_add_f32 v{a+1}, v{a+1}, v{a+3}", f"v_cvt_pk_bf16_f32 v{V_OUT+tau}, v{a}, v{a+1}"]
        if sl < NT - NA: q += [f"v_mov_b64 {vr(a,2)}, 0", f"v_mov_b64 {vr(a+2,2)}, 0"]
        if tau == 2:
            sg = sl // 3
            q += [f"s_add_u32 s{S_T0}, s{S_P1}, {sg*131072}", f"buffer_store_dwordx4 {vr(V_OUT,4)}, v{V_P1}, {ws}, s{S_T0} offen {st}"]
        return q
    rq = []
    for f in range(NB, NF): rq += [(f, 0), (f, 1)]
    free_after = {f: (f - NB) for f in range(NB, NF)}
    issued = set(range(NB))
    done_sm = set()
    def pump(n):
        k = 0
        while rq and k < n and (free_after[rq[0][0]] in done_sm):
            f, h = rq.pop(0)
            sl_, kk = divmod(f, 2)
            i_ = L.issue(f"ds_read_b128 {vr(WB[f%NB]+4*h,4)}, v{V_WO} offset:{sl_*4096 + kk*2048 + h*1024}")
            if h == 1: wf[f] = i_
            k += 1
        return k
    for sl in range(NT):
        if sl in (3, 6): stamp(f"wo{sl}")
        pend = epi(sl - 1) if sl >= 1 else []
        while (2*sl+1) not in wf: pump(1)
        L.wait(wf[2*sl+1])
        budget = WOP[sl]
        for k in range(2):
            f = 2*sl + k
            if "noWo" not in opt: A(smf(ACC[sl%NA], V_F23 + 4*k, vr(WB[f%NB], 8)))
            done_sm.add(f)
            n = pump(min(2, budget)); budget -= n
            if k == 0 and pend:
                fill = (3 if sl == 1 else 0) + max(0, 2 - n)
                if sl == 1: A("s_nop 3")
                elif n < 2: A(f"s_nop {1 - n}") if n < 2 else None
            if pend: A(pend.pop(0))
        for x in pend: A(x)
        if sl >= 1 and sl < NT - NA + 1: A("s_nop 0")
    A("s_nop 6")
    for x in epi(NT-1): A(x)
    stamp(8)
    hk = housekeeping()
    if "fixkv" in opt: hk = [x for x in hk if f"s{S_KXO}," not in x and f"s{S_VXO}," not in x]
    zero = [f"v_mov_b64 {vr(b+2*i,2)}, 0" for b in (V_AQ, V_AK) for i in range(4)]
    NR = A.uid("NR"); R0 = A.uid("R0"); R1 = A.uid("R1"); RB = A.uid("RB"); RW3 = A.uid("RW3")
    SEL = V_F23
    A(f"s_cmp_eq_u32 s{S_W}, 3\ns_cbranch_scc1 {RW3}")
    A(f"s_mov_b32 s{S_T1}, s{S_P1}\ns_mov_b32 s{S_T2}, s{S_MN}\ns_mov_b32 s53, s{S_MC}\ns_mov_b32 s41, s{S_TAG4}")
    A(f"buffer_load_dwordx4 {vr(SEL,4)}, v{V_L16}, {ws}, s{S_SELO} offen")
    zeroq = [f"v_mov_b64 {vr(V_AQ+2*i,2)}, 0" for i in range(4)]
    zerok = [f"v_mov_b64 {vr(V_AK+2*i,2)}, 0" for i in range(4)]
    for x in hk + zeroq: A(x)
    d0, d1, d2 = DELAYS
    if d0: A(f"s_sleep {d0}")
    A(f"s_cmp_eq_u32 s{S_W}, 0\ns_cbranch_scc1 {R0}")
    if d1: A(f"s_sleep {d1}")
    A(f"s_cmp_eq_u32 s{S_W}, 1\ns_cbranch_scc1 {R0}")
    if d2: A(f"s_sleep {d2}")
    A.label(R0)
    stamp(11)
    BX, BY = V_R, V_KA
    def rl(B): return [f"buffer_load_dwordx4 {vr(B+4*q,4)}, v{V_RD}, {ws}, s{S_T1} offen offset:{q*1024} sc1" for q in range(4)]
    def proc(B, young=4):
        for q in range(4):
            A(f"s_waitcnt vmcnt({young + 3 - q})")
            A(mf32(V_SX, B+4*q, SEL, "0" if q == 0 else vr(V_SX,4)))
        A(f"v_add3_u32 v{V_PM}, v{B+3}, v{B+7}, v{B+11}\nv_add_u32 v{V_PM}, v{V_PM}, v{B+15}\nv_cmp_ne_u32 vcc, s41, v{V_PM}")
    FIN = A.uid("FIN")
    if RGAP >= 50:
        for x in rl(BX): A(x)
        for x in zerok: A(x)
        A.label(RB)
        proc(BX, 0)
        A(f"s_cbranch_vccz {FIN}")
        spin("s98")
        for x in rl(BX): A(x)
        A(f"s_branch {RB}")
    else:
        for x in rl(BX): A(x)
        for x in zerok: A(x)
        if RGAP: A(f"s_sleep {RGAP}")
        for x in rl(BY): A(x)
        proc(BX, 4)
        A(f"s_cbranch_vccz {FIN}")
        A.label(RB)
        spin("s98")
        for x in rl(BX): A(x)
        proc(BY)
        A(f"s_cbranch_vccz {FIN}")
        spin("s98")
        for x in rl(BY): A(x)
        proc(BX)
        A(f"s_cbranch_vccnz {RB}")
        A("s_nop 0")
    A.label(FIN)
    stamp(12)
    A(f"v_mov_b32 v{V_PM}, -1\ns_mov_b64 exec, s[{S_MMASK}:{S_MMASK+1}]\ns_nop 1")
    A(f"v_add_f32 v{V_SX}, v{V_SX}, v{V_SX+2}\nv_add_f32 v{V_SX+1}, v{V_SX+1}, v{V_SX+3}\nv_cvt_pk_bf16_f32 v{V_SX}, v{V_SX}, v{V_SX+1}")
    A(f"buffer_store_dword v{V_SX}, v{V_MST}, {ws}, s{S_T2} offen {st}")
    A(f"buffer_store_dword v{V_PM}, v{V_MST}, {ws}, s53 offen {st}")
    A("s_mov_b64 exec, -1")
    if G01:
        NG01 = A.uid("NG")
        A(f"s_cmp_eq_u32 s{S_W}, 2\ns_cbranch_scc1 {NR}\ns_sleep {G01}")
    A.label(NR)
    A(f"v_add_u32 v{V_PM}, s{S_GW}, v{V_L16}")
    stamp(13)
    stamp_acc()
    A(f"s_mov_b32 s{S_SPIN}, {SPIN_MAX}")
    A(f"s_branch {STEP}")
    A.label(RW3)
    for x in hk + zeroq + zerok: A(x)
    if "flags" in opt:
        A(f"s_waitcnt vmcnt(3)")
        PW, PK = A.uid("PW"), A.uid("PK")
        A(f"s_cmp_lt_u32 s{S_STEP}, 62\ns_cbranch_scc0 {PK}")
        A.label(PW)
        A(f"v_readfirstlane_b32 s{S_T1}, v{V_PF+1}")
        A(f"s_sub_u32 s{S_T1}, s{S_T1}, s7\ns_sub_u32 s{S_T1}, s{S_T1}, 1\ns_cmp_lt_u32 s{S_T1}, 16\ns_cbranch_scc0 {PW}n\ns_cmp_ge_u32 s{S_T1}, s{S_PKK}\ns_cbranch_scc1 {PK}")
        A.label(PW + "n")
        spin()
        A(f"s_sleep 8\nbuffer_load_dword v{V_PF+1}, v{V_ZERO}, {ws}, s{S_PFA} offen sc1\ns_waitcnt vmcnt(0)\ns_branch {PW}")
        A.label(PK)
        A(f"s_add_u32 s{S_PRHO}, s{S_PRHO}, 1\ns_cmp_eq_u32 s{S_PRHO}, 7\ns_cselect_b32 s{S_T0}, 1, 0\ns_cselect_b32 s{S_PRHO}, 0, s{S_PRHO}\ns_add_u32 s{S_PKK}, s{S_PKK}, s{S_T0}")
        A(f"s_lshl_b32 s{S_PFA}, s{S_PRHO}, 2\ns_add_u32 s{S_PFA}, s{S_PFA}, s{S_PFO}")
    A(f"s_add_u32 s{S_PF0}, s{S_KV}, {32*16384}\ns_add_u32 s{S_PF1}, s{S_PF0}, 8192")
    stamp(11); stamp(12)
    A(f"s_branch {NR}")
    if "flags" in opt:
        A.label(PUBL)
        A(f"s_mov_b64 exec, 1\nv_mov_b32 v{V_PM}, s{S_CFV}\nbuffer_store_dword v{V_PM}, v{V_ZERO}, {ws}, s{S_CFO} offen sc1\ns_mov_b64 exec, -1")
        A(f"buffer_store_dwordx4 {vr(V_F23,4)}, v{V_L16}, {ws}, s{S_KMC} offen sc1\ns_branch {PUBb}")
    if npf:
        A.label(PF3)
        A(f"buffer_load_dword v{V_PF+1}, v{V_PF}, {ws}, s{S_PF0} offen\nbuffer_load_dword v{V_PF+1}, v{V_PF}, {ws}, s{S_PF1} offen")
        if "flags" in opt: A(f"buffer_load_dword v{V_PF+1}, v{V_ZERO}, {ws}, s{S_PFA} offen sc1")
        A(f"s_branch {PF3b}")
    A.label(W2)
    if "flags" in opt:
        A(f"s_cmp_eq_u32 s{S_W}, 3\ns_cbranch_scc0 {W2}m\ns_waitcnt vmcnt({2*npf + 1})\ns_branch {W2b}")
        A.label(W2 + "m"); A(f"s_waitcnt vmcnt(2)\ns_branch {W2b}")
    else:
        A(f"s_waitcnt vmcnt({2*npf})\ns_branch {W2b}")
    A.label(SLOW)
    L2 = Lg(A)
    A("s_nop 7")
    for cc in range(4):
        for Hh in range(2):
            L2.issue(f"ds_read_b64_tr_b16 {vr(F(cc)+2*Hh,2)}, v{V_TR} offset:{cc*1024 + Hh*512}")
    T0r, T1r = V_S0, V_SX
    for tau in range(2):
        A(f"s_add_u32 s{S_T0}, s{S_KV}, {tau*4096}")
        for c in range(4): A(f"buffer_load_dwordx4 {vr(V_R+4*c,4)}, v{V_L16}, {ws}, s{S_T0} offen offset:{c*1024}")
        A("s_waitcnt vmcnt(0) lgkmcnt(0)")
        d = [T0r, T1r][tau]
        for c in range(4): A(mf32(d, V_R+4*c, F(c), "0" if c == 0 else vr(d,4)))
        A("s_nop 7")
    for c in range(4):
        A(mf32(sm, F(c), F(c), "0" if c == 0 else vr(sm,4)))
    A("s_nop 7\ns_nop 1")
    a0, a1 = T0r, T1r
    A(f"v_max3_f32 v{V_PM}, v{a0}, v{a0+1}, v{a0+2}")
    A(f"v_max3_f32 v{V_PM}, v{a0+3}, v{a1}, v{V_PM}")
    A(f"v_max3_f32 v{V_PM}, v{a1+1}, v{a1+2}, v{V_PM}")
    A(f"v_max3_f32 v{V_PM}, v{a1+3}, v{sm}, v{V_PM}")
    A(f"v_max_f32 v{V_PM}, v{sm+1}, v{V_PM}")
    t = F(3)
    A(f"v_mov_b32 v{t}, v{V_PM}\ns_nop 1\nv_permlane32_swap_b32 v{t}, v{V_PM}\ns_nop 1\nv_max_f32 v{V_PM}, v{V_PM}, v{t}")
    A(f"v_mov_b32 v{t}, v{V_PM}\ns_nop 1\nv_permlane16_swap_b32 v{t}, v{V_PM}\ns_nop 1\nv_max_f32 v{V_PM}, v{V_PM}, v{t}")
    rs = list(range(a0, a0+4)) + list(range(a1, a1+4)) + [sm, sm+1]
    for r in rs: A(f"v_sub_f32 v{r}, v{r}, v{V_PM}")
    for r in rs: A(f"v_exp_f32 v{r}, v{r}")
    A("s_nop 0")
    A(f"v_cvt_pk_bf16_f32 v{a0}, v{a0}, v{a0+1}\nv_cvt_pk_bf16_f32 v{a0+1}, v{a0+2}, v{a0+3}")
    A(f"v_cvt_pk_bf16_f32 v{a0+2}, v{a1}, v{a1+1}\nv_cvt_pk_bf16_f32 v{a0+3}, v{a1+2}, v{a1+3}")
    A(f"v_cvt_pk_bf16_f32 v{V_PM}, v{sm}, v{sm+1}")
    A(f"v_mov_b64 {vr(V_ONE2,2)}, s[{S_ONES}:{S_ONES+1}]\nv_mov_b64 {vr(V_ONE2+2,2)}, s[{S_ONES}:{S_ONES+1}]\ns_nop 1")
    A(mf32(F(0), V_VX0, V_S0, "0"))
    A(mf32(F(1), V_VX1, V_S0, "0"))
    A(mf32(F(2), V_ONE2, V_S0, "0"))
    A("s_nop 7")
    A(mf16(F(2), V_ONE2, V_PM, vr(F(2),4)))
    A(mf16(F(0), AV, V_PM, vr(F(0),4)))
    A(mf16(F(1), AV+4, V_PM, vr(F(1),4)))
    for f in range(3):
        sl, k = divmod(f, 2)
        A(f"ds_read_b128 {vr(WB[f],4)}, v{V_WO} offset:{sl*4096 + k*2048}\nds_read_b128 {vr(WB[f]+4,4)}, v{V_WO} offset:{sl*4096 + k*2048 + 1024}")
    A("s_waitcnt lgkmcnt(0)\ns_nop 7")
    A(f"v_rcp_f32 v{RC}, v{F(2)}")
    A(f"s_branch {BACK}")
    A.label(LAST)
    A(f"s_branch {DONE}")
    if "flags" in opt:
        A.label(FINAL)
        A(f"s_cmp_lg_u32 s{S_MP}, 0\ns_cbranch_scc0 {DONE}")
        A(f"s_lshl_b32 s{S_T0}, s{S_H}, 10\nv_add_u32 v{V_PM}, s{S_T0}, v{V_L16}\nds_read_b128 {vr(V_F23,4)}, v{V_PM} offset:{L_MEM}")
        A(f"s_add_u32 s{S_T0}, s{S_T0}, s{S_KM}\ns_waitcnt lgkmcnt(0)")
        A(f"buffer_store_dwordx4 {vr(V_F23,4)}, v{V_L16}, {ws}, s{S_T0} offen sc1\ns_waitcnt vmcnt(0)")
        A(f"s_add_u32 s{S_T0}, s7, {nsteps}\nv_mov_b32 v{V_PM}, s{S_T0}\ns_mov_b64 exec, 1")
        A(f"buffer_store_dword v{V_PM}, v{V_ZERO}, {ws}, s{S_CFO} offen sc1\ns_mov_b64 exec, -1")
        A(f"s_branch {DONE}")
    if CUT:
        A.label(CUTL)
        A(f"s_mov_b64 exec, -1\ns_waitcnt vmcnt(0) lgkmcnt(0)\ns_nop 7\ns_sub_u32 s72, s72, s70\ns_add_u32 s86, s86, s72")
        for b in (V_AQ, V_AK):
            for i in range(4): A(f"v_mov_b64 {vr(b+2*i,2)}, 0")
        for c in range(4): A(f"buffer_load_dwordx4 {vr(KX(c),4)}, v{V_L16}, {ws}, s{S_KXO} offen offset:{c*1024}")
        for et in range(2): A(f"buffer_load_dwordx4 {vr([V_VX0,V_VX1][et],4)}, v{V_L16}, {ws}, s{S_VXO} offen offset:{et*1024}")
        A(f"s_waitcnt vmcnt(0)\ns_add_u32 s{S_STEP}x, 0, 0".replace(f"s_add_u32 s{S_STEP}x, 0, 0", "s_add_u32 s87, s87, 1"))
        A(f"s_cmp_lt_u32 s87, 63\ns_cbranch_scc1 {JOIN}\ns_branch {DONE}")
    A.label(FAIL)
    A(f"s_mov_b64 exec, -1\ns_mov_b32 s{S_FAIL}, 1")
    A.label(DONE)


def chain_init_mem(A, st):
    ws = f"s[{SRD_WS}:{SRD_WS+3}]"
    N0 = A.uid("IM"); N1 = A.uid("IM")
    A(f"""
    s_cmp_lt_u32 s{S_H}, 9
    s_cbranch_scc0 {N1}
    s_cmp_eq_u32 s{S_W}, 0
    s_cbranch_scc0 {N0}
    s_load_dwordx2 s[4:5], s[0:1], {KA['A_mem0']}
    s_waitcnt lgkmcnt(0)
    s_mov_b32 s{SRD_W}, s4
    s_mov_b32 s{SRD_W+1}, s5
    s_mov_b32 s{SRD_W+2}, {8*1152}
    s_mov_b32 s{SRD_W+3}, 0x00020000
    v_bfe_u32 v24, v{V_L16}, 4, 4            ; n
    v_lshrrev_b32 v25, 2, v24
    v_lshlrev_b32 v25, 1, v25
    v_and_b32 v26, 1, v24
    v_add_u32 v25, v25, v26                  ; irow
    v_mul_u32_u24 v25, 1152, v25
    v_bfe_u32 v26, v24, 1, 1                 ; hf
    v_lshl_add_u32 v25, v26, 4, v25
    v_lshrrev_b32 v26, 8, v{V_L16}           ; g
    v_lshl_add_u32 v25, v26, 5, v25
    s_lshl_b32 s{S_T0}, s{S_H}, 7            ; c*128 bytes
    buffer_load_dwordx4 v[28:31], v25, s[{SRD_W}:{SRD_W+3}], s{S_T0} offen
    s_lshl_b32 s{S_T0}, s{S_H}, 10
    s_add_u32 s{S_T0}, s{S_T0}, {WS_M}
    s_waitcnt vmcnt(0)
    buffer_store_dwordx4 v[28:31], v{V_L16}, {ws}, s{S_T0} offen {st}
    s_branch {N1}
    {N0}:
    v_mov_b32 v28, -1
    v_mov_b32 v29, -1
    v_mov_b32 v30, -1
    v_mov_b32 v31, -1
    s_mul_i32 s{S_T0}, s{S_W}, {M_SLOT}
    s_lshl_b32 s{S_T1}, s{S_H}, 10
    s_add_u32 s{S_T0}, s{S_T0}, s{S_T1}
    s_add_u32 s{S_T0}, s{S_T0}, {WS_M}
    s_cmp_eq_u32 s{S_W}, 3
    s_cbranch_scc1 {N0}s
    buffer_store_dwordx4 v[28:31], v{V_L16}, {ws}, s{S_T0} offen {st}
    s_branch {N1}
    {N0}s:
    v_bfe_u32 v24, v{V_L16}, 4, 3            ; j = n & 7
    v_and_b32 v25, 1, v24
    v_lshlrev_b32 v25, 4, v25
    v_mov_b32 v26, 0x3f80
    v_lshlrev_b32 v25, v25, v26              ; X
    v_lshrrev_b32 v24, 1, v24
    """)
    for r in range(4):
        A(f"v_cmp_eq_u32 vcc, {r}, v24\ns_nop 1\nv_cndmask_b32 v{28+r}, 0, v25, vcc")
    A(f"s_mov_b32 s{S_T0}, {WS_SEL}\nbuffer_store_dwordx4 v[28:31], v{V_L16}, {ws}, s{S_T0} offen {st}")
    A.label(N1)
    A("s_waitcnt vmcnt(0)")


def load_all_weights(A):
    import common as CM
    def trfun(mi, half):
        base = L_WO + (0 if half == 0 else 81920)
        A(f"""
        v_lshrrev_b32 v24, 8, v{V_L16}          ; gB
        v_bfe_u32 v25, v{V_L16}, 6, 2           ; r
        v_bfe_u32 v26, v{V_L16}, 4, 2           ; cq
        v_lshrrev_b32 v27, 1, v24
        v_lshlrev_b32 v27, 4, v27
        v_lshrrev_b32 v28, 1, v25
        v_lshl_add_u32 v27, v28, 3, v27
        v_and_b32 v29, 1, v24
        v_lshl_add_u32 v27, v29, 2, v27
        v_and_b32 v30, 1, v25
        v_add_u32 v27, v27, v30                 ; row
        v_lshlrev_b32 v27, 8, v27
        v_lshl_add_u32 v30, v29, 1, v30
        v_lshl_add_u32 v30, v28, 2, v30         ; f
        v_lshl_add_u32 v27, v26, 3, v27
        v_add_u32 v27, {base}, v27
        s_lshl_b32 s{S_T0}, s{S_W}, 1
        """)
        cs = range(0, 5) if half == 0 else range(5, 9)
        for et in range(2):
            A(f"""
            s_add_u32 s{S_T1}, s{S_T0}, {et}
            v_xor_b32 v31, s{S_T1}, v30
            v_lshl_add_u32 v31, v31, 5, v27
            """)
            for c in cs:
                kind, b = wfrag_regs(mi, et, c)
                for Hh in range(2):
                    for rr in range(2):
                        reg = b + 4 * Hh + 2 * rr
                        A(f"ds_read_b64_tr_b16 {kind}[{reg}:{reg+1}], v31 offset:{Hh*8192 + rr*512}")
                A(f"s_waitcnt lgkmcnt(0)\nv_add_u32 v31, 16384, v31")
    CM.load_head_slices_pipelined(A, [KA['A_Wq'], KA['A_Wk'], KA['A_Wv']], L_WO, trfun)
    load_wo(A)
```

```python
from asmlib import *
from layout import *
import struct

def f32bits(x): return struct.unpack("<I", struct.pack("<f", x))[0]

V_L16, V_IDX, V_QKW, V_TR, V_OW, V_P1, V_RD, V_MST, V_WO, V_SR = 0, 1, 2, 3, 4, 5, 6, 7, 8, 9
V_ONES = 52
V_SX = 14
V_PM = 18
V_ZERO = 19
V_OUT = 14
V_SEL = 48
V_PF = 6
NRING = 4
V_VX0, V_VX1 = 20, 10
S_ONES = 12
V_R = 24
V_AQ = 40
V_F23 = 48
V_AK = 56
V_KA = 64
V_KB = 72
def F(c): return [V_AQ, V_AQ + 4, V_F23, V_F23 + 4][c]
def KX(c): return [V_KA, V_KA + 4, V_KB, V_KB + 4][c]
V_AV = V_KA
V_VX = V_KB
V_AVX = V_KA
V_AK2 = V_AK
V_S0 = V_AK
V_SM = V_AK + 4
V_F2 = V_AQ
V_ONE2 = 14

S_H, S_W, S_STEP, S_FAIL = 16, 17, 18, 19
S_P1, S_MC, S_MN, S_MT = 20, 21, 22, 23
S_KV, S_KM, S_SPIN = 24, 25, 27
S_T0, S_T1, S_T2 = 28, 29, 30
S_GW = 31
S_VALID = 32
S_MMASK = 34
S_TAU512 = 36
S_T3, S_T4 = 37, 38
S_TAG, S_TAG4 = 39, 40
S_MC6 = 46
S_SELO = 50
S_KXO, S_VXO = 47, 49
SRD_WS = 8
SRD_W = 12
SPIN_MAX = 400000
STAMPS = ['0','3','5','7','8','11','12','13']
DELAYS = [0, 1, 2]
S_LHI = 44
S_CFO = 43
S_PFO, S_PRHO, S_PKK = 42, 68, 69
S_M3, S_MP, S_MP1 = 56, 58, 60
S_WV = 57
S_MCH, S_CFV, S_KMC = 62, 63, 64
S_PF0, S_PF1, S_PFA = 45, 26, 51
GSLEEP = 0
PGAP = 1
WOP = [4,4,3,3,3,3,3,3,3]
GMODE = 0
PUB0 = 2
PUBG = 1
RGAP = 2
G01 = 0
CUT = None
PROF0 = 86

def wfrag(mat, et, c):
    idx = mat * 18 + et * 9 + c
    if idx < 32: return ar(idx * 8, 8)
    return vr(80 + (idx - 32) * 8, 8)
def wfrag_regs(mat, et, c):
    idx = mat * 18 + et * 9 + c
    return ("a", idx * 8) if idx < 32 else ("v", 80 + (idx - 32) * 8)

def load_qkv(A, kaoff, mat):
    lw = A.uid("LW"); lr = A.uid("LR")
    A(f"""
    s_load_dwordx2 s[4:5], s[0:1], {kaoff}
    s_waitcnt lgkmcnt(0)
    s_lshl_b32 s{S_T0}, s{S_H}, 8
    s_add_u32 s{SRD_W}, s4, s{S_T0}
    s_addc_u32 s{SRD_W+1}, s5, 0
    s_sub_u32 s{SRD_W+2}, {576*8192}, s{S_T0}
    s_mov_b32 s{SRD_W+3}, 0x00020000
    v_lshrrev_b32 v24, 8, v{V_L16}          ; l>>4
    v_and_b32 v25, 1, v24
    s_lshl_b32 s{S_T0}, s{S_W}, 1           ; (w&1)<<1 | (w>>1)<<2 == w<<1
    v_or_b32 v25, s{S_T0}, v25              ; f
    v_bfe_u32 v26, v{V_L16}, 5, 3           ; (l&15)>>1
    v_xor_b32 v26, v26, v25
    v_lshlrev_b32 v26, 5, v26
    v_lshl_add_u32 v26, v24, 13, v26
    v_and_b32 v27, 16, v{V_L16}             ; (l&1)*16
    v_add_u32 v26, v26, v27
    s_lshl_b32 s{S_T0}, s{S_W}, 15          ; soffset = a*32768, a = 4i + w
    s_lshl_b32 s{S_T1}, s{S_W}, 10
    s_add_u32 s{S_T1}, s{S_T1}, {L_WO}      ; m0 = L_WO + a*1024
    s_mov_b32 s{S_T2}, 0
    {lw}:
    s_mov_b32 m0, s{S_T1}
    s_nop 0
    buffer_load_dwordx4 v26, s[{SRD_W}:{SRD_W+3}], s{S_T0} offen lds
    s_add_u32 s{S_T0}, s{S_T0}, {4*32768}
    s_add_u32 s{S_T1}, s{S_T1}, 4096
    s_add_u32 s{S_T2}, s{S_T2}, 1
    s_cmp_lt_u32 s{S_T2}, 36
    s_cbranch_scc1 {lw}
    s_waitcnt vmcnt(0)
    s_barrier
    v_lshrrev_b32 v24, 8, v{V_L16}          ; gB
    v_bfe_u32 v25, v{V_L16}, 6, 2           ; r = n>>2
    v_bfe_u32 v26, v{V_L16}, 4, 2           ; cq = n&3
    v_lshrrev_b32 v27, 1, v24               ; gB>>1
    v_lshlrev_b32 v27, 4, v27
    v_lshrrev_b32 v28, 1, v25               ; r>>1
    v_lshl_add_u32 v27, v28, 3, v27
    v_and_b32 v29, 1, v24                   ; gB&1
    v_lshl_add_u32 v27, v29, 2, v27
    v_and_b32 v30, 1, v25                   ; r&1
    v_add_u32 v27, v27, v30                 ; row
    v_lshlrev_b32 v27, 8, v27
    v_lshl_add_u32 v30, v29, 1, v30
    v_lshl_add_u32 v30, v28, 2, v30         ; f
    v_lshl_add_u32 v27, v26, 3, v27         ; + cq*8
    v_add_u32 v27, {L_WO}, v27
    s_lshl_b32 s{S_T0}, s{S_W}, 1
    """)
    for et in range(2):
        A(f"""
        s_add_u32 s{S_T1}, s{S_T0}, {et}
        v_xor_b32 v31, s{S_T1}, v30
        v_lshl_add_u32 v31, v31, 5, v27
        """)
        for c in range(9):
            kind, base = wfrag_regs(mat, et, c)
            for Hh in range(2):
                for rr in range(2):
                    reg = base + 4 * Hh + 2 * rr
                    A(f"ds_read_b64_tr_b16 {kind}[{reg}:{reg+1}], v31 offset:{Hh*8192 + rr*512}")
            A(f"s_waitcnt lgkmcnt(0)\nv_add_u32 v31, 16384, v31")
    A("s_barrier")

def load_wo(A):
    lw = A.uid("LW")
    A(f"""
    s_load_dwordx2 s[4:5], s[0:1], {KA['A_Wo']}
    s_waitcnt lgkmcnt(0)
    s_mul_i32 s{S_T0}, s{S_H}, {128*1152}
    s_add_u32 s{SRD_W}, s4, s{S_T0}
    s_addc_u32 s{SRD_W+1}, s5, 0
    s_mov_b32 s{SRD_W+2}, {128*1152}
    s_mov_b32 s{SRD_W+3}, 0x00020000
    v_lshrrev_b32 v24, 5, v{V_L16}          ; l>>1
    v_mul_u32_u24 v24, 1152, v24
    v_and_b32 v25, 16, v{V_L16}
    v_add_u32 v24, v24, v25
    """)
    for sg in range(3):
        for tau in range(3):
            for a in range(4):
                A(f"""
                s_mul_i32 s{S_T0}, s{S_W}, 96
                s_add_u32 s{S_T0}, s{S_T0}, {(12*sg + tau)*32 + a*32*1152}
                s_mul_i32 s{S_T1}, s{S_W}, 36864
                s_add_u32 s{S_T1}, s{S_T1}, {L_WO + (sg*3+tau)*4096 + a*1024}
                s_mov_b32 m0, s{S_T1}
                s_nop 0
                buffer_load_dwordx4 v24, s[{SRD_W}:{SRD_W+3}], s{S_T0} offen lds
                """)
    A("s_waitcnt vmcnt(0)")
    A(f"""
    v_lshrrev_b32 v24, 8, v{V_L16}          ; gB
    v_bfe_u32 v25, v{V_L16}, 6, 2           ; r
    v_bfe_u32 v26, v{V_L16}, 4, 2           ; cq
    v_and_b32 v27, 1, v24
    v_lshlrev_b32 v27, 5, v27
    v_lshrrev_b32 v28, 1, v25
    v_lshl_add_u32 v27, v28, 4, v27
    v_lshrrev_b32 v28, 1, v24
    v_lshl_add_u32 v27, v28, 2, v27
    v_and_b32 v28, 1, v25
    v_add_u32 v27, v27, v28
    v_lshlrev_b32 v27, 5, v27
    v_lshl_add_u32 v27, v26, 3, v27
    s_mul_i32 s{S_T1}, s{S_W}, 36864
    s_add_u32 s{S_T1}, s{S_T1}, {L_WO}
    v_add_u32 v27, s{S_T1}, v27
    """)
    for sl in range(9):
        for k in range(2):
            for Hh in range(2):
                for rr in range(2):
                    reg = 32 + k * 8 + Hh * 4 + rr * 2
                    A(f"ds_read_b64_tr_b16 v[{reg}:{reg+1}], v27 offset:{sl*4096 + (64*k + 8*Hh + 2*rr)*32}")
        A("s_waitcnt lgkmcnt(0)")
        for k in range(2):
            for Hh in range(2):
                reg = 32 + k * 8 + Hh * 4
                A(f"ds_write_b128 v{V_WO}, v[{reg}:{reg+3}] offset:{sl*4096 + k*2048 + Hh*1024}")
        A("s_waitcnt lgkmcnt(0)")
    A("s_barrier")

class Lg:
    def __init__(self, A): self.A = A; self.n = 0; self.done = 0
    def issue(self, txt):
        self.A(txt); self.n += 1; return self.n
    def wait(self, i):
        if i <= self.done: return
        cnt = self.n - i
        assert cnt <= 15, cnt
        self.A(f"s_waitcnt lgkmcnt({cnt})"); self.done = i
    def waitall(self):
        self.wait(self.n)

def smf(d, a, b): return f"v_smfmac_f32_16x16x64_bf16 {vr(d,4)}, {vr(a,4)}, {b}, v{V_IDX}"
def mf32(d, a, b, c): return f"v_mfma_f32_16x16x32_bf16 {vr(d,4)}, {vr(a,4)}, {vr(b,4)}, {c}"
def mf16(d, a, b, c): return f"v_mfma_f32_16x16x16_bf16 {vr(d,4)}, {vr(a,2)}, {vr(b,2)}, {c}"

def check4(A, r, tmp):
    A(f"v_max3_u32 v{tmp}, v{r}, v{r+1}, v{r+2}\nv_max_u32 v{tmp}, v{tmp}, v{r+3}\nv_cmp_eq_u32 vcc, -1, v{tmp}")


def setup_regs(A):
    A(f"""
    v_lshrrev_b32 v24, 6, v0
    v_and_b32 v25, 63, v0               ; lane
    s_nop 0
    v_readfirstlane_b32 s{S_W}, v24
    v_lshlrev_b32 v{V_L16}, 4, v25      ; l16
    v_and_b32 v26, 15, v25              ; n
    v_lshrrev_b32 v27, 4, v25           ; g
    v_bfe_u32 v28, v26, 1, 1            ; hf(n)
    v_mul_u32_u24 v29, 0xAAAA, v28
    v_add_u32 v{V_IDX}, 0x4444, v29
    s_lshl_b32 s{S_T0}, s{S_W}, 10
    s_add_u32 s{S_T0}, s{S_T0}, {L_QK}
    v_lshrrev_b32 v30, 2, v26               ; n>>2
    v_xor_b32 v30, v30, v27                 ; g ^ (n>>2)
    v_lshlrev_b32 v29, 5, v26
    v_lshl_add_u32 v29, v30, 3, v29
    v_add_u32 v{V_QKW}, s{S_T0}, v29
    v_lshrrev_b32 v29, 2, v26
    v_lshl_add_u32 v29, v27, 2, v29
    v_lshlrev_b32 v29, 5, v29
    v_and_b32 v30, 3, v26
    v_xor_b32 v30, v30, v27
    v_lshl_add_u32 v29, v30, 3, v29
    v_add_u32 v{V_TR}, {L_QK}, v29
    ; OW = L_O + (w>>1)*1024 + (g*16 + n - 2)*16 + (w&1)*8
    s_lshr_b32 s{S_T0}, s{S_W}, 1
    s_lshl_b32 s{S_T0}, s{S_T0}, 10
    s_and_b32 s{S_T1}, s{S_W}, 1
    s_lshl_b32 s{S_T1}, s{S_T1}, 3
    s_add_u32 s{S_T0}, s{S_T0}, s{S_T1}
    s_add_u32 s{S_T0}, s{S_T0}, {L_O - 32}
    v_add_u32 v{V_OW}, s{S_T0}, v{V_L16}
    s_lshl_b32 s{S_T0}, s{S_W}, 3
    v_lshrrev_b32 v29, 3, v26
    v_lshl_add_u32 v29, v27, 1, v29
    v_add_u32 v29, s{S_T0}, v29
    v_lshlrev_b32 v29, 12, v29
    v_and_b32 v30, 7, v26
    v_lshl_add_u32 v29, v30, 4, v29
    s_lshl_b32 s{S_T0}, s{S_H}, 7
    v_add_u32 v{V_P1}, s{S_T0}, v29
    s_lshl_b32 s51, s{S_W}, 5
    s_add_u32 s51, s51, s{S_H}
    s_lshl_b32 s{S_T1}, s51, 12
    v_lshl_add_u32 v29, v27, 1, v28
    v_lshlrev_b32 v29, 7, v29
    v_lshrrev_b32 v30, 2, v26
    v_lshlrev_b32 v30, 1, v30
    v_and_b32 v31, 1, v26
    v_add_u32 v30, v30, v31                 ; irow(n)
    v_lshl_add_u32 v29, v30, 4, v29
    v_add_u32 v{V_RD}, s{S_T1}, v29
    v_lshrrev_b32 v29, 1, v{V_L16}
    v_add_u32 v{V_SR}, {L_S}, v29
    s_lshr_b32 s{S_T1}, s51, 3
    s_mul_i32 s{S_T1}, s{S_T1}, 768
    s_and_b32 s{S_T2}, s51, 7
    s_lshl_b32 s{S_T2}, s{S_T2}, 5
    s_add_u32 s{S_T1}, s{S_T1}, s{S_T2}
    v_bfe_u32 v29, v26, 1, 2                ; tau
    v_lshlrev_b32 v29, 8, v29
    v_lshl_add_u32 v29, v31, 4, v29
    v_lshl_add_u32 v29, v27, 2, v29
    v_add_u32 v{V_MST}, s{S_T1}, v29
    s_mul_i32 s{S_T0}, s{S_W}, 36864
    s_add_u32 s{S_T0}, s{S_T0}, {L_WO}
    v_add_u32 v{V_WO}, s{S_T0}, v{V_L16}
    v_mov_b32 v{V_ZERO}, 0
    s_mov_b32 s{S_VALID}, 0xcccccccc
    s_mov_b32 s{S_VALID+1}, 0xcccccccc
    s_mov_b32 s{S_MMASK}, 0x003f003f
    s_mov_b32 s{S_MMASK+1}, 0x003f003f
    s_lshr_b32 s{S_TAU512}, s{S_W}, 1
    s_lshl_b32 s{S_TAU512}, s{S_TAU512}, 9
    s_lshl_b32 s{S_GW}, s{S_W}, 10
    v_mov_b32 v{V_PM}, 0
    s_mov_b32 s{S_FAIL}, 0
    s_mov_b32 s{S_T4}, 0x21800000       ; 2^-60
    s_mov_b32 s{S_LHI}, 0x5f800000      ; 2^64
    """)

def init_state(A, flags=False):
    L3 = A.uid("L3")
    A(f"""
    s_mov_b32 s{S_STEP}, 0
    s_mov_b32 s{S_P1}, {WS_P1}
    s_mov_b32 s{S_MC}, {WS_M}
    s_mov_b32 s{S_MN}, {WS_M + M_SLOT}
    s_mov_b32 s{S_MT}, {WS_M + 2*M_SLOT}
    s_lshl_b32 s{S_T0}, s{S_H}, 14
    s_add_u32 s{S_KV}, s{S_T0}, {WS_KV}
    s_mov_b32 s{S_KM}, {WS_MEMS}
    s_add_u32 s{S_PF0}, s{S_KV}, {32*16384}
    s_add_u32 s{S_PF1}, s{S_PF0}, 8192
    s_cmp_eq_u32 s{S_W}, 3
    s_cmp_eq_u32 s{S_W}, 2
    s_cselect_b32 s{S_T0}, 1, 0
    s_cmp_lt_u32 s{S_H}, 9
    s_cselect_b32 s{S_T1}, s{S_T0}, 0
    s_cselect_b32 s{S_MCH}, s{S_H}, 0
    s_and_b32 s{S_T1}, s{S_T1}, {1 if flags else 0}
    s_lshl_b32 s{S_MCH}, s{S_MCH}, 10
    s_mov_b32 s{S_MP1}, s{S_T1}
    s_mov_b32 s{S_MP1+1}, 0
    s_sub_u32 s{S_MP}, 0, s{S_T1}
    s_mov_b32 s{S_MP+1}, s{S_MP}
    s_cmp_eq_u32 s{S_W}, 3
    s_cselect_b32 s{S_WV}, 1, s{S_T1}
    s_add_u32 s{S_KMC}, s{S_KM}, s{S_MCH}
    s_mov_b32 s{S_CFV}, s7
    s_add_u32 s{S_MC6}, s{S_MC}, 6144
    s_lshl_b32 s{S_T0}, s{S_TAU512}, 3
    s_add_u32 s{S_KXO}, s{S_T0}, s{S_KV}
    s_lshl_b32 s{S_T0}, s{S_W}, 11
    s_add_u32 s{S_T0}, s{S_T0}, s{S_KV}
    s_add_u32 s{S_VXO}, s{S_T0}, 8192
    s_mov_b32 s{S_T3}, {f32bits(QSCALE):#x}
    s_mov_b32 s{S_SPIN}, {SPIN_MAX}
    s_mov_b32 s{S_ONES}, 0x3f803f80
    s_mov_b32 s{S_ONES+1}, 0x3f803f80
    s_mov_b32 s{S_SELO}, {WS_SEL}
    v_add_u32 v{V_PM}, s{S_GW}, v{V_L16}
    s_cmp_eq_u32 s{S_W}, 3
    s_cbranch_scc0 {L3}
    v_lshlrev_b32 v{V_PF}, 3, v{V_L16}
    {L3}:
    """)
    ws = f"s[{SRD_WS}:{SRD_WS+3}]"
    for c in range(4): A(f"buffer_load_dwordx4 {vr(KX(c),4)}, v{V_L16}, {ws}, s{S_KXO} offen offset:{c*1024}")
    for et in range(2): A(f"buffer_load_dwordx4 {vr([V_VX0,V_VX1][et],4)}, v{V_L16}, {ws}, s{S_VXO} offen offset:{et*1024}")
    A("s_waitcnt vmcnt(0)")
    for b in (V_AQ, V_AK):
        for i in range(4): A(f"v_mov_b64 {vr(b+2*i,2)}, 0")

def housekeeping():
    return [
      f"s_xor_b32 s{S_P1}, s{S_P1}, {P1_SLOT}",
      f"s_mov_b32 s{S_T0}, s{S_MC}", f"s_mov_b32 s{S_MC}, s{S_MN}", f"s_mov_b32 s{S_MN}, s{S_MT}", f"s_mov_b32 s{S_MT}, s{S_T0}",
      f"s_add_u32 s{S_KV}, s{S_KV}, {32*16384}", f"s_add_u32 s{S_KM}, s{S_KM}, 16384",
      f"s_add_u32 s{S_STEP}, s{S_STEP}, 1", f"s_add_u32 s{S_TAG}, s{S_TAG}, 1", f"s_add_u32 s{S_TAG4}, s{S_TAG4}, 4",
      f"s_add_u32 s{S_MC6}, s{S_MC}, 6144", f"s_add_u32 s{S_KMC}, s{S_KMC}, 16384", f"s_add_u32 s{S_CFV}, s{S_CFV}, 1",
      f"s_add_u32 s{S_KXO}, s{S_KXO}, {32*16384}", f"s_add_u32 s{S_VXO}, s{S_VXO}, {32*16384}",
    ]


def chain_step(A, st, prof=False, nsteps=64, opt=()):
    ws = f"s[{SRD_WS}:{SRD_WS+3}]"
    CUTL = A.uid("CUT")
    def stamp(name):
        name = str(name)
        if CUT == name: A(f"s_memtime s[72:73]\ns_branch {CUTL}")
        if not prof or name not in STAMPS: return
        i = STAMPS.index(name)
        if "abs" in opt: A(f"s_memrealtime s[{70+2*i}:{71+2*i}]")
        else: A(f"s_memtime s[{70+2*i}:{71+2*i}]")
    def stamp_acc():
        if not prof: return
        A("s_waitcnt lgkmcnt(0)")
        if "abs" in opt:
            A(f"s_cmp_eq_u32 s{S_STEP}, 31")
            for i in range(len(STAMPS)): A(f"s_cselect_b32 s{PROF0+i}, s{70+2*i}, s{PROF0+i}")
            return
        prev = 48
        for i in range(len(STAMPS)):
            A(f"s_sub_u32 s52, s{70+2*i}, s{prev}\ns_add_u32 s{PROF0+i}, s{PROF0+i}, s52")
            prev = 70+2*i
        A(f"s_mov_b32 s48, s{70+2*(len(STAMPS)-1)}")
    STEP = A.uid("STEP"); FAIL = A.uid("FAIL"); DONE = A.uid("DONE"); JOIN = A.uid("JOIN"); FINAL = A.uid("FINAL")
    GA, GB, GC, GC2 = 24, 28, 48, 52
    TMP = 14
    def spin(extra=""):
        A(f"s_sub_u32 s{S_SPIN}, s{S_SPIN}, 1\ns_cbranch_scc1 {FAIL}")
        if prof and extra: A(f"s_add_u32 {extra}, {extra}, 1")
    def chk(r, lab, neg=False):
        A(f"v_max3_u32 v{TMP}, v{r}, v{r+1}, v{r+2}\nv_max_u32 v{TMP}, v{TMP}, v{r+3}\nv_cmp_eq_u32 vcc, -1, v{TMP}\n{'s_cbranch_vccz' if neg else 's_cbranch_vccnz'} {lab}")
    def ld(r, which):
        so, off = [(S_MC, 0), (S_MC, 3072), (S_MC6, 0)][which]
        return f"buffer_load_dwordx4 {vr(r,4)}, v{V_PM}, {ws}, s{so} offen offset:{off} sc1"
    def wr(r, which): return f"ds_write_b128 v{V_PM}, {vr(r,4)} offset:{L_MEM + 3072*which}"

    P0, P1, GOK = A.uid("P0"), A.uid("P1"), A.uid("GOK")
    A.label(STEP)
    A(f"s_cmp_eq_u32 s{S_W}, 3\ns_cbranch_scc1 {JOIN}")
    S1 = (64, 68, 72); S2 = (48, 52, 76)
    def lds3(S): return "\n".join(ld(S[i], i) for i in range(3))
    def wrs3(S): return "\n".join(wr(S[i], i) for i in range(3))
    def chk3(S, lab, neg=False):
        regs = [S[i]+j for i in range(3) for j in range(4)]
        A(f"v_max3_u32 v{TMP}, v{regs[0]}, v{regs[1]}, v{regs[2]}")
        for j in range(3, 11, 2): A(f"v_max3_u32 v{TMP}, v{regs[j]}, v{regs[j+1]}, v{TMP}")
        A(f"v_max_u32 v{TMP}, v{regs[11]}, v{TMP}\nv_cmp_eq_u32 vcc, -1, v{TMP}\n{'s_cbranch_vccz' if neg else 's_cbranch_vccnz'} {lab}")
    if GMODE == 0:
        A(lds3(S1))
        if PGAP: A(f"s_sleep {PGAP}")
        A.label(P0)
        A(lds3(S2))
        A("s_waitcnt vmcnt(3)")
        A(wrs3(S1))
        chk3(S1, GOK, neg=True)
        spin("s99")
        A(lds3(S1))
        A("s_waitcnt vmcnt(3)")
        A(wrs3(S2))
        chk3(S2, P0)
    elif GMODE == 2:
        A.label(P0)
        A(lds3(S1))
        A("s_waitcnt vmcnt(0)")
        A(wrs3(S1))
        chk3(S1, GOK, neg=True)
        spin("s99")
        A(f"s_branch {P0}")
    else:
        GA, GB, GC, GC2 = 64, 68, 72, 76
        CK, AB = A.uid("CK"), A.uid("AB")
        A(ld(GA,0)); A(ld(GB,1)); A(ld(GC,2))
        A.label(P0)
        A(ld(GC2,2))
        A("s_waitcnt vmcnt(1)")
        A(wr(GC,2))
        chk(GC, CK, neg=True)
        spin("s99")
        A(ld(GC,2))
        A("s_waitcnt vmcnt(1)")
        A(wr(GC2,2))
        chk(GC2, P0)
        A.label(CK)
        A(wr(GA,0)); A(wr(GB,1))
        A(f"v_max3_u32 v{TMP}, v{GA}, v{GA+1}, v{GA+2}\nv_max3_u32 v{TMP}, v{GA+3}, v{GB}, v{TMP}\nv_max3_u32 v{TMP}, v{GB+1}, v{GB+2}, v{TMP}\nv_max_u32 v{TMP}, v{TMP}, v{GB+3}\nv_cmp_eq_u32 vcc, -1, v{TMP}")
        A(f"s_cbranch_vccz {GOK}")
        spin("s100")
        A(ld(GA,0)); A(ld(GB,1)); A(f"s_waitcnt vmcnt(0)\ns_branch {CK}")
    A.label(GOK)
    A("s_waitcnt lgkmcnt(0)")
    A.label(JOIN)
    stamp(0)
    if "steptl" in opt:
        NS_ = A.uid("NS")
        A(f"s_or_b32 s{S_T0}, s{S_H}, s{S_W}\ns_cmp_eq_u32 s{S_T0}, 0\ns_cbranch_scc0 {NS_}\ns_memrealtime s[70:71]\ns_waitcnt lgkmcnt(0)\nv_mov_b32 v14, s70\ns_lshl_b32 s{S_T0}, s{S_STEP}, 2\ns_add_u32 s{S_T0}, s{S_T0}, {WS_FLAGS + 196608}\ns_mov_b64 exec, 1\nbuffer_store_dword v14, v{V_ZERO}, {ws}, s{S_T0} offen\ns_mov_b64 exec, -1")
        A.label(NS_)
    A("s_barrier")
    if CUT: A("s_memtime s[70:71]")
    L = Lg(A)
    Q, K, V = 0, 1, 2
    order = [(Q,c) for c in range(9)] + [(K,c) for c in range(9)] + [(V,c) for c in range(9)]
    rid = {}; nxt = [0]
    def rd():
        i = nxt[0]
        if i >= len(order): return False
        rid[i] = L.issue(f"ds_read_b128 {vr(V_R + 4*(i%NRING), 4)}, v{V_L16} offset:{L_MEM + order[i][1]*1024}")
        nxt[0] += 1
        return True
    ACCS = [V_AQ, V_AK2, V_AVX]
    def item(i, f1=(), f2=(), d1=(), d2=()):
        mat, c = order[i]
        L.wait(rid[i])
        skip = ("noV" in opt and mat == 2) or ("noQ" in opt and mat == 0) or ("noK" in opt and mat == 1)
        if not skip: A(smf(ACCS[mat], V_R + 4*(i%NRING), wfrag(mat,0,c)))
        for t, k in d1: ids[k] = L.issue(t)
        for x in f1: A(x)
        if not skip: A(smf(ACCS[mat]+4, V_R + 4*(i%NRING), wfrag(mat,1,c)))
        while nxt[0] < i + 1 + NRING and rd(): pass
        for t, k in d2: ids[k] = L.issue(t)
        for x in f2: A(x)
    ids = {}
    if "flags" in opt:
        A(f"s_cmp_eq_u32 s{S_STEP}, {nsteps-1}\ns_cbranch_scc1 {FINAL}")
    for _ in range(NRING): rd()
    npf = 0 if "nopf" in opt else 1
    PF3, PF3b = A.uid("PF3"), A.uid("PF3b")
    kvl = [f"buffer_load_dwordx4 {vr(KX(c),4)}, v{V_L16}, {ws}, s{S_KXO} offen offset:{c*1024}" for c in range(4)] + \
          [f"buffer_load_dwordx4 {vr([V_VX0,V_VX1][et],4)}, v{V_L16}, {ws}, s{S_VXO} offen offset:{et*1024}" for et in range(2)]
    for i in range(0, 9): item(i, (), [kvl[i//2]] if i % 2 == 0 else ())
    stamp(1)
    qfold = []
    for t in range(2):
        b = V_AQ + 4*t
        qfold += [f"v_add_f32 v{b}, v{b}, v{b+2}", f"v_add_f32 v{b+1}, v{b+1}, v{b+3}",
                  f"v_mul_f32 v{b}, s{S_T3}, v{b}", f"v_mul_f32 v{b+1}, s{S_T3}, v{b+1}",
                  f"v_cvt_pk_bf16_f32 v{V_SX+t}, v{b}, v{b+1}"]
    item(9, (), [kvl[5]])
    item(10, (), qfold[0:2]); item(11, qfold[2:4], qfold[4:6]); item(12, qfold[6:8], qfold[8:10])
    qw = L.issue(f"ds_write2_b32 v{V_QKW}, v{V_SX}, v{V_SX+1} offset0:1 offset1:129")
    stamp("qw")
    mrd = None
    PUBL, PUBb = A.uid("PUBL"), A.uid("PUBb")
    if "flags" in opt:
        A(f"s_waitcnt vmcnt(6)\nv_add_u32 v{V_PM}, s{S_MCH}, v{V_L16}")
        mrd = L.issue(f"ds_read_b128 {vr(V_F23,4)}, v{V_PM} offset:{L_MEM}")
    item(13)
    if "flags" in opt:
        L.wait(mrd)
        A(f"s_cmp_lg_u32 s{S_MP}, 0\ns_cbranch_scc1 {PUBL}")
        A.label(PUBb)
    item(14)
    if npf:
        A(f"s_cmp_eq_u32 s{S_W}, 3\ns_cbranch_scc1 {PF3}")
        A.label(PF3b)
    W2, W2b = A.uid("W2"), A.uid("W2b")
    A(f"s_cmp_lg_u32 s{S_WV}, 0\ns_cbranch_scc1 {W2}\ns_waitcnt vmcnt(0)")
    A.label(W2b)
    stamp("preqb")
    L.wait(qw)
    A("s_barrier")
    stamp("qb")
    f2k = [(cc,Hh) for cc in range(4) for Hh in range(2)]
    fT = [f"ds_read_b64_tr_b16 {vr(F(cc)+2*Hh,2)}, v{V_TR} offset:{cc*1024 + Hh*512}" for cc, Hh in f2k]
    for j in range(4): ids[("f", j)] = L.issue(fT[j])
    item(15, d1=[(fT[4], ("f",4)), (fT[5], ("f",5))], d2=[(fT[6], ("f",6))])
    item(16, d1=[(fT[7], ("f",7))], f1=[f"v_add_u32 v{V_PM}, s{S_TAU512}, v{V_SR}"])
    item(17)
    stamp(3)
    AV = V_AVX
    L.wait(ids[("f",3)])
    A(mf32(V_SX, KX(0), F(0), "0"))
    A(mf32(V_SX, KX(1), F(1), vr(V_SX,4)))
    L.wait(ids[("f",7)])
    A(mf32(V_SX, KX(2), F(2), vr(V_SX,4)))
    A(mf32(V_SX, KX(3), F(3), vr(V_SX,4)))
    for i in range(4): A(f"v_mov_b64 {vr(V_AVX+2*i,2)}, 0")
    A("s_nop 0")
    stamp("sx")
    KD = V_AK2
    kf = []
    for t in range(2):
        b = V_AK2 + 4*t
        kf += [f"v_add_f32 v{b}, v{b}, v{b+2}", f"v_add_f32 v{b+1}, v{b+1}, v{b+3}"]
    kc = [f"v_cvt_pk_bf16_f32 v{V_AK2+4*t}, v{V_AK2+4*t}, v{V_AK2+4*t+1}" for t in range(2)]
    exo = [f"v_exp_f32 v{V_SX+r}, v{V_SX+r}" for r in range(4)]
    item(18, kf[0:1], kf[1:2]); item(19, kf[2:3], kf[3:4]); item(20, kc[0:1], kc[1:2])
    kw = L.issue(f"ds_write2_b32 v{V_QKW}, v{V_AK2}, v{V_AK2+4} offset0:0 offset1:128")
    item(21, exo[0:1], exo[1:2]); item(22, exo[2:3], exo[3:4])
    stamp("prekb")
    L.wait(kw)
    A("s_barrier")
    stamp("kb")
    pc = [f"v_cvt_pk_bf16_f32 v{V_SX}, v{V_SX}, v{V_SX+1}", f"v_cvt_pk_bf16_f32 v{V_SX+1}, v{V_SX+2}, v{V_SX+3}"]
    A(pc[0]); A(pc[1])
    sw = L.issue(f"ds_write_b64 v{V_PM}, {vr(V_SX,2)}")
    item(23, d1=[(fT[0], ("g",0)), (fT[1], ("g",1))], d2=[(fT[2], ("g",2)), (fT[3], ("g",3))])
    item(24, d1=[(fT[4], ("g",4)), (fT[5], ("g",5))], d2=[(fT[6], ("g",6)), (fT[7], ("g",7))])
    item(25)
    stamp("prepb")
    L.wait(sw)
    A("s_barrier")
    s0 = L.issue(f"ds_read2_b64 {vr(V_S0,4)}, v{V_SR} offset0:0 offset1:64")
    stamp(4)
    ones = [f"v_mov_b64 {vr(V_ONE2,2)}, s[{S_ONES}:{S_ONES+1}]", f"v_mov_b64 {vr(V_ONE2+2,2)}, s[{S_ONES}:{S_ONES+1}]"]
    item(26, ones[0:1], ones[1:2])
    NF = 18
    WB = [V_KB, V_R, V_R+8, V_AK, V_AQ, V_KA]
    NB = len(WB)
    wf = {}
    def wrd(f):
        if "noWrd" in opt:
            wf[f] = L.n; return
        if f < NF:
            sl, k = divmod(f, 2)
            L.issue(f"ds_read_b128 {vr(WB[f%NB],4)}, v{V_WO} offset:{sl*4096 + k*2048}")
            wf[f] = L.issue(f"ds_read_b128 {vr(WB[f%NB]+4,4)}, v{V_WO} offset:{sl*4096 + k*2048 + 1024}")
    sm = V_SM
    L.wait(ids[("g",3)])
    A(mf32(sm, F(0), F(0), "0"))
    A(mf32(sm, F(1), F(1), vr(sm,4)))
    L.wait(ids[("g",7)])
    A(mf32(sm, F(2), F(2), vr(sm,4)))
    A(mf32(sm, F(3), F(3), vr(sm,4)))
    wrd(0)
    L.wait(s0)
    vfold = []
    for b in (AV, AV+4):
        vfold += [f"v_add_f32 v{b}, v{b}, v{b+2}", f"v_add_f32 v{b+1}, v{b+1}, v{b+3}", f"v_cvt_pk_bf16_f32 v{b}, v{b}, v{b+1}", f"v_mov_b32 v{b+1}, 0"]
    A(mf32(F(2), V_ONE2, V_S0, "0")); A(vfold[0]); A(vfold[1])
    A(mf32(F(0), V_VX0, V_S0, "0")); A(vfold[2]); A(vfold[3])
    A(mf32(F(1), V_VX1, V_S0, "0")); A(vfold[4]); A(vfold[5])
    stamp(5)
    A(f"v_exp_f32 v{sm}, v{sm}\nv_exp_f32 v{sm+1}, v{sm+1}")
    A(vfold[6]); A(vfold[7])
    A(f"v_cvt_pk_bf16_f32 v{V_PM}, v{sm}, v{sm+1}")
    wrd(1)
    A(mf16(F(2), V_ONE2, V_PM, vr(F(2),4)))
    A(mf16(F(0), AV, V_PM, vr(F(0),4)))
    A(mf16(F(1), AV+4, V_PM, vr(F(1),4)))
    wrd(2)
    stamp("pvm0")
    RC = AV + 2
    A(f"v_mov_b32 v{RC}, s{S_LHI}\ns_nop 2")
    A(f"v_med3_f32 v{RC}, v{F(2)}, s{S_T4}, v{RC}")
    A(f"v_cmp_neq_f32 vcc, v{RC}, v{F(2)}")
    A(f"v_rcp_f32 v{RC}, v{F(2)}")
    A(f"s_and_b64 vcc, vcc, s[{S_VALID}:{S_VALID+1}]")
    SLOW = A.uid("SLOW"); BACK = A.uid("BACK"); LAST = A.uid("LAST")
    A(f"s_cbranch_vccnz {SLOW}")
    A.label(BACK)
    stamp("pvm")
    A(f"s_cmp_eq_u32 s{S_STEP}, {nsteps-1}\ns_cbranch_scc1 {LAST}")
    A("s_nop 0")
    stamp("n1")
    if "x32" in opt:
        for i in range(32): A(f"v_mov_b32 v{V_PM}, v{V_ZERO}")
    if "w64" in opt: A("s_nop 15")
    if "nopk" not in opt:
        for r in (0, 2): A(f"v_pk_mul_f32 {vr(F(0)+r,2)}, {vr(F(0)+r,2)}, {vr(RC,2)} op_sel_hi:[1,0]")
    for r in range(4):
        if "nomul" not in opt and "nopk" in opt: A(f"v_mul_f32 v{F(0)+r}, v{F(0)+r}, v{RC}")
    stamp("n2")
    A(f"v_cvt_pk_bf16_f32 v{F(0)}, v{F(0)}, v{F(0)+1}\nv_cvt_pk_bf16_f32 v{F(0)+1}, v{F(0)+2}, v{F(0)+3}")
    stamp("n3")
    if "nopk" not in opt:
        for r in (0, 2): A(f"v_pk_mul_f32 {vr(F(1)+r,2)}, {vr(F(1)+r,2)}, {vr(RC,2)} op_sel_hi:[1,0]")
    for r in range(4):
        if "nomul" not in opt and "nopk" in opt: A(f"v_mul_f32 v{F(1)+r}, v{F(1)+r}, v{RC}")
    stamp("n4")
    A(f"v_cvt_pk_bf16_f32 v{F(1)}, v{F(1)}, v{F(1)+1}\nv_cvt_pk_bf16_f32 v{F(1)+1}, v{F(1)+2}, v{F(1)+3}")
    stamp("n5")
    A(f"s_mov_b64 exec, s[{S_VALID}:{S_VALID+1}]")
    ow = L.issue(f"ds_write2_b64 v{V_OW}, {vr(F(0),2)}, {vr(F(1),2)} offset0:0 offset1:4")
    A("s_mov_b64 exec, -1")
    stamp(6)
    ACC = [V_VX0, V_VX1]
    for a in ACC:
        A(f"v_mov_b64 {vr(a,2)}, 0\nv_mov_b64 {vr(a+2,2)}, 0")
    A(f"v_mov_b32 v{V_OUT+3}, s{S_TAG}")
    stamp("o1")
    L.wait(ow)
    stamp("o2")
    A("s_barrier")
    stamp("o3")
    o0 = L.issue(f"ds_read_b128 {vr(V_F23,4)}, v{V_L16} offset:{L_O}")
    o1 = L.issue(f"ds_read_b128 {vr(V_F23+4,4)}, v{V_L16} offset:{L_O+1024}")
    wrd(3); wrd(4); wrd(5)
    stamp("o4")
    stamp("o5")
    stamp("o6")
    L.wait(o1)
    stamp(7)
    NT = 9
    NA = len(ACC)
    def epi(sl):
        a = ACC[sl % NA]; tau = sl % 3
        q = [f"v_add_f32 v{a}, v{a}, v{a+2}", f"v_add_f32 v{a+1}, v{a+1}, v{a+3}", f"v_cvt_pk_bf16_f32 v{V_OUT+tau}, v{a}, v{a+1}"]
        if sl < NT - NA: q += [f"v_mov_b64 {vr(a,2)}, 0", f"v_mov_b64 {vr(a+2,2)}, 0"]
        if tau == 2:
            sg = sl // 3
            q += [f"s_add_u32 s{S_T0}, s{S_P1}, {sg*131072}", f"buffer_store_dwordx4 {vr(V_OUT,4)}, v{V_P1}, {ws}, s{S_T0} offen {st}"]
        return q
    rq = []
    for f in range(NB, NF): rq += [(f, 0), (f, 1)]
    free_after = {f: (f - NB) for f in range(NB, NF)}
    issued = set(range(NB))
    done_sm = set()
    def pump(n):
        k = 0
        while rq and k < n and (free_after[rq[0][0]] in done_sm):
            f, h = rq.pop(0)
            sl_, kk = divmod(f, 2)
            i_ = L.issue(f"ds_read_b128 {vr(WB[f%NB]+4*h,4)}, v{V_WO} offset:{sl_*4096 + kk*2048 + h*1024}")
            if h == 1: wf[f] = i_
            k += 1
        return k
    for sl in range(NT):
        if sl in (3, 6): stamp(f"wo{sl}")
        pend = epi(sl - 1) if sl >= 1 else []
        while (2*sl+1) not in wf: pump(1)
        L.wait(wf[2*sl+1])
        budget = WOP[sl]
        for k in range(2):
            f = 2*sl + k
            if "noWo" not in opt: A(smf(ACC[sl%NA], V_F23 + 4*k, vr(WB[f%NB], 8)))
            done_sm.add(f)
            n = pump(min(2, budget)); budget -= n
            if k == 0 and pend:
                fill = (3 if sl == 1 else 0) + max(0, 2 - n)
                if sl == 1: A("s_nop 3")
                elif n < 2: A(f"s_nop {1 - n}") if n < 2 else None
            if pend: A(pend.pop(0))
        for x in pend: A(x)
        if sl >= 1 and sl < NT - NA + 1: A("s_nop 0")
    A("s_nop 6")
    for x in epi(NT-1): A(x)
    stamp(8)
    hk = housekeeping()
    if "fixkv" in opt: hk = [x for x in hk if f"s{S_KXO}," not in x and f"s{S_VXO}," not in x]
    zero = [f"v_mov_b64 {vr(b+2*i,2)}, 0" for b in (V_AQ, V_AK) for i in range(4)]
    NR = A.uid("NR"); R0 = A.uid("R0"); R1 = A.uid("R1"); RB = A.uid("RB"); RW3 = A.uid("RW3")
    SEL = V_F23
    A(f"s_cmp_eq_u32 s{S_W}, 3\ns_cbranch_scc1 {RW3}")
    A(f"s_mov_b32 s{S_T1}, s{S_P1}\ns_mov_b32 s{S_T2}, s{S_MN}\ns_mov_b32 s53, s{S_MC}\ns_mov_b32 s41, s{S_TAG4}")
    A(f"buffer_load_dwordx4 {vr(SEL,4)}, v{V_L16}, {ws}, s{S_SELO} offen")
    zeroq = [f"v_mov_b64 {vr(V_AQ+2*i,2)}, 0" for i in range(4)]
    zerok = [f"v_mov_b64 {vr(V_AK+2*i,2)}, 0" for i in range(4)]
    for x in hk + zeroq: A(x)
    d0, d1, d2 = DELAYS
    if d0: A(f"s_sleep {d0}")
    A(f"s_cmp_eq_u32 s{S_W}, 0\ns_cbranch_scc1 {R0}")
    if d1: A(f"s_sleep {d1}")
    A(f"s_cmp_eq_u32 s{S_W}, 1\ns_cbranch_scc1 {R0}")
    if d2: A(f"s_sleep {d2}")
    A.label(R0)
    stamp(11)
    BX, BY = V_R, V_KA
    def rl(B): return [f"buffer_load_dwordx4 {vr(B+4*q,4)}, v{V_RD}, {ws}, s{S_T1} offen offset:{q*1024} sc1" for q in range(4)]
    def proc(B, young=4):
        for q in range(4):
            A(f"s_waitcnt vmcnt({young + 3 - q})")
            A(mf32(V_SX, B+4*q, SEL, "0" if q == 0 else vr(V_SX,4)))
        A(f"v_add3_u32 v{V_PM}, v{B+3}, v{B+7}, v{B+11}\nv_add_u32 v{V_PM}, v{V_PM}, v{B+15}\nv_cmp_ne_u32 vcc, s41, v{V_PM}")
    FIN = A.uid("FIN")
    if RGAP >= 50:
        for x in rl(BX): A(x)
        for x in zerok: A(x)
        A.label(RB)
        proc(BX, 0)
        A(f"s_cbranch_vccz {FIN}")
        spin("s98")
        for x in rl(BX): A(x)
        A(f"s_branch {RB}")
    else:
        for x in rl(BX): A(x)
        for x in zerok: A(x)
        if RGAP: A(f"s_sleep {RGAP}")
        for x in rl(BY): A(x)
        proc(BX, 4)
        A(f"s_cbranch_vccz {FIN}")
        A.label(RB)
        spin("s98")
        for x in rl(BX): A(x)
        proc(BY)
        A(f"s_cbranch_vccz {FIN}")
        spin("s98")
        for x in rl(BY): A(x)
        proc(BX)
        A(f"s_cbranch_vccnz {RB}")
        A("s_nop 0")
    A.label(FIN)
    stamp(12)
    A(f"v_mov_b32 v{V_PM}, -1\ns_mov_b64 exec, s[{S_MMASK}:{S_MMASK+1}]\ns_nop 1")
    A(f"v_add_f32 v{V_SX}, v{V_SX}, v{V_SX+2}\nv_add_f32 v{V_SX+1}, v{V_SX+1}, v{V_SX+3}\nv_cvt_pk_bf16_f32 v{V_SX}, v{V_SX}, v{V_SX+1}")
    A(f"buffer_store_dword v{V_SX}, v{V_MST}, {ws}, s{S_T2} offen {st}")
    A(f"buffer_store_dword v{V_PM}, v{V_MST}, {ws}, s53 offen {st}")
    A("s_mov_b64 exec, -1")
    if G01:
        NG01 = A.uid("NG")
        A(f"s_cmp_eq_u32 s{S_W}, 2\ns_cbranch_scc1 {NR}\ns_sleep {G01}")
    A.label(NR)
    A(f"v_add_u32 v{V_PM}, s{S_GW}, v{V_L16}")
    stamp(13)
    stamp_acc()
    A(f"s_mov_b32 s{S_SPIN}, {SPIN_MAX}")
    A(f"s_branch {STEP}")
    A.label(RW3)
    for x in hk + zeroq + zerok: A(x)
    if "flags" in opt:
        A(f"s_waitcnt vmcnt(3)")
        PW, PK = A.uid("PW"), A.uid("PK")
        A(f"s_cmp_lt_u32 s{S_STEP}, 62\ns_cbranch_scc0 {PK}")
        A.label(PW)
        A(f"v_readfirstlane_b32 s{S_T1}, v{V_PF+1}")
        A(f"s_sub_u32 s{S_T1}, s{S_T1}, s7\ns_sub_u32 s{S_T1}, s{S_T1}, 1\ns_cmp_lt_u32 s{S_T1}, 16\ns_cbranch_scc0 {PW}n\ns_cmp_ge_u32 s{S_T1}, s{S_PKK}\ns_cbranch_scc1 {PK}")
        A.label(PW + "n")
        spin()
        A(f"s_sleep 8\nbuffer_load_dword v{V_PF+1}, v{V_ZERO}, {ws}, s{S_PFA} offen sc1\ns_waitcnt vmcnt(0)\ns_branch {PW}")
        A.label(PK)
        A(f"s_add_u32 s{S_PRHO}, s{S_PRHO}, 1\ns_cmp_eq_u32 s{S_PRHO}, 7\ns_cselect_b32 s{S_T0}, 1, 0\ns_cselect_b32 s{S_PRHO}, 0, s{S_PRHO}\ns_add_u32 s{S_PKK}, s{S_PKK}, s{S_T0}")
        A(f"s_lshl_b32 s{S_PFA}, s{S_PRHO}, 2\ns_add_u32 s{S_PFA}, s{S_PFA}, s{S_PFO}")
    A(f"s_add_u32 s{S_PF0}, s{S_KV}, {32*16384}\ns_add_u32 s{S_PF1}, s{S_PF0}, 8192")
    stamp(11); stamp(12)
    A(f"s_branch {NR}")
    if "flags" in opt:
        A.label(PUBL)
        A(f"s_mov_b64 exec, 1\nv_mov_b32 v{V_PM}, s{S_CFV}\nbuffer_store_dword v{V_PM}, v{V_ZERO}, {ws}, s{S_CFO} offen sc1\ns_mov_b64 exec, -1")
        A(f"buffer_store_dwordx4 {vr(V_F23,4)}, v{V_L16}, {ws}, s{S_KMC} offen sc1\ns_branch {PUBb}")
    if npf:
        A.label(PF3)
        A(f"buffer_load_dword v{V_PF+1}, v{V_PF}, {ws}, s{S_PF0} offen\nbuffer_load_dword v{V_PF+1}, v{V_PF}, {ws}, s{S_PF1} offen")
        if "flags" in opt: A(f"buffer_load_dword v{V_PF+1}, v{V_ZERO}, {ws}, s{S_PFA} offen sc1")
        A(f"s_branch {PF3b}")
    A.label(W2)
    if "flags" in opt:
        A(f"s_cmp_eq_u32 s{S_W}, 3\ns_cbranch_scc0 {W2}m\ns_waitcnt vmcnt({2*npf + 1})\ns_branch {W2b}")
        A.label(W2 + "m"); A(f"s_waitcnt vmcnt(2)\ns_branch {W2b}")
    else:
        A(f"s_waitcnt vmcnt({2*npf})\ns_branch {W2b}")
    A.label(SLOW)
    L2 = Lg(A)
    A("s_nop 7")
    for cc in range(4):
        for Hh in range(2):
            L2.issue(f"ds_read_b64_tr_b16 {vr(F(cc)+2*Hh,2)}, v{V_TR} offset:{cc*1024 + Hh*512}")
    T0r, T1r = V_S0, V_SX
    for tau in range(2):
        A(f"s_add_u32 s{S_T0}, s{S_KV}, {tau*4096}")
        for c in range(4): A(f"buffer_load_dwordx4 {vr(V_R+4*c,4)}, v{V_L16}, {ws}, s{S_T0} offen offset:{c*1024}")
        A("s_waitcnt vmcnt(0) lgkmcnt(0)")
        d = [T0r, T1r][tau]
        for c in range(4): A(mf32(d, V_R+4*c, F(c), "0" if c == 0 else vr(d,4)))
        A("s_nop 7")
    for c in range(4):
        A(mf32(sm, F(c), F(c), "0" if c == 0 else vr(sm,4)))
    A("s_nop 7\ns_nop 1")
    a0, a1 = T0r, T1r
    A(f"v_max3_f32 v{V_PM}, v{a0}, v{a0+1}, v{a0+2}")
    A(f"v_max3_f32 v{V_PM}, v{a0+3}, v{a1}, v{V_PM}")
    A(f"v_max3_f32 v{V_PM}, v{a1+1}, v{a1+2}, v{V_PM}")
    A(f"v_max3_f32 v{V_PM}, v{a1+3}, v{sm}, v{V_PM}")
    A(f"v_max_f32 v{V_PM}, v{sm+1}, v{V_PM}")
    t = F(3)
    A(f"v_mov_b32 v{t}, v{V_PM}\ns_nop 1\nv_permlane32_swap_b32 v{t}, v{V_PM}\ns_nop 1\nv_max_f32 v{V_PM}, v{V_PM}, v{t}")
    A(f"v_mov_b32 v{t}, v{V_PM}\ns_nop 1\nv_permlane16_swap_b32 v{t}, v{V_PM}\ns_nop 1\nv_max_f32 v{V_PM}, v{V_PM}, v{t}")
    rs = list(range(a0, a0+4)) + list(range(a1, a1+4)) + [sm, sm+1]
    for r in rs: A(f"v_sub_f32 v{r}, v{r}, v{V_PM}")
    for r in rs: A(f"v_exp_f32 v{r}, v{r}")
    A("s_nop 0")
    A(f"v_cvt_pk_bf16_f32 v{a0}, v{a0}, v{a0+1}\nv_cvt_pk_bf16_f32 v{a0+1}, v{a0+2}, v{a0+3}")
    A(f"v_cvt_pk_bf16_f32 v{a0+2}, v{a1}, v{a1+1}\nv_cvt_pk_bf16_f32 v{a0+3}, v{a1+2}, v{a1+3}")
    A(f"v_cvt_pk_bf16_f32 v{V_PM}, v{sm}, v{sm+1}")
    A(f"v_mov_b64 {vr(V_ONE2,2)}, s[{S_ONES}:{S_ONES+1}]\nv_mov_b64 {vr(V_ONE2+2,2)}, s[{S_ONES}:{S_ONES+1}]\ns_nop 1")
    A(mf32(F(0), V_VX0, V_S0, "0"))
    A(mf32(F(1), V_VX1, V_S0, "0"))
    A(mf32(F(2), V_ONE2, V_S0, "0"))
    A("s_nop 7")
    A(mf16(F(2), V_ONE2, V_PM, vr(F(2),4)))
    A(mf16(F(0), AV, V_PM, vr(F(0),4)))
    A(mf16(F(1), AV+4, V_PM, vr(F(1),4)))
    for f in range(3):
        sl, k = divmod(f, 2)
        A(f"ds_read_b128 {vr(WB[f],4)}, v{V_WO} offset:{sl*4096 + k*2048}\nds_read_b128 {vr(WB[f]+4,4)}, v{V_WO} offset:{sl*4096 + k*2048 + 1024}")
    A("s_waitcnt lgkmcnt(0)\ns_nop 7")
    A(f"v_rcp_f32 v{RC}, v{F(2)}")
    A(f"s_branch {BACK}")
    A.label(LAST)
    A(f"s_branch {DONE}")
    if "flags" in opt:
        A.label(FINAL)
        A(f"s_cmp_lg_u32 s{S_MP}, 0\ns_cbranch_scc0 {DONE}")
        A(f"s_lshl_b32 s{S_T0}, s{S_H}, 10\nv_add_u32 v{V_PM}, s{S_T0}, v{V_L16}\nds_read_b128 {vr(V_F23,4)}, v{V_PM} offset:{L_MEM}")
        A(f"s_add_u32 s{S_T0}, s{S_T0}, s{S_KM}\ns_waitcnt lgkmcnt(0)")
        A(f"buffer_store_dwordx4 {vr(V_F23,4)}, v{V_L16}, {ws}, s{S_T0} offen sc1\ns_waitcnt vmcnt(0)")
        A(f"s_add_u32 s{S_T0}, s7, {nsteps}\nv_mov_b32 v{V_PM}, s{S_T0}\ns_mov_b64 exec, 1")
        A(f"buffer_store_dword v{V_PM}, v{V_ZERO}, {ws}, s{S_CFO} offen sc1\ns_mov_b64 exec, -1")
        A(f"s_branch {DONE}")
    if CUT:
        A.label(CUTL)
        A(f"s_mov_b64 exec, -1\ns_waitcnt vmcnt(0) lgkmcnt(0)\ns_nop 7\ns_sub_u32 s72, s72, s70\ns_add_u32 s86, s86, s72")
        for b in (V_AQ, V_AK):
            for i in range(4): A(f"v_mov_b64 {vr(b+2*i,2)}, 0")
        for c in range(4): A(f"buffer_load_dwordx4 {vr(KX(c),4)}, v{V_L16}, {ws}, s{S_KXO} offen offset:{c*1024}")
        for et in range(2): A(f"buffer_load_dwordx4 {vr([V_VX0,V_VX1][et],4)}, v{V_L16}, {ws}, s{S_VXO} offen offset:{et*1024}")
        A(f"s_waitcnt vmcnt(0)\ns_add_u32 s{S_STEP}x, 0, 0".replace(f"s_add_u32 s{S_STEP}x, 0, 0", "s_add_u32 s87, s87, 1"))
        A(f"s_cmp_lt_u32 s87, 63\ns_cbranch_scc1 {JOIN}\ns_branch {DONE}")
    A.label(FAIL)
    A(f"s_mov_b64 exec, -1\ns_mov_b32 s{S_FAIL}, 1")
    A.label(DONE)


def chain_init_mem(A, st):
    ws = f"s[{SRD_WS}:{SRD_WS+3}]"
    N0 = A.uid("IM"); N1 = A.uid("IM")
    A(f"""
    s_cmp_lt_u32 s{S_H}, 9
    s_cbranch_scc0 {N1}
    s_cmp_eq_u32 s{S_W}, 0
    s_cbranch_scc0 {N0}
    s_load_dwordx2 s[4:5], s[0:1], {KA['A_mem0']}
    s_waitcnt lgkmcnt(0)
    s_mov_b32 s{SRD_W}, s4
    s_mov_b32 s{SRD_W+1}, s5
    s_mov_b32 s{SRD_W+2}, {8*1152}
    s_mov_b32 s{SRD_W+3}, 0x00020000
    v_bfe_u32 v24, v{V_L16}, 4, 4            ; n
    v_lshrrev_b32 v25, 2, v24
    v_lshlrev_b32 v25, 1, v25
    v_and_b32 v26, 1, v24
    v_add_u32 v25, v25, v26                  ; irow
    v_mul_u32_u24 v25, 1152, v25
    v_bfe_u32 v26, v24, 1, 1                 ; hf
    v_lshl_add_u32 v25, v26, 4, v25
    v_lshrrev_b32 v26, 8, v{V_L16}           ; g
    v_lshl_add_u32 v25, v26, 5, v25
    s_lshl_b32 s{S_T0}, s{S_H}, 7            ; c*128 bytes
    buffer_load_dwordx4 v[28:31], v25, s[{SRD_W}:{SRD_W+3}], s{S_T0} offen
    s_lshl_b32 s{S_T0}, s{S_H}, 10
    s_add_u32 s{S_T0}, s{S_T0}, {WS_M}
    s_waitcnt vmcnt(0)
    buffer_store_dwordx4 v[28:31], v{V_L16}, {ws}, s{S_T0} offen {st}
    s_branch {N1}
    {N0}:
    v_mov_b32 v28, -1
    v_mov_b32 v29, -1
    v_mov_b32 v30, -1
    v_mov_b32 v31, -1
    s_mul_i32 s{S_T0}, s{S_W}, {M_SLOT}
    s_lshl_b32 s{S_T1}, s{S_H}, 10
    s_add_u32 s{S_T0}, s{S_T0}, s{S_T1}
    s_add_u32 s{S_T0}, s{S_T0}, {WS_M}
    s_cmp_eq_u32 s{S_W}, 3
    s_cbranch_scc1 {N0}s
    buffer_store_dwordx4 v[28:31], v{V_L16}, {ws}, s{S_T0} offen {st}
    s_branch {N1}
    {N0}s:
    v_bfe_u32 v24, v{V_L16}, 4, 3            ; j = n & 7
    v_and_b32 v25, 1, v24
    v_lshlrev_b32 v25, 4, v25
    v_mov_b32 v26, 0x3f80
    v_lshlrev_b32 v25, v25, v26              ; X
    v_lshrrev_b32 v24, 1, v24
    """)
    for r in range(4):
        A(f"v_cmp_eq_u32 vcc, {r}, v24\ns_nop 1\nv_cndmask_b32 v{28+r}, 0, v25, vcc")
    A(f"s_mov_b32 s{S_T0}, {WS_SEL}\nbuffer_store_dwordx4 v[28:31], v{V_L16}, {ws}, s{S_T0} offen {st}")
    A.label(N1)
    A("s_waitcnt vmcnt(0)")


def load_all_weights(A):
    import common as CM
    def trfun(mi, half):
        base = L_WO + (0 if half == 0 else 81920)
        A(f"""
        v_lshrrev_b32 v24, 8, v{V_L16}          ; gB
        v_bfe_u32 v25, v{V_L16}, 6, 2           ; r
        v_bfe_u32 v26, v{V_L16}, 4, 2           ; cq
        v_lshrrev_b32 v27, 1, v24
        v_lshlrev_b32 v27, 4, v27
        v_lshrrev_b32 v28, 1, v25
        v_lshl_add_u32 v27, v28, 3, v27
        v_and_b32 v29, 1, v24
        v_lshl_add_u32 v27, v29, 2, v27
        v_and_b32 v30, 1, v25
        v_add_u32 v27, v27, v30                 ; row
        v_lshlrev_b32 v27, 8, v27
        v_lshl_add_u32 v30, v29, 1, v30
        v_lshl_add_u32 v30, v28, 2, v30         ; f
        v_lshl_add_u32 v27, v26, 3, v27
        v_add_u32 v27, {base}, v27
        s_lshl_b32 s{S_T0}, s{S_W}, 1
        """)
        cs = range(0, 5) if half == 0 else range(5, 9)
        for et in range(2):
            A(f"""
            s_add_u32 s{S_T1}, s{S_T0}, {et}
            v_xor_b32 v31, s{S_T1}, v30
            v_lshl_add_u32 v31, v31, 5, v27
            """)
            for c in cs:
                kind, b = wfrag_regs(mi, et, c)
                for Hh in range(2):
                    for rr in range(2):
                        reg = b + 4 * Hh + 2 * rr
                        A(f"ds_read_b64_tr_b16 {kind}[{reg}:{reg+1}], v31 offset:{Hh*8192 + rr*512}")
                A(f"s_waitcnt lgkmcnt(0)\nv_add_u32 v31, 16384, v31")
    CM.load_head_slices_pipelined(A, [KA['A_Wq'], KA['A_Wk'], KA['A_Wv']], L_WO, trfun)
    load_wo(A)
```

```python
import sys
sys.path.insert(0, "gen")
from common import *
import chain5 as C, pstation as P, astation as AS, wstation as W, bstation as B

KNAME = "concat_heads__memory_aug_recurrent_mem_tr__grouped_kv_mqa__prompt_kernel"
SPIN = 4000000
GRAN = 32
NREG = 60

def poll_flags(A, s_off, nflags, fail, tmp=(2, 3), spin=35, s_val=S_NONCE):
    ws = f"s[{SRD_WS}:{SRD_WS+3}]"
    Wl = A.uid("PW")
    a, b = tmp
    A(f"v_lshrrev_b32 v{a}, 2, v{V_L16}\nv_cmp_gt_u32 vcc, {4*nflags}, v{a}\ns_nop 1\nv_cndmask_b32 v{a}, 0, v{a}, vcc\ns_mov_b32 s{spin}, {SPIN}")
    A.label(Wl)
    A(f"""
    buffer_load_dword v{b}, v{a}, {ws}, s{s_off} offen sc1
    s_waitcnt vmcnt(0)
    v_cmp_ne_u32 vcc, s{s_val}, v{b}
    s_cbranch_vccz {Wl}k
    s_sub_u32 s{spin}, s{spin}, 1
    s_cbranch_scc1 {fail}
    s_sleep 4
    s_branch {Wl}
    {Wl}k:
    """)

def build(opt=()):
    A = Asm()
    def tl(i, vt=(60,61)):
        if "tl" not in opt: return
        ws = f"s[{SRD_WS}:{SRD_WS+3}]"
        L = A.uid("TL")
        A(f"""
        s_cmp_eq_u32 s{S_W}, 0
        s_cbranch_scc0 {L}
        s_memrealtime s[98:99]
        s_waitcnt lgkmcnt(0)
        v_mov_b32 v{vt[0]}, s98
        v_mov_b32 v{vt[1]}, 0
        s_lshl_b32 s98, s6, 6
        s_add_u32 s98, s98, {WS_FLAGS + 32768 + i*4}
        s_mov_b64 exec, 1
        buffer_store_dword v{vt[0]}, v{vt[1]}, {ws}, s98 offen sc1
        s_mov_b64 exec, -1
        {L}:
        """)
    END = "K_END"
    A(f"""
    s_cmp_lt_u32 s2, 256
    s_cbranch_scc1 K_GO
    s_endpgm
    K_GO:
    s_load_dwordx2 s[4:5], s[0:1], {KA['ws']}
    s_load_dwordx2 s[20:21], s[0:1], {KA['dbg']}
    s_getreg_b32 s3, hwreg(HW_REG_XCC_ID, 0, 4)
    s_waitcnt lgkmcnt(0)
    s_mov_b32 s{SRD_WS}, s4
    s_mov_b32 s{SRD_WS+1}, s5
    s_mov_b32 s{SRD_WS+2}, {WS_SIZE}
    s_mov_b32 s{SRD_WS+3}, 0x00020000
    s_mov_b32 s12, s20
    s_mov_b32 s13, s21
    s_mov_b32 s14, 256
    s_mov_b32 s15, 0x00020000
    """)
    lane_setup(A)
    A("s_mov_b32 s6, s2")
    tl(0, (6,7))
    A(f"""
    s_cmp_eq_u32 s{S_W}, 0
    s_cbranch_scc0 K_TK1
    s_mov_b64 exec, 1
    v_mov_b32 v2, 1
    v_mov_b32 v3, 0
    s_mov_b32 s22, -1
    s_cmp_eq_u32 s3, 0
    s_cbranch_scc0 K_TB
    buffer_atomic_add v2, v3, s[12:15], 0 offen sc0
    s_waitcnt vmcnt(0)
    v_readfirstlane_b32 s22, v2
    s_cmp_lt_u32 s22, 32
    s_cbranch_scc1 K_TW
    K_TB:
    v_mov_b32 v2, 1
    buffer_atomic_add v2, v3, s[12:15], 0 offen offset:64 sc0
    s_waitcnt vmcnt(0)
    v_readfirstlane_b32 s23, v2              ; ticket B
    s_mov_b32 s22, -1
    s_cmp_lt_u32 s23, 224
    s_cbranch_scc1 K_TB2
    s_sub_u32 s22, 255, s23
    K_TB2:
    s_cmp_eq_u32 s23, 0
    s_cbranch_scc0 K_TW2
    s_mov_b64 exec, -1
    """)
    ws_ = f"s[{SRD_WS}:{SRD_WS+3}]"
    make_srd(A, 24, KA['A_mem0'], None, 8*1152, tmp=4)
    A(f"""
    v_bfe_u32 v8, v{V_L16}, 4, 4             ; n
    v_lshrrev_b32 v9, 2, v8
    v_lshlrev_b32 v9, 1, v9
    v_and_b32 v10, 1, v8
    v_add_u32 v9, v9, v10                    ; irow
    v_mul_u32_u24 v9, 1152, v9
    v_bfe_u32 v10, v8, 1, 1                  ; hf
    v_lshl_add_u32 v9, v10, 4, v9
    v_lshrrev_b32 v10, 8, v{V_L16}           ; g
    v_lshl_add_u32 v9, v10, 5, v9
    """)
    for c in range(9): A(f"buffer_load_dwordx4 v[{16+4*c}:{19+4*c}], v9, s[24:27], 0 offen offset:{c*128}")
    A("v_mov_b32 v12, -1\nv_mov_b32 v13, -1\nv_mov_b32 v14, -1\nv_mov_b32 v15, -1")
    for c in range(18): A(f"s_mov_b32 s28, {WS_M + M_SLOT + c*1024}\nbuffer_store_dwordx4 v[12:15], v{V_L16}, {ws_}, s28 offen sc1")
    A(f"""
    v_and_b32 v8, 7, v8                      ; j = n & 7
    v_and_b32 v9, 1, v8
    v_lshlrev_b32 v9, 4, v9
    v_mov_b32 v10, 0x3f80
    v_lshlrev_b32 v9, v9, v10
    v_lshrrev_b32 v8, 1, v8
    """)
    for r in range(4): A(f"v_cmp_eq_u32 vcc, {r}, v8\ns_nop 1\nv_cndmask_b32 v{56+r}, 0, v9, vcc")
    A(f"s_mov_b32 s28, {WS_SEL}\nbuffer_store_dwordx4 v[56:59], v{V_L16}, {ws_}, s28 offen sc1\ns_waitcnt vmcnt(19)")
    for c in range(9): A(f"s_mov_b32 s28, {WS_M + c*1024}\nbuffer_store_dwordx4 v[{16+4*c}:{19+4*c}], v{V_L16}, {ws_}, s28 offen sc1")
    A(f"""
    s_waitcnt vmcnt(0)
    s_mov_b64 exec, 1
    s_memrealtime s[24:25]
    s_waitcnt lgkmcnt(0)
    s_or_b32 s24, s24, 1
    v_mov_b32 v2, s24
    buffer_store_dword v2, v3, s[12:15], 0 offen offset:128 sc1
    s_branch K_TW2
    K_TW:
    s_mov_b32 s23, -1
    K_TW2:
    v_mov_b32 v4, s22
    v_mov_b32 v5, s23
    ds_write_b64 v3, v[4:5]
    s_waitcnt lgkmcnt(0)
    s_mov_b64 exec, -1
    K_TK1:
    s_barrier
    v_mov_b32 v3, 0
    ds_read_b64 v[4:5], v3
    s_waitcnt lgkmcnt(0)
    v_readfirstlane_b32 s22, v4
    v_readfirstlane_b32 s23, v5
    s_barrier
    s_cmp_eq_u32 s23, -1
    s_cbranch_scc1 K_ROK
    s_cmp_lt_u32 s23, 256
    s_cbranch_scc1 K_ROK
    s_endpgm
    K_ROK:
    s_cmp_eq_u32 s22, -1
    s_cbranch_scc1 K_BULK
    s_branch K_CHAIN
    K_BULK:
    """)
    def get_nonce(fail, srd=12):
        Wl = A.uid("NW")
        A(f"v_mov_b32 v3, 0\ns_mov_b32 s35, {SPIN}")
        A.label(Wl)
        A(f"""
        buffer_load_dword v2, v3, s[{srd}:{srd+3}], 0 offen offset:128 sc1
        s_waitcnt vmcnt(0)
        v_readfirstlane_b32 s{S_NONCE}, v2
        s_cmp_lg_u32 s{S_NONCE}, 0
        s_cbranch_scc1 {Wl}k
        s_sub_u32 s35, s35, 1
        s_cbranch_scc1 {fail}
        s_sleep 2
        s_branch {Wl}
        {Wl}k:
        """)
    A(f"s_and_b32 s{S_H}, s23, 31\ns_lshr_b32 s50, s23, 5\ns_mov_b32 s51, s23")
    A("s_mov_b32 s88, s12\ns_mov_b32 s89, s13\ns_mov_b32 s90, s14\ns_mov_b32 s91, s15")
    if "nowarm" not in opt:
        A(f"s_mul_i32 s40, s51, 21504\ns_mul_i32 s41, s{S_W}, 5376\ns_add_u32 s40, s40, s41")
        for ka in (KA['A_Wq'], KA['A_Wk'], KA['A_Wv'], KA['A_Wo']):
            make_srd(A, SRD_A, ka, None, 576*8192)
            for i in range(6):
                A(f"buffer_load_dwordx4 v[8:11], v{V_L16}, s[{SRD_A}:{SRD_A+3}], s40 offen offset:{min(i*1024, 4080)}" if i < 4 else
                  f"s_add_u32 s42, s40, {i*1024}\nbuffer_load_dwordx4 v[8:11], v{V_L16}, s[{SRD_A}:{SRD_A+3}], s42 offen")
    if "delaybulk" in opt:
        A("s_mov_b32 s40, 0\nK_DL:\ns_sleep 127\ns_add_u32 s40, s40, 1\ns_cmp_lt_u32 s40, 3\ns_cbranch_scc1 K_DL")
    n0 = len(A.lines)
    tl(1, (6,7))
    A("s_lshl_b32 s6, s51, 0\ns_add_u32 s6, s6, 256")
    tl(0, (6,7))
    A("s_cmp_lt_u32 s50, 2\ns_cbranch_scc1 K_AP")
    P.p_station(A, 50, nrep=7, flag=True, get_nonce=lambda: get_nonce(END, 88))
    tl(2, (6,7))
    hz = check_hazards(A.lines[n0:], "P")
    A(f"""
    s_cmp_eq_u32 s50, 2
    s_cbranch_scc1 K_WB1
    s_branch K_B2
    K_AP:
    """)
    n0 = len(A.lines)
    AS.a_load(A)
    P.p_station(A, 50, nrep=7, flag=True, get_nonce=lambda: get_nonce(END, 88), wr=lambda mat, et, cc: AS.wreg(1 + mat, et, cc), load=False)
    tl(2, (6,7))
    A(f"""
    s_lshl_b32 s28, s{S_H}, 5
    s_add_u32 s28, s28, {WS_FLAGS + F_P}
    s_add_u32 s29, s{S_NONCE}, 16
    """)
    poll_flags(A, 28, 7, END, s_val=29)
    AS.a_station(A, s_par=50, nrep=2, wait_chain=True, flag=True, load=False, prof=("aprof" in opt))
    hz += check_hazards(A.lines[n0:], "A")
    tl(3, (6,7))
    A(f"s_branch {END}")
    A.label("K_WB1")
    A(f"""
    s_sub_u32 s52, s51, 64                   ; 0..31
    s_cmp_lt_u32 s52, 24
    s_cbranch_scc0 K_B1
    s_cmp_ge_u32 s52, 12
    s_cselect_b32 s54, 1, 0
    s_mul_i32 s53, s54, 12
    s_sub_u32 s53, s52, s53
    """)
    n0 = len(A.lines)
    W.w_station(A, 53, 54, 2, wait=True, nseg=NREG)
    hz += check_hazards(A.lines[n0:], "W")
    tl(3, (4,5))
    A(f"s_branch {END}")
    A.label("K_B1")
    A("s_sub_u32 s53, s52, 24")
    n0 = len(A.lines)
    B.b1_station(A, 53)
    hz += check_hazards(A.lines[n0:], "B1")
    tl(3, (6,7))
    A(f"s_branch {END}")
    A.label("K_B2")
    A("s_sub_u32 s53, s51, 96")
    n0 = len(A.lines)
    B.b2_station(A, 53, wait=True)
    hz += check_hazards(A.lines[n0:], "B2")
    tl(4, (6,7))
    A(f"""
    s_cmp_lt_u32 s53, {(64-NREG)*24}
    s_cbranch_scc1 K_WH
    s_endpgm
    K_WH:
    s_barrier
    s_mul_i32 s54, s53, 21846
    s_lshr_b32 s54, s54, 18                  ; u = idx / 12
    s_mul_i32 s55, s54, 12
    s_sub_u32 s55, s53, s55                  ; cg
    s_and_b32 s56, s54, 1                    ; tt
    s_lshr_b32 s54, s54, 1
    s_add_u32 s54, s54, {NREG}               ; segment
    """)
    n0 = len(A.lines)
    W.w_station(A, 55, 54, 64, wait=True, nseg=64, s_tt=56)
    hz += check_hazards(A.lines[n0:], "WH")
    tl(3, (4,5))
    A(f"s_endpgm")
    A.label("K_CHAIN")
    A(f"s_mov_b32 s{C.S_H}, s22\nv_lshrrev_b32 v0, 4, v0\ns_lshl_b32 s28, s{S_W}, 6\nv_add_u32 v0, s28, v0")
    A("s_mov_b32 s60, s12\ns_mov_b32 s61, s13\ns_mov_b32 s62, s14\ns_mov_b32 s63, s15")
    C.setup_regs(A)
    A(f"s_add_u32 s6, s{C.S_H}, 512")
    tl(0, (14,15))
    if "nocw" not in opt:
        A(f"""
        s_getpc_b64 s[4:5]
        K_PC:
        s_add_u32 s4, s4, K_M0_LOOP-K_PC
        s_addc_u32 s5, s5, 0
        v_lshlrev_b32 v14, 3, v{V_L16}
        global_load_dword v16, v14, s[4:5]
        v_add_u32 v15, 8192, v14
        global_load_dword v17, v15, s[4:5]
        """)
    C.load_all_weights(A)
    tl(1, (14,15))
    A(f"""
    v_mov_b32 v25, 0
    s_mov_b32 s65, {SPIN}
    K_MW:
    buffer_load_dword v24, v25, s[60:63], 0 offen sc1
    buffer_load_dword v26, v25, s[60:63], 0 offen offset:64 sc1
    buffer_load_dword v27, v25, s[60:63], 0 offen offset:128 sc1
    s_waitcnt vmcnt(0)
    v_readfirstlane_b32 s28, v24
    v_readfirstlane_b32 s29, v26
    v_readfirstlane_b32 s{S_NONCE}, v27
    s_cmp_eq_u32 s{S_NONCE}, 0
    s_cbranch_scc1 K_MW2
    s_mov_b32 s64, 0
    s_cmp_ge_u32 s28, 32
    s_cbranch_scc1 K_MK
    s_mov_b32 s64, 1
    s_cmp_gt_u32 s29, 224
    s_cbranch_scc1 K_MK
    K_MW2:
    s_sub_u32 s65, s65, 1
    s_cbranch_scc1 {END}
    s_sleep 2
    s_branch K_MW
    K_MK:
    """)
    if "forceslow" in opt: A("s_mov_b32 s64, 1")
    for mode, st in ((0, ""), (1, "sc1")):
        lab = f"K_M{mode}"
        if mode == 0: A(f"s_cmp_eq_u32 s64, 1\ns_cbranch_scc1 K_M1")
        else: A.label("K_M1")
        A(f"""
        s_lshl_b32 s{C.S_PFO}, s{C.S_H}, 5
        s_add_u32 s{C.S_PFO}, s{C.S_PFO}, {WS_FLAGS + F_P}
        v_lshrrev_b32 v24, 2, v0
        v_and_b32 v24, 4, v24
        s_mov_b32 s65, {SPIN}
        {lab}p:
        buffer_load_dword v25, v24, s[{SRD_WS}:{SRD_WS+3}], s{C.S_PFO} offen sc1
        s_waitcnt vmcnt(0)
        v_subrev_u32 v25, s{S_NONCE}, v25
        v_subrev_u32 v25, 1, v25
        v_cmp_lt_u32 vcc, 15, v25
        s_cbranch_vccz {lab}q
        s_sub_u32 s65, s65, 1
        s_cbranch_scc1 {END}
        s_sleep 4
        s_branch {lab}p
        {lab}q:
        s_mov_b32 s{C.S_PRHO}, 2
        s_mov_b32 s{C.S_PKK}, 0
        s_add_u32 s{C.S_PFA}, s{C.S_PFO}, 8
        """)
        A(f"""
        s_and_b32 s{C.S_TAG}, s{S_NONCE}, 0x3fff3f00
        s_add_u32 s{C.S_TAG}, s{C.S_TAG}, 1
        s_lshl_b32 s{C.S_TAG4}, s{C.S_TAG}, 2
        s_lshl_b32 s{C.S_CFO}, s{C.S_H}, 2
        s_add_u32 s{C.S_CFO}, s{C.S_CFO}, {WS_FLAGS + F_C}
        """)
        if mode == 0: A.label("K_M0_LOOP")
        C.init_state(A, flags=True)
        tl(2, (14,15))
        n0 = len(A.lines)
        if "cprof" in opt and mode == 0:
            for i in list(range(86,94))+[98,99,100,101]: A(f"s_mov_b32 s{i}, 0")
            A("s_memtime s[2:3]\ns_waitcnt lgkmcnt(0)\ns_mov_b32 s48, s2")
            for i in range(8): A(f"s_mov_b32 s{70+2*i}, s2")
        C.chain_step(A, st, prof=("cprof" in opt and mode == 0), nsteps=64, opt=("flags",) + tuple(o for o in opt if o in ("nopub","nopf","fixkv","steptl")))
        if "cprof" in opt and mode == 0:
            for i in range(8): A(f"v_mov_b32 v{28+i}, s{86+i}")
            A(f"""
            v_mov_b32 v44, s98
            v_mov_b32 v45, s99
            v_mov_b32 v46, s100
            v_mov_b32 v47, s101
            s_lshl_b32 s6, s{C.S_H}, 2
            s_add_u32 s6, s6, s{C.S_W}
            s_mul_i32 s6, s6, 96
            s_add_u32 s6, s6, {WS_FLAGS + 49152 + 32768}
            v_mov_b32 v48, s6
            s_mov_b64 exec, 1
            """)
            for j in range(1, 6): A(f"buffer_store_dwordx4 v[{24+4*j}:{27+4*j}], v48, s[8:11], 0 offen offset:{16*j}")
            A("s_mov_b64 exec, -1\ns_waitcnt vmcnt(0)")
        hz += check_hazards(A.lines[n0:], "chain")
        tl(3, (14,15))
        A("s_endpgm")
    A.label(END)
    return A, hz

HEADER = open("concat_heads__memory_aug_recurrent_mem_tr__grouped_kv_mqa__prompt.s.ref").read().split("; Override launch geometry")[0]

def full_text(opt=()):
    A, hz = build(opt)
    for m in hz: print("HAZARD", m)
    txt = HEADER + "; @launch grid=(256,1,1) block=(256,1,1) lds=163840\n"
    txt += f""".amdgcn_target "amdgcn-amd-amdhsa--gfx950"
.text
.globl {KNAME}
.p2align 8
.type {KNAME},@function
{KNAME}:
"""
    body = "\n".join(l.split(";")[0].rstrip().lstrip() if not l.lstrip().startswith(";") else "" for l in A.lines)
    body = "\n".join(l for l in body.split("\n") if l)
    if "noalign" not in opt:
        import alignpass
        body = "\n".join(alignpass.align(body.split("\n"), GRAN))
    txt += body + f"""
s_endpgm
.section .rodata,"a"
.p2align 6
.amdhsa_kernel {KNAME}
  .amdhsa_next_free_vgpr 512
  .amdhsa_next_free_sgpr 102
  .amdhsa_accum_offset 256
  .amdhsa_group_segment_fixed_size 0
  .amdhsa_kernarg_size 120
  .amdhsa_user_sgpr_count 2
  .amdhsa_user_sgpr_kernarg_segment_ptr 1
  .amdhsa_system_sgpr_workgroup_id_x 1
.end_amdhsa_kernel
"""
    return txt

if __name__ == "__main__":
    opt = tuple(a[2:] for a in sys.argv[1:] if a.startswith("--"))
    for a in sys.argv[1:]:
        if a.startswith("d="): C.DELAYS[:] = [int(x) for x in a[2:].split(",")]
        if a.startswith("g="): C.GSLEEP = int(a[2:])
        if a.startswith("gran="): GRAN = int(a[5:])
        if a.startswith("gm="): C.GMODE = int(a[3:])
        if a.startswith("g01="): C.G01 = int(a[4:])
        if a.startswith("pg="): C.PGAP = int(a[3:])
        if a.startswith("p0="): C.PUB0 = int(a[3:])
        if a.startswith("pgp="): C.PUBG = int(a[4:])
        if a.startswith("rg="): C.RGAP = int(a[3:])
    t = full_text(opt)
    out = "concat_heads__memory_aug_recurrent_mem_tr__grouped_kv_mqa__prompt.s"
    for a in sys.argv[1:]:
        if a.startswith("o="): out = a[2:]
    open(out, "w").write(t)
    print("written", len(t), "bytes")
```
